```python
import torch

def _softmax(x, axis=-1):
    return torch.softmax(x, dim=axis)
def _gelu(x):
    return torch.nn.functional.gelu(x, approximate="tanh")
def _silu(x):
    return torch.nn.functional.silu(x)
def _sigmoid(x):
    return torch.sigmoid(x)
def _layernorm(x, axis=-1, eps=1e-5):
    m = x.mean(dim=axis, keepdim=True)
    v = x.var(dim=axis, keepdim=True, unbiased=False)
    return (x - m) / torch.sqrt(v + eps)
def _scatter_add(tgt, idx, src, axis=0):
    return tgt.clone().index_add_(axis, idx, src)
def _segment_sum(src, seg, n):
    out = torch.zeros((n,) + src.shape[1:], dtype=src.dtype)
    return out.index_add_(0, seg, src)
def _pad(x, pw):
    flat = tuple(v for pair in reversed(pw) for v in pair)
    return torch.nn.functional.pad(x, flat)

kernel_name = 'standalone__gqa_softmax__near_ridge'

def setup_inputs():

    _w = (lambda a: (lambda t: t.to(torch.bfloat16) if t.is_floating_point() else t)(torch.as_tensor(a)))
    B, Hq, Hkv, Sq, Sk, D = 16, 32, 8, 64, 512, 128
    return {
        "q": _w((lambda *s: torch.randn(*s, dtype=torch.bfloat16) * 0.8)(B, Hq, Sq, D)),
        "k": _w((lambda *s: torch.randn(*s, dtype=torch.bfloat16) * 0.8)(B, Hkv, Sk, D)),
        "v": _w((lambda *s: torch.randn(*s, dtype=torch.bfloat16) * 0.05)(B, Hkv, Sk, D)),
    }

def reference(q, k, v):
    B, Hq, Sq, D = q.shape
    Hkv = k.shape[1]
    rep = Hq // Hkv
    k = (lambda x, n, axis: torch.repeat_interleave(x, n, dim=axis))(k, rep, axis=1)
    v = (lambda x, n, axis: torch.repeat_interleave(x, n, dim=axis))(v, rep, axis=1)
    scale = D ** -0.5
    scores = torch.einsum("bhqd,bhkd->bhqk", q, k) * scale
    p = _softmax(scores, axis=-1)
    return torch.einsum("bhqk,bhkd->bhqd", p, v)
```

```python
import re

class I:
    __slots__=("text","kind","rd","wr","cost","passes","srcc","sw","sr","tag")
    def __init__(s,text,kind,rd=(),wr=(),cost=4,passes=0,srcc=(),sw=(),sr=(),tag=None):
        s.text=text; s.kind=kind; s.rd=frozenset(rd); s.wr=frozenset(wr); s.cost=cost
        s.passes=passes; s.srcc=frozenset(srcc); s.sw=frozenset(sw); s.sr=frozenset(sr); s.tag=tag
    def __repr__(s): return s.text

def R(a,n=1): return list(range(a,a+n))
def vr(a,n=1): return f"v{a}" if n==1 else f"v[{a}:{a+n-1}]"

def valu(op,d,*src,cost=4,kind='valu',extra=""):
    rd=[x for x in src if isinstance(x,int)]
    sr=[x for x in src if isinstance(x,str) and re.match(r'^-?s\d+$|^vcc',x)]
    t=f"{op} v{d}, "+", ".join(f"v{x}" if isinstance(x,int) else x for x in src)+extra
    return I(t,kind,rd=rd,wr=[d],cost=cost,sr=sr)
def trans(op,d,s): return valu(op,d,s,cost=8,kind='trans')
def mfma32(d,a,b,c):
    ct = vr(c,16) if isinstance(c,int) else c
    rd=R(a,4)+R(b,4)+(R(c,16) if isinstance(c,int) else [])
    return I(f"v_mfma_f32_32x32x16_bf16 {vr(d,16)}, {vr(a,4)}, {vr(b,4)}, {ct}",'mfma',rd=rd,wr=R(d,16),cost=8,passes=8,
             srcc=(R(c,16) if isinstance(c,int) else []), tag=(d,c))
def dsr128(d,addr,off): return I(f"ds_read_b128 {vr(d,4)}, v{addr} offset:{off}",'dsr',rd=[addr],wr=R(d,4))
def dsrtr(d,addr,off): return I(f"ds_read_b64_tr_b16 {vr(d,2)}, v{addr} offset:{off}",'dsr',rd=[addr],wr=R(d,2))
def dsw128(addr,s,off): return I(f"ds_write_b128 v{addr}, {vr(s,4)} offset:{off}",'dsw',rd=[addr]+R(s,4))
def dsw64(addr,s,off): return I(f"ds_write_b64 v{addr}, {vr(s,2)} offset:{off}",'dsw',rd=[addr]+R(s,2))
def perm32(a,b): return I(f"v_permlane32_swap_b32 v{a}, v{b}",'perm',rd=[a,b],wr=[a,b])
def perm16(a,b): return I(f"v_permlane16_swap_b32 v{a}, v{b}",'perm',rd=[a,b],wr=[a,b])
def salu(t,sw=(),sr=()): return I(t,'salu',sw=sw,sr=sr)
def raw(t,kind='raw',**k): return I(t,kind,**k)
def store4(s,addr,srd,off,flags=""): return I(f"buffer_store_dwordx4 {vr(s,4)}, v{addr}, {srd}, 0 offen offset:{off} {flags}".rstrip(),'st4',rd=[addr]+R(s,4))
def barrier(): return I("s_barrier",'barrier')
def label(n): return I(f"{n}:",'label',cost=0)
def nop(n): return I(f"s_nop {n}",'nop',cost=4*(n+1))
def wait_lgkm(n): return I(f"s_waitcnt lgkmcnt({n})",'wait')

def insert_lgkm(prog):
    out=[]; q=[]
    for ins in prog:
        need=None
        if ins.kind=='wait' and 'lgkmcnt' in ins.text:
            n=int(re.search(r'lgkmcnt\((\d+)\)',ins.text).group(1))
            q=q[len(q)-n:] if n<len(q) else q
            if n==0: q=[]
            out.append(ins); continue
        if ins.kind=='barrier' and ins.tag=='drain' and q:
            need=0
        touched=ins.rd|ins.wr
        for idx,(w,r) in enumerate(q):
            if (w & touched) or (r & ins.wr):
                n=len(q)-1-idx
                need=n if need is None else min(need,n)
        if need is not None:
            need=min(need,15)
            out.append(wait_lgkm(need))
            q=q[len(q)-need:] if need>0 else []
        out.append(ins)
        if ins.kind=='dsr': q.append((ins.wr,frozenset()))
        elif ins.kind=='dsw': q.append((frozenset(),frozenset()))
        if len(q)>15:
            pass
    return out

def ws(ins):
    if ins.kind=='label': return 0
    if ins.kind=='nop': return int(ins.text.split()[1])+1
    return 1

VALU_KINDS=('valu','trans','perm','dpp')
def required(prev,cur):
    need=0
    pv = prev.kind in VALU_KINDS
    cv = cur.kind in VALU_KINDS
    if pv and cur.kind=='mfma' and (prev.wr & cur.rd): need=max(need,2)
    if prev.kind=='mfma':
        P=prev.passes
        tab={8:(10,12,7),4:(6,8,3)}[P]
        if cur.kind=='mfma':
            ab = cur.rd - cur.srcc
            if prev.wr & ab: need=max(need,tab[1])
            if prev.wr & cur.srcc:
                if prev.wr!=cur.srcc: need=max(need,tab[0])
            elif prev.wr & cur.wr:
                need=max(need,tab[0])
        else:
            if prev.wr & (cur.rd|cur.wr): need=max(need,tab[1])
            if cv and (prev.srcc & cur.wr): need=max(need,tab[2])
    if prev.kind=='trans' and cur.kind in ('valu','perm','dpp','mfma','st4','dsw') and (prev.wr & cur.rd): need=max(need,1)
    if pv and cur.kind in ('perm','dpp') and (prev.wr & cur.rd): need=max(need,2)
    if prev.kind=='st4' and (prev.rd & cur.wr): need=max(need,2)
    if pv and prev.sw and (prev.sw & cur.sr):
        need=max(need, 2 if cv else 5)
    if pv and cur.kind=='rfl' and (prev.wr & cur.rd): need=max(need,1)
    return need

def pad_hazards(prog,verbose=False):
    out=[]; added=0
    for ins in prog:
        need=0; dist=0
        for p in reversed(out[-40:]):
            r=required(p,ins)
            if r>dist: need=max(need,r-dist)
            dist+=ws(p)
            if dist>=20: break
        if need>0:
            added+=need
            if verbose: print("pad",need,"before",ins.text)
            while need>0:
                k=min(need,16); out.append(nop(k-1)); need-=k
        out.append(ins)
    return out,added

def text(prog): return "\n".join(("" if i.kind=='label' else "    ")+i.text for i in prog)
def est_cycles(prog):
    t=0; pipe=0
    for i in prog:
        if i.kind=='mfma':
            t=max(t,pipe); pipe=t+4*i.passes; t+=i.cost
        else: t+=i.cost
    return max(t,pipe)
```

```python
import sys, math
from asmlib import *

KN="standalone__gqa_softmax__near_ridge_kernel"
C_SCALE = math.log2(math.e)/math.sqrt(128.0)
import struct
def f2u(x): return struct.unpack("<I",struct.pack("<f",x))[0]

def gen(lazy=1, depth=4, ldflags="nt", stflags="", stamps=0, pf=5, thr=8.0, head=100, budget=24, lprio=0, cprio=0, vsplit=4, verbose=0, issue_first=1):
    vKA=16; vVA=24
    vM,vNM,vLa,vLb,vMX,vT1,vT2,vTH,vOA,vRL=28,29,30,31,32,33,34,35,36,37
    vAL=[38,39,8]
    vQ=40; vFR=72; NFR=8
    vBLK=[104+16*i for i in range(5)]
    vO=184
    sC="s40"; sTHR="s41"
    sFL=["s42","s43","s44"]
    KB=0; VB=65536; QB=131072
    order=[('Q',0),('Q',1),('K',0),('K',1),('K',2)]
    for j in range(5): order+=[('V',j),('K',j+3)]
    order+=[('V',5),('V',6),('V',7)]
    assert len(order)==18
    free=list(range(5)); blk={}
    P=[]
    rare=[]
    stamp_idx=[0]
    def stamp():
        if stamps:
            i=stamp_idx[0]; stamp_idx[0]+=1
            P.append(raw(f"s_memtime s[{50+2*i}:{51+2*i}]"))
    fr_ptr=[0]
    def next_fr():
        r=vFR+4*(fr_ptr[0]%NFR); fr_ptr[0]+=1; return r

    def qk_job(j):
        a=free.pop(0); b=free.pop(0); blk[j]=(a,b)
        slot=j%4
        items=[]
        for u in range(2):
            d=vBLK[blk[j][u]]
            for s in range(8):
                f=next_fr()
                items.append(([dsr128(f,vKA+s,KB+slot*16384+u*8192)], mfma32(d,f,vQ+4*s,"0" if s==0 else d)))
        return items
    def pv_job(j,order_dt_outer=False,ts=range(4)):
        slot=j%4
        p=vBLK[blk[j][0]]
        items=[]
        seq=[(t,dt) for dt in range(4) for t in ts] if order_dt_outer else [(t,dt) for t in ts for dt in range(4)]
        for t,dt in seq:
            f=next_fr()
            rds=[dsrtr(f+2*u,vVA+dt,slot*16384+(16*t+8*u)*256) for u in range(2)]
            c = "0" if (j==0 and t==0) else vO+16*dt
            items.append((rds,mfma32(vO+16*dt,f,p+4*t,c)))
        return items
    def sm_max(j):
        a,b=vBLK[blk[j][0]],vBLK[blk[j][1]]
        o=[]
        o.append(valu("v_max3_f32",vMX,a,a+1,a+2)); o.append(valu("v_max3_f32",vT1,b,b+1,b+2))
        for k in range(3,15,2):
            o.append(valu("v_max3_f32",vMX,vMX,a+k,a+k+1)); o.append(valu("v_max3_f32",vT1,vT1,b+k,b+k+1))
        o.append(valu("v_max3_f32",vMX,vMX,a+15,b+15)); o.append(valu("v_max_f32",vMX,vMX,vT1))
        return o
    def crosshalf(dst_list,reg,tmp,op):
        dst_list.append(valu("v_mov_b32",tmp,reg))
        dst_list.append(perm32(reg,tmp))
        dst_list.append(valu(op,reg,reg,tmp))
    def sm_stat(j):
        o=[]
        al=vAL[j%3]
        if j==0:
            crosshalf(o,vMX,vT1,"v_max_f32")
            o.append(valu("v_mov_b32",vM,vMX))
            o.append(valu("v_mul_f32",vNM,sC,vMX))
            o.append(valu("v_add_f32",vTH,sTHR,vMX))
            o.append(valu("v_sub_f32",vNM,"0",vNM))
            o.append(valu("v_mov_b32",vLa,"0")); o.append(valu("v_mov_b32",vLb,"0"))
            return o
        def update(o):
            crosshalf(o,vMX,vT1,"v_max_f32")
            o.append(valu("v_max_f32",vMX,vMX,vM))
            o.append(valu("v_sub_f32",vT1,vM,vMX))
            o.append(valu("v_mul_f32",vT1,sC,vT1))
            o.append(trans("v_exp_f32",al,vT1))
            o.append(valu("v_mov_b32",vM,vMX))
            o.append(valu("v_mul_f32",vNM,sC,vMX))
            o.append(valu("v_add_f32",vTH,sTHR,vMX))
            o.append(valu("v_sub_f32",vNM,"0",vNM))
            o.append(valu("v_mul_f32",vLa,vLa,al)); o.append(valu("v_mul_f32",vLb,vLb,al))
        if not lazy:
            update(o); return o
        o.append(I(f"v_cmp_gt_f32 vcc, v{vMX}, v{vTH}",'valu',rd=[vMX,vTH],sw=['vcc']))
        o.append(salu(f"s_mov_b32 {sFL[j%3]}, 0"))
        o.append(raw(f"s_cbranch_vccnz L_rareA{j}"))
        o.append(label(f"L_backA{j}"))
        r=[label(f"L_rareA{j}"),nop(3)]
        update(r)
        r.append(salu(f"s_mov_b32 {sFL[j%3]}, 1"))
        r.append(nop(3))
        r.append(raw(f"s_branch L_backA{j}"))
        rare.extend(r)
        return o
    def sm_exp(j,half,scale=None):
        a,b=vBLK[blk[j][0]],vBLK[blk[j][1]]
        src=a if half==0 else b
        dstp=a+8*half
        seq=[]
        n=16
        F=lambda i: valu("v_fma_f32",src+i,src+i,sC,vNM)
        E=lambda i: trans("v_exp_f32",src+i,src+i)
        A=lambda i: valu("v_add_f32",vLa if i%2==0 else vLb,vLa if i%2==0 else vLb,src+i)
        Cv=lambda k: valu("v_cvt_pk_bf16_f32",dstp+k,src+2*k,src+2*k+1)
        for i in range(n+3):
            if i<n: seq.append(F(i))
            if 0<=i-1<n: seq.append(E(i-1))
            if 0<=i-2<n: seq.append(A(i-2))
            if scale is None and i-3>=0 and (i-3)%2==1: seq.append(Cv((i-3)//2))
        return seq
    def resc(j,al=None):
        al=vAL[j%3] if al is None else al
        return [valu("v_mul_f32",vO+i,vO+i,al) for i in range(64)]
    def resc_point(j):
        if j==0: return []
        if not lazy: return resc(j)
        o=[salu(f"s_cmp_lg_u32 {sFL[j%3]}, 0"),raw(f"s_cbranch_scc1 L_rareB{j}"),label(f"L_backB{j}")]
        r=[label(f"L_rareB{j}"),nop(15)]+resc(j)+[nop(3),raw(f"s_branch L_backB{j}")]
        rare.extend(r)
        return o

    def phase(items,fill,head_cost=head,bar=True,after=None,pre=()):
        if bar: P.append(I("s_barrier",'barrier',tag='drain')); stamp()
        n=len(items)
        fill=list(fill); fi=0
        after=after or {}
        tot=sum(f.cost for f in fill)+sum(4*len(r) for r,_ in items)
        per=max(budget,(tot-head_cost)/max(n,1))
        for k in range(min(pf,n)):
            P.extend(items[k][0])
        P.extend(pre)
        acc=0
        def place(limit,g):
            nonlocal fi,acc
            while fi<len(fill) and acc+fill[fi].cost<=limit+1e-9 and after.get(id(fill[fi]),-1)<g:
                P.append(fill[fi]); acc+=fill[fi].cost; fi+=1
        place(head_cost,0)
        base=acc
        for g in range(n):
            P.append(items[g][1])
            if g+pf<n:
                P.extend(items[g+pf][0]); acc+=4*len(items[g+pf][0])
            place(base+per*(g+1),g+1 if g+1<n else 10**9)
        while fi<len(fill): P.append(fill[fi]); fi+=1

    H=[]
    e=H.append
    e(f"; @launch grid=(256,1,1) block=(512,1,1) lds=163840")
    e('.amdgcn_target "amdgcn-amd-amdhsa--gfx950"')
    e(f".text\n.globl {KN}\n.p2align 8\n.type {KN},@function\n{KN}:")
    e("s_load_dwordx4 s[4:7], s[0:1], 0")
    e("s_load_dwordx4 s[8:11], s[0:1], 16")
    if stamps:
        e("s_load_dwordx2 s[12:13], s[0:1], 40")
        e("s_memrealtime s[46:47]\ns_memtime s[48:49]")
    e("s_cmp_ge_u32 s2, 256\ns_cbranch_scc1 L_end")
    e("s_and_b32 s14, s2, 7\ns_lshr_b32 s15, s2, 4\ns_lshl_b32 s15, s15, 3\ns_add_u32 s14, s14, s15")
    e("s_bfe_u32 s15, s2, 0x10003")
    e("v_lshrrev_b32 v1, 6, v0\nv_and_b32 v2, 63, v0")
    e("s_lshl_b32 s17, s14, 17")
    e("v_readfirstlane_b32 s16, v1")
    e("s_lshl_b32 s18, s14, 16\ns_lshl_b32 s19, s15, 15\ns_add_u32 s18, s18, s19")
    e("s_cmp_ge_u32 s16, 4\ns_cbranch_scc1 L_loader")
    if cprio: e(f"s_setprio {cprio}")
    e(f"s_mov_b32 {sC}, {f2u(C_SCALE):#x}")
    e(f"s_mov_b32 {sTHR}, {f2u(thr/C_SCALE):#x}")
    e("v_and_b32 v3, 31, v2")
    e("v_lshrrev_b32 v4, 5, v2")
    e("v_and_b32 v5, 15, v2")
    e("v_lshlrev_b32 v6, 8, v3")
    for s in range(8):
        e(f"v_or_b32 v7, {2*s}, v4\nv_xor_b32 v7, v7, v5\nv_lshl_add_u32 v{vKA+s}, v7, 4, v6")
    e("v_lshrrev_b32 v7, 2, v5")
    e("v_and_b32 v9, 3, v5")
    e("v_bfe_u32 v10, v2, 4, 1")
    e("v_lshl_add_u32 v11, v4, 2, v7")
    e("v_lshlrev_b32 v11, 8, v11")
    e("v_lshl_add_u32 v11, v10, 5, v11")
    e("v_lshl_add_u32 v11, v9, 3, v11")
    e(f"v_add_u32 v11, {VB}, v11")
    for dt in range(4):
        e(f"v_xor_b32 v12, {dt}, v7\nv_lshl_add_u32 v{vVA+dt}, v12, 6, v11")
    e("s_lshl_b32 s45, s16, 13")
    e(f"v_lshl_add_u32 v{vOA}, v4, 4, v6\nv_add_u32 v{vOA}, s45, v{vOA}")
    e(f"s_add_u32 s45, s45, {QB}")
    for s in range(8):
        e(f"v_add_u32 v{vFR+s}, s45, v{vKA+s}")
    e("s_waitcnt lgkmcnt(0)")
    e("s_add_u32 s32, s10, s18\ns_addc_u32 s33, s11, 0\ns_mov_b32 s34, 32768\ns_mov_b32 s35, 0x20000")
    if stamps: e("s_mov_b32 s36, s12\ns_mov_b32 s37, s13\ns_mov_b32 s38, 0x1000000\ns_mov_b32 s39, 0x20000")
    P.append(I("s_barrier",'barrier')); stamp()
    for s in range(8): P.append(dsr128(vQ+4*s,vFR+s,0))
    phase(qk_job(0),[])
    phase(qk_job(1),sm_max(0)+sm_stat(0)+sm_exp(0,0)+sm_exp(0,1)); free.append(blk[0][1])
    phase(qk_job(2),sm_max(1)+sm_stat(1)+sm_exp(1,0)+sm_exp(1,1)); free.append(blk[1][1])
    for j in range(5):
        phase(pv_job(j),sm_max(j+2)+sm_stat(j+2)+sm_exp(j+2,0)); free.append(blk[j][0])
        phase(qk_job(j+3),resc_point(j+1)+sm_exp(j+2,1)); free.append(blk[j+2][1])
    phase(pv_job(5),sm_max(7)+sm_stat(7)+sm_exp(7,0,scale=1)); free.append(blk[5][0])
    P.extend(resc_point(6))
    a7,b7=vBLK[blk[7][0]],vBLK[blk[7][1]]
    fin=sm_exp(7,1,scale=1)
    fin.append(valu("v_add_f32",vLa,vLa,vLb))
    crosshalf(fin,vLa,vT1,"v_add_f32")
    fin.append(trans("v_rcp_f32",vRL,vLa))
    fin.append(valu("v_mul_f32",vT2,vRL,vAL[7%3]))
    norm=[]
    for half,src in ((0,a7),(1,b7)):
        for k in range(8):
            norm.append(valu("v_mul_f32",src+2*k,src+2*k,vRL)); norm.append(valu("v_mul_f32",src+2*k+1,src+2*k+1,vRL))
            norm.append(valu("v_cvt_pk_bf16_f32",a7+8*half+k,src+2*k,src+2*k+1))
    osc=[valu("v_mul_f32",vO+i,vO+i,vT2) for i in range(64)]
    after={}
    for i,ins in enumerate(osc): after[id(ins)]=4*(i//16)+3+1
    phase(pv_job(6,order_dt_outer=True),fin+norm+osc,after=after)
    tper=4//vsplit
    for piece in range(vsplit):
        ts=range(piece*tper,(piece+1)*tper)
        last = piece==vsplit-1
        if not last:
            phase(pv_job(7,ts=ts),[])
        else:
            items=pv_job(7,ts=ts,order_dt_outer=True)
            ep=[]; after={}
            for dt in range(4):
                o=vO+16*dt
                blkins=[]
                for k in range(8): blkins.append(valu("v_cvt_pk_bf16_f32",o+k,o+2*k,o+2*k+1))
                for pr in range(2):
                    blkins.append(perm32(o+4*pr,o+4*pr+2)); blkins.append(perm32(o+4*pr+1,o+4*pr+3))
                for pr in range(2):
                    blkins.append(store4(o+4*pr,vOA,"s[32:35]",64*dt+32*pr,stflags))
                for ins in blkins: after[id(ins)]=tper*(dt+1)-1+1
                ep+=blkins
            phase(items,ep,after=after,head_cost=0)
    stamp()
    pre=[]
    if lazy:
        pass
    prog=P
    if lazy:
        idx=[i for i,x in enumerate(prog) if x.text=="s_cbranch_vccnz L_rareA7"][0]
        prog.insert(idx-2,valu("v_mov_b32",vAL[7%3],"1.0"))
    prog=insert_lgkm(prog)
    prog,added=pad_hazards(prog,verbose)
    sys.stderr.write(f"consumer: {len(prog)} instrs, nops added {added}, est cycles {est_cycles(prog)}\n")
    H.append(text(prog))
    if stamps:
        ns=stamp_idx[0]
        e("s_waitcnt vmcnt(0)")
        e(f"s_memtime s[{50+2*ns}:{51+2*ns}]\ns_memrealtime s[{52+2*ns}:{53+2*ns}]\ns_waitcnt lgkmcnt(0)")
        e("s_cmp_lg_u32 s16, 0\ns_cbranch_scc1 L_end")
        e("s_lshl_b32 s45, s2, 8\nv_mov_b32 v7, s45")
        regs=[46,48]+[50+2*i for i in range(ns+2)]
        for i,r in enumerate(regs):
            e(f"v_mov_b32 v8, s{r}\nbuffer_store_dword v8, v7, s[36:39], 0 offen offset:{4*i}\ns_nop 1")
        sys.stderr.write(f"nstamps={len(regs)}\n")
    e("s_endpgm")
    rp,_=pad_hazards(rare)
    H.append(text(rp))
    e("L_loader:")
    if lprio: e(f"s_setprio {lprio}")
    e("s_sub_u32 s16, s16, 4")
    e("v_lshrrev_b32 v3, 4, v2\nv_and_b32 v4, 15, v2")
    e("s_lshl_b32 s44, s16, 2")
    e("v_add_u32 v5, s44, v3")
    e("v_xor_b32 v6, v4, v5\nv_lshlrev_b32 v6, 4, v6\nv_lshl_add_u32 v6, v5, 8, v6")
    e("v_lshlrev_b32 v7, 2, v3\nv_xor_b32 v7, v4, v7\nv_lshlrev_b32 v7, 4, v7\nv_lshl_add_u32 v7, v5, 8, v7")
    e("s_lshl_b32 s44, s16, 10")
    e("s_waitcnt lgkmcnt(0)")
    e("s_add_u32 s28, s4, s18\ns_addc_u32 s29, s5, 0\ns_mov_b32 s30, 32768\ns_mov_b32 s31, 0x20000")
    e("s_add_u32 s20, s6, s17\ns_addc_u32 s21, s7, 0\ns_mov_b32 s22, 131072\ns_mov_b32 s23, 0x20000")
    e("s_add_u32 s24, s8, s17\ns_addc_u32 s25, s9, 0\ns_mov_b32 s26, 131072\ns_mov_b32 s27, 0x20000")
    def issue(n):
        kind,j=order[n]
        srd,vo,base={'Q':("s[28:31]","v6",QB+j*16384),'K':("s[20:23]","v6",KB+(j%4)*16384),'V':("s[24:27]","v7",VB+(j%4)*16384)}[kind]
        for g in range(4):
            e(f"s_add_u32 m0, s44, {base+g*4096}")
            e(f"s_mov_b32 s45, {j*16384+g*4096}")
            e(f"buffer_load_dwordx4 {vo}, {srd}, s45 offen {ldflags} lds")
    issued=0
    for n in range(depth): issue(n); issued+=1
    for n in range(18):
        if n==17:
            for piece in range(vsplit):
                e(f"s_waitcnt vmcnt({4-(piece+1)*tper})\ns_barrier")
            break
        e(f"s_waitcnt vmcnt({4*(issued-n-1)})")
        if n>=1 and not issue_first: e("s_barrier")
        if issued<18:
            kind,j=order[issued]
            if kind in 'KV' and j>=4:
                y=order.index((kind,j-4)); assert y+1<=(n-1 if issue_first else n),(issued,y,n)
            issue(issued); issued+=1
        if n>=1 and issue_first: e("s_barrier")
    e("L_end:\ns_endpgm")
    e(f'.section .rodata,"a"\n.p2align 6\n.amdhsa_kernel {KN}')
    e("  .amdhsa_next_free_vgpr 256\n  .amdhsa_next_free_sgpr 102\n  .amdhsa_accum_offset 256\n  .amdhsa_group_segment_fixed_size 0\n  .amdhsa_kernarg_size 48\n  .amdhsa_user_sgpr_count 2\n  .amdhsa_user_sgpr_kernarg_segment_ptr 1\n  .amdhsa_system_sgpr_workgroup_id_x 1\n.end_amdhsa_kernel")
    return "\n".join(H)+"\n"

if __name__=="__main__":
    name=sys.argv[1]; kw={}
    for a in sys.argv[2:]:
        k,v=a.split("=",1)
        try: v=int(v)
        except:
            try: v=float(v)
            except: pass
        kw[k]=v
    open(name,"w").write(gen(**kw))
```

```python
import sys, math
from asmlib import *

KN="standalone__gqa_softmax__near_ridge_kernel"
C_SCALE = math.log2(math.e)/math.sqrt(128.0)
import struct
def f2u(x): return struct.unpack("<I",struct.pack("<f",x))[0]

def gen(lazy=1, depth=4, ldflags="nt", stflags="", stamps=0, pf=5, thr=8.0, head=100, budget=24, lprio=0, cprio=0, vsplit=4, verbose=0, issue_first=1, diag=None, dk=1):
    vKA=16; vVA=24
    vM,vNM,vLa,vLb,vMX,vT1,vT2,vTH,vOA,vRL=28,29,30,31,32,33,34,35,36,37
    vAL=[38,39,8]
    vQ=40; vFR=72; NFR=8
    vBLK=[104+16*i for i in range(5)]
    vO=184
    sC="s40"; sTHR="s41"
    sFL=["s42","s43","s44"]
    KB=0; VB=65536; QB=131072
    order=[('Q',0),('Q',1),('K',0),('K',1),('K',2)]
    for j in range(5): order+=[('V',j),('K',j+3)]
    order+=[('V',5),('V',6),('V',7)]
    assert len(order)==18
    free=list(range(5)); blk={}
    P=[]
    rare=[]
    stamp_idx=[0]
    dcount=[0]
    def stamp():
        if diag is not None:
            if dcount[0]==diag: P.append(raw("s_memrealtime s[60:61]"))
            dcount[0]+=1
        if stamps:
            i=stamp_idx[0]; stamp_idx[0]+=1
            P.append(raw(f"s_memtime s[{50+2*i}:{51+2*i}]"))
    fr_ptr=[0]
    def next_fr():
        r=vFR+4*(fr_ptr[0]%NFR); fr_ptr[0]+=1; return r

    def qk_job(j):
        a=free.pop(0); b=free.pop(0); blk[j]=(a,b)
        slot=j%4
        items=[]
        for u in range(2):
            d=vBLK[blk[j][u]]
            for s in range(8):
                f=next_fr()
                items.append(([dsr128(f,vKA+s,KB+slot*16384+u*8192)], mfma32(d,f,vQ+4*s,"0" if s==0 else d)))
        return items
    def pv_job(j,order_dt_outer=False,ts=range(4)):
        slot=j%4
        p=vBLK[blk[j][0]]
        items=[]
        seq=[(t,dt) for dt in range(4) for t in ts] if order_dt_outer else [(t,dt) for t in ts for dt in range(4)]
        for t,dt in seq:
            f=next_fr()
            rds=[dsrtr(f+2*u,vVA+dt,slot*16384+(16*t+8*u)*256) for u in range(2)]
            c = "0" if (j==0 and t==0) else vO+16*dt
            items.append((rds,mfma32(vO+16*dt,f,p+4*t,c)))
        return items
    def sm_max(j):
        a,b=vBLK[blk[j][0]],vBLK[blk[j][1]]
        o=[]
        o.append(valu("v_max3_f32",vMX,a,a+1,a+2)); o.append(valu("v_max3_f32",vT1,b,b+1,b+2))
        for k in range(3,15,2):
            o.append(valu("v_max3_f32",vMX,vMX,a+k,a+k+1)); o.append(valu("v_max3_f32",vT1,vT1,b+k,b+k+1))
        o.append(valu("v_max3_f32",vMX,vMX,a+15,b+15)); o.append(valu("v_max_f32",vMX,vMX,vT1))
        return o
    def crosshalf(dst_list,reg,tmp,op):
        dst_list.append(valu("v_mov_b32",tmp,reg))
        dst_list.append(perm32(reg,tmp))
        dst_list.append(valu(op,reg,reg,tmp))
    def sm_stat(j):
        o=[]
        al=vAL[j%3]
        if j==0:
            crosshalf(o,vMX,vT1,"v_max_f32")
            o.append(valu("v_mov_b32",vM,vMX))
            o.append(valu("v_mul_f32",vNM,sC,vMX))
            o.append(valu("v_add_f32",vTH,sTHR,vMX))
            o.append(valu("v_sub_f32",vNM,"0",vNM))
            o.append(valu("v_mov_b32",vLa,"0")); o.append(valu("v_mov_b32",vLb,"0"))
            return o
        def update(o):
            crosshalf(o,vMX,vT1,"v_max_f32")
            o.append(valu("v_max_f32",vMX,vMX,vM))
            o.append(valu("v_sub_f32",vT1,vM,vMX))
            o.append(valu("v_mul_f32",vT1,sC,vT1))
            o.append(trans("v_exp_f32",al,vT1))
            o.append(valu("v_mov_b32",vM,vMX))
            o.append(valu("v_mul_f32",vNM,sC,vMX))
            o.append(valu("v_add_f32",vTH,sTHR,vMX))
            o.append(valu("v_sub_f32",vNM,"0",vNM))
            o.append(valu("v_mul_f32",vLa,vLa,al)); o.append(valu("v_mul_f32",vLb,vLb,al))
        if not lazy:
            update(o); return o
        o.append(I(f"v_cmp_gt_f32 vcc, v{vMX}, v{vTH}",'valu',rd=[vMX,vTH],sw=['vcc']))
        o.append(salu(f"s_mov_b32 {sFL[j%3]}, 0"))
        o.append(raw(f"s_cbranch_vccnz L_rareA{j}"))
        o.append(label(f"L_backA{j}"))
        r=[label(f"L_rareA{j}"),nop(3)]
        update(r)
        r.append(salu(f"s_mov_b32 {sFL[j%3]}, 1"))
        r.append(nop(3))
        r.append(raw(f"s_branch L_backA{j}"))
        rare.extend(r)
        return o
    def sm_exp(j,half,scale=None):
        a,b=vBLK[blk[j][0]],vBLK[blk[j][1]]
        src=a if half==0 else b
        dstp=a+8*half
        seq=[]
        n=16
        F=lambda i: valu("v_fma_f32",src+i,src+i,sC,vNM)
        E=lambda i: trans("v_exp_f32",src+i,src+i)
        A=lambda i: valu("v_add_f32",vLa if i%2==0 else vLb,vLa if i%2==0 else vLb,src+i)
        Cv=lambda k: valu("v_cvt_pk_bf16_f32",dstp+k,src+2*k,src+2*k+1)
        for i in range(n+3):
            if i<n: seq.append(F(i))
            if 0<=i-1<n: seq.append(E(i-1))
            if 0<=i-2<n: seq.append(A(i-2))
            if scale is None and i-3>=0 and (i-3)%2==1: seq.append(Cv((i-3)//2))
        return seq
    def resc(j,al=None):
        al=vAL[j%3] if al is None else al
        return [valu("v_mul_f32",vO+i,vO+i,al) for i in range(64)]
    def resc_point(j):
        if j==0: return []
        if not lazy: return resc(j)
        o=[salu(f"s_cmp_lg_u32 {sFL[j%3]}, 0"),raw(f"s_cbranch_scc1 L_rareB{j}"),label(f"L_backB{j}")]
        r=[label(f"L_rareB{j}"),nop(15)]+resc(j)+[nop(3),raw(f"s_branch L_backB{j}")]
        rare.extend(r)
        return o

    def phase(items,fill,head_cost=head,bar=True,after=None,pre=()):
        if bar: P.append(I("s_barrier",'barrier',tag='drain')); stamp()
        n=len(items)
        fill=list(fill); fi=0
        after=after or {}
        tot=sum(f.cost for f in fill)+sum(4*len(r) for r,_ in items)
        per=max(budget,(tot-head_cost)/max(n,1))
        for k in range(min(pf,n)):
            P.extend(items[k][0])
        P.extend(pre)
        acc=0
        def place(limit,g):
            nonlocal fi,acc
            while fi<len(fill) and acc+fill[fi].cost<=limit+1e-9 and after.get(id(fill[fi]),-1)<g:
                P.append(fill[fi]); acc+=fill[fi].cost; fi+=1
        place(head_cost,0)
        base=acc
        for g in range(n):
            P.append(items[g][1])
            if g+pf<n:
                P.extend(items[g+pf][0]); acc+=4*len(items[g+pf][0])
            place(base+per*(g+1),g+1 if g+1<n else 10**9)
        while fi<len(fill): P.append(fill[fi]); fi+=1

    H=[]
    e=H.append
    e(f"; @launch grid=(256,1,1) block=(512,1,1) lds=163840")
    e('.amdgcn_target "amdgcn-amd-amdhsa--gfx950"')
    e(f".text\n.globl {KN}\n.p2align 8\n.type {KN},@function\n{KN}:")
    e("s_load_dwordx4 s[4:7], s[0:1], 0")
    e("s_load_dwordx4 s[8:11], s[0:1], 16")
    if stamps:
        e("s_load_dwordx2 s[12:13], s[0:1], 40")
        e("s_memrealtime s[46:47]\ns_memtime s[48:49]")
    if diag is not None: e("s_memrealtime s[46:47]")
    e("s_cmp_ge_u32 s2, 256\ns_cbranch_scc1 L_end")
    e("s_and_b32 s14, s2, 7\ns_lshr_b32 s15, s2, 4\ns_lshl_b32 s15, s15, 3\ns_add_u32 s14, s14, s15")
    e("s_bfe_u32 s15, s2, 0x10003")
    e("v_lshrrev_b32 v1, 6, v0\nv_and_b32 v2, 63, v0")
    e("s_lshl_b32 s17, s14, 17")
    e("v_readfirstlane_b32 s16, v1")
    e("s_lshl_b32 s18, s14, 16\ns_lshl_b32 s19, s15, 15\ns_add_u32 s18, s18, s19")
    e("s_cmp_ge_u32 s16, 4\ns_cbranch_scc1 L_loader")
    if cprio: e(f"s_setprio {cprio}")
    e(f"s_mov_b32 {sC}, {f2u(C_SCALE):#x}")
    e(f"s_mov_b32 {sTHR}, {f2u(thr/C_SCALE):#x}")
    e("v_and_b32 v3, 31, v2")
    e("v_lshrrev_b32 v4, 5, v2")
    e("v_and_b32 v5, 15, v2")
    e("v_lshlrev_b32 v6, 8, v3")
    for s in range(8):
        e(f"v_or_b32 v7, {2*s}, v4\nv_xor_b32 v7, v7, v5\nv_lshl_add_u32 v{vKA+s}, v7, 4, v6")
    e("v_lshrrev_b32 v7, 2, v5")
    e("v_and_b32 v9, 3, v5")
    e("v_bfe_u32 v10, v2, 4, 1")
    e("v_lshl_add_u32 v11, v4, 2, v7")
    e("v_lshlrev_b32 v11, 8, v11")
    e("v_lshl_add_u32 v11, v10, 5, v11")
    e("v_lshl_add_u32 v11, v9, 3, v11")
    e(f"v_add_u32 v11, {VB}, v11")
    for dt in range(4):
        e(f"v_xor_b32 v12, {dt}, v7\nv_lshl_add_u32 v{vVA+dt}, v12, 6, v11")
    e("s_lshl_b32 s45, s16, 13")
    e(f"v_lshl_add_u32 v{vOA}, v4, 4, v6\nv_add_u32 v{vOA}, s45, v{vOA}")
    e(f"s_add_u32 s45, s45, {QB}")
    for s in range(8):
        e(f"v_add_u32 v{vFR+s}, s45, v{vKA+s}")
    e("s_waitcnt lgkmcnt(0)")
    e("s_add_u32 s32, s10, s18\ns_addc_u32 s33, s11, 0\ns_mov_b32 s34, 32768\ns_mov_b32 s35, 0x20000")
    if stamps: e("s_mov_b32 s36, s12\ns_mov_b32 s37, s13\ns_mov_b32 s38, 0x1000000\ns_mov_b32 s39, 0x20000")
    P.append(I("s_barrier",'barrier')); stamp()
    for s in range(8): P.append(dsr128(vQ+4*s,vFR+s,0))
    phase(qk_job(0),[])
    phase(qk_job(1),sm_max(0)+sm_stat(0)+sm_exp(0,0)+sm_exp(0,1)); free.append(blk[0][1])
    phase(qk_job(2),sm_max(1)+sm_stat(1)+sm_exp(1,0)+sm_exp(1,1)); free.append(blk[1][1])
    for j in range(5):
        phase(pv_job(j),sm_max(j+2)+sm_stat(j+2)+sm_exp(j+2,0)); free.append(blk[j][0])
        phase(qk_job(j+3),resc_point(j+1)+sm_exp(j+2,1)); free.append(blk[j+2][1])
    phase(pv_job(5),sm_max(7)+sm_stat(7)+sm_exp(7,0,scale=1)); free.append(blk[5][0])
    P.extend(resc_point(6))
    a7,b7=vBLK[blk[7][0]],vBLK[blk[7][1]]
    fin=sm_exp(7,1,scale=1)
    fin.append(valu("v_add_f32",vLa,vLa,vLb))
    crosshalf(fin,vLa,vT1,"v_add_f32")
    fin.append(trans("v_rcp_f32",vRL,vLa))
    fin.append(valu("v_mul_f32",vT2,vRL,vAL[7%3]))
    norm=[]
    for half,src in ((0,a7),(1,b7)):
        for k in range(8):
            norm.append(valu("v_mul_f32",src+2*k,src+2*k,vRL)); norm.append(valu("v_mul_f32",src+2*k+1,src+2*k+1,vRL))
            norm.append(valu("v_cvt_pk_bf16_f32",a7+8*half+k,src+2*k,src+2*k+1))
    osc=[valu("v_mul_f32",vO+i,vO+i,vT2) for i in range(64)]
    after={}
    for i,ins in enumerate(osc): after[id(ins)]=4*(i//16)+3+1
    phase(pv_job(6,order_dt_outer=True),fin+norm+osc,after=after)
    tper=4//vsplit
    for piece in range(vsplit):
        ts=range(piece*tper,(piece+1)*tper)
        last = piece==vsplit-1
        if not last:
            phase(pv_job(7,ts=ts),[])
        else:
            items=pv_job(7,ts=ts,order_dt_outer=True)
            ep=[]; after={}
            for dt in range(4):
                o=vO+16*dt
                blkins=[]
                for k in range(8): blkins.append(valu("v_cvt_pk_bf16_f32",o+k,o+2*k,o+2*k+1))
                for pr in range(2):
                    blkins.append(perm32(o+4*pr,o+4*pr+2)); blkins.append(perm32(o+4*pr+1,o+4*pr+3))
                for pr in range(2):
                    blkins.append(store4(o+4*pr,vOA,"s[32:35]",64*dt+32*pr,stflags))
                for ins in blkins: after[id(ins)]=tper*(dt+1)-1+1
                ep+=blkins
            phase(items,ep,after=after,head_cost=0)
    stamp()
    pre=[]
    if lazy:
        pass
    prog=P
    if lazy:
        idx=[i for i,x in enumerate(prog) if x.text=="s_cbranch_vccnz L_rareA7"][0]
        prog.insert(idx-2,valu("v_mov_b32",vAL[7%3],"1.0"))
    prog=insert_lgkm(prog)
    prog,added=pad_hazards(prog,verbose)
    sys.stderr.write(f"consumer: {len(prog)} instrs, nops added {added}, est cycles {est_cycles(prog)}\n")
    H.append(text(prog))
    if stamps:
        ns=stamp_idx[0]
        e("s_waitcnt vmcnt(0)")
        e(f"s_memtime s[{50+2*ns}:{51+2*ns}]\ns_memrealtime s[{52+2*ns}:{53+2*ns}]\ns_waitcnt lgkmcnt(0)")
        e("s_cmp_lg_u32 s16, 0\ns_cbranch_scc1 L_end")
        e("s_lshl_b32 s45, s2, 8\nv_mov_b32 v7, s45")
        regs=[46,48]+[50+2*i for i in range(ns+2)]
        for i,r in enumerate(regs):
            e(f"v_mov_b32 v8, s{r}\nbuffer_store_dword v8, v7, s[36:39], 0 offen offset:{4*i}\ns_nop 1")
        sys.stderr.write(f"nstamps={len(regs)}\n")
    if diag is not None:
        e("s_waitcnt vmcnt(0)")
        if diag=='end': e("s_memrealtime s[60:61]")
        if diag=='cyc':
            e("s_memtime s[62:63]\ns_waitcnt lgkmcnt(0)\nL_spin:\ns_memtime s[64:65]\ns_waitcnt lgkmcnt(0)\ns_sub_u32 s66, s64, s62\ns_cmp_lt_u32 s66, 20000\ns_cbranch_scc1 L_spin")
        elif diag=='rt':
            e("s_memrealtime s[62:63]\ns_waitcnt lgkmcnt(0)\nL_spin:\ns_memrealtime s[64:65]\ns_waitcnt lgkmcnt(0)\ns_sub_u32 s66, s64, s62\ns_cmp_lt_u32 s66, 1000\ns_cbranch_scc1 L_spin")
        else:
            e(f"s_memrealtime s[62:63]\ns_waitcnt lgkmcnt(0)\ns_sub_u32 s67, s60, s46\ns_mul_i32 s67, s67, {dk}\ns_min_u32 s67, s67, 100000\nL_spin:\ns_memrealtime s[64:65]\ns_waitcnt lgkmcnt(0)\ns_sub_u32 s66, s64, s62\ns_cmp_lt_u32 s66, s67\ns_cbranch_scc1 L_spin")
    e("s_endpgm")
    rp,_=pad_hazards(rare)
    H.append(text(rp))
    e("L_loader:")
    if lprio: e(f"s_setprio {lprio}")
    e("s_sub_u32 s16, s16, 4")
    e("v_lshrrev_b32 v3, 4, v2\nv_and_b32 v4, 15, v2")
    e("s_lshl_b32 s44, s16, 2")
    e("v_add_u32 v5, s44, v3")
    e("v_xor_b32 v6, v4, v5\nv_lshlrev_b32 v6, 4, v6\nv_lshl_add_u32 v6, v5, 8, v6")
    e("v_lshlrev_b32 v7, 2, v3\nv_xor_b32 v7, v4, v7\nv_lshlrev_b32 v7, 4, v7\nv_lshl_add_u32 v7, v5, 8, v7")
    e("s_lshl_b32 s44, s16, 10")
    e("s_waitcnt lgkmcnt(0)")
    e("s_add_u32 s28, s4, s18\ns_addc_u32 s29, s5, 0\ns_mov_b32 s30, 32768\ns_mov_b32 s31, 0x20000")
    e("s_add_u32 s20, s6, s17\ns_addc_u32 s21, s7, 0\ns_mov_b32 s22, 131072\ns_mov_b32 s23, 0x20000")
    e("s_add_u32 s24, s8, s17\ns_addc_u32 s25, s9, 0\ns_mov_b32 s26, 131072\ns_mov_b32 s27, 0x20000")
    def issue(n):
        kind,j=order[n]
        srd,vo,base={'Q':("s[28:31]","v6",QB+j*16384),'K':("s[20:23]","v6",KB+(j%4)*16384),'V':("s[24:27]","v7",VB+(j%4)*16384)}[kind]
        for g in range(4):
            e(f"s_add_u32 m0, s44, {base+g*4096}")
            e(f"s_mov_b32 s45, {j*16384+g*4096}")
            e(f"buffer_load_dwordx4 {vo}, {srd}, s45 offen {ldflags} lds")
    issued=0
    for n in range(depth): issue(n); issued+=1
    for n in range(18):
        if n==17:
            for piece in range(vsplit):
                e(f"s_waitcnt vmcnt({4-(piece+1)*tper})\ns_barrier")
            break
        e(f"s_waitcnt vmcnt({4*(issued-n-1)})")
        if n>=1 and not issue_first: e("s_barrier")
        if issued<18:
            kind,j=order[issued]
            if kind in 'KV' and j>=4:
                y=order.index((kind,j-4)); assert y+1<=(n-1 if issue_first else n),(issued,y,n)
            issue(issued); issued+=1
        if n>=1 and issue_first: e("s_barrier")
    e("L_end:\ns_endpgm")
    e(f'.section .rodata,"a"\n.p2align 6\n.amdhsa_kernel {KN}')
    e("  .amdhsa_next_free_vgpr 256\n  .amdhsa_next_free_sgpr 102\n  .amdhsa_accum_offset 256\n  .amdhsa_group_segment_fixed_size 0\n  .amdhsa_kernarg_size 48\n  .amdhsa_user_sgpr_count 2\n  .amdhsa_user_sgpr_kernarg_segment_ptr 1\n  .amdhsa_system_sgpr_workgroup_id_x 1\n.end_amdhsa_kernel")
    return "\n".join(H)+"\n"

if __name__=="__main__":
    name=sys.argv[1]; kw={}
    for a in sys.argv[2:]:
        k,v=a.split("=",1)
        try: v=int(v)
        except:
            try: v=float(v)
            except: pass
        kw[k]=v
    open(name,"w").write(gen(**kw))
```

```python
import sys, math
from asmlib import *

KN="standalone__gqa_softmax__near_ridge_kernel"
C_SCALE = math.log2(math.e)/math.sqrt(128.0)
import struct
def f2u(x): return struct.unpack("<I",struct.pack("<f",x))[0]

def gen(lazy=1, depth=4, ldflags="nt", stflags="", stamps=0, pf=5, thr=8.0, head=100, budget=24, lprio=0, cprio=0, vsplit=4, verbose=0, issue_first=1, diag=None, dk=1, nomem=0):
    vKA=16; vVA=24
    vM,vNM,vLa,vLb,vMX,vT1,vT2,vTH,vOA,vRL=28,29,30,31,32,33,34,35,36,37
    vAL=[38,39,8]
    vQ=40; vFR=72; NFR=8
    vBLK=[104+16*i for i in range(5)]
    vO=184
    sC="s40"; sTHR="s41"
    sFL=["s42","s43","s44"]
    KB=0; VB=65536; QB=131072
    order=[('Q',0),('Q',1),('K',0),('K',1),('K',2)]
    for j in range(5): order+=[('V',j),('K',j+3)]
    order+=[('V',5),('V',6),('V',7)]
    assert len(order)==18
    free=list(range(5)); blk={}
    P=[]
    rare=[]
    stamp_idx=[0]
    dcount=[0]
    def stamp():
        if diag is not None:
            if dcount[0]==diag: P.append(raw("s_memrealtime s[60:61]"))
            dcount[0]+=1
        if stamps:
            i=stamp_idx[0]; stamp_idx[0]+=1
            P.append(raw(f"s_memtime s[{50+2*i}:{51+2*i}]"))
    fr_ptr=[0]
    def next_fr():
        r=vFR+4*(fr_ptr[0]%NFR); fr_ptr[0]+=1; return r

    def qk_job(j):
        a=free.pop(0); b=free.pop(0); blk[j]=(a,b)
        slot=j%4
        items=[]
        for u in range(2):
            d=vBLK[blk[j][u]]
            for s in range(8):
                f=next_fr()
                items.append(([dsr128(f,vKA+s,KB+slot*16384+u*8192)], mfma32(d,f,vQ+4*s,"0" if s==0 else d)))
        return items
    def pv_job(j,order_dt_outer=False,ts=range(4)):
        slot=j%4
        p=vBLK[blk[j][0]]
        items=[]
        seq=[(t,dt) for dt in range(4) for t in ts] if order_dt_outer else [(t,dt) for t in ts for dt in range(4)]
        for t,dt in seq:
            f=next_fr()
            rds=[dsrtr(f+2*u,vVA+dt,slot*16384+(16*t+8*u)*256) for u in range(2)]
            c = "0" if (j==0 and t==0) else vO+16*dt
            items.append((rds,mfma32(vO+16*dt,f,p+4*t,c)))
        return items
    def sm_max(j):
        a,b=vBLK[blk[j][0]],vBLK[blk[j][1]]
        o=[]
        o.append(valu("v_max3_f32",vMX,a,a+1,a+2)); o.append(valu("v_max3_f32",vT1,b,b+1,b+2))
        for k in range(3,15,2):
            o.append(valu("v_max3_f32",vMX,vMX,a+k,a+k+1)); o.append(valu("v_max3_f32",vT1,vT1,b+k,b+k+1))
        o.append(valu("v_max3_f32",vMX,vMX,a+15,b+15)); o.append(valu("v_max_f32",vMX,vMX,vT1))
        return o
    def crosshalf(dst_list,reg,tmp,op):
        dst_list.append(valu("v_mov_b32",tmp,reg))
        dst_list.append(perm32(reg,tmp))
        dst_list.append(valu(op,reg,reg,tmp))
    def sm_stat(j):
        o=[]
        al=vAL[j%3]
        if j==0:
            crosshalf(o,vMX,vT1,"v_max_f32")
            o.append(valu("v_mov_b32",vM,vMX))
            o.append(valu("v_mul_f32",vNM,sC,vMX))
            o.append(valu("v_add_f32",vTH,sTHR,vMX))
            o.append(valu("v_sub_f32",vNM,"0",vNM))
            o.append(valu("v_mov_b32",vLa,"0")); o.append(valu("v_mov_b32",vLb,"0"))
            return o
        def update(o):
            crosshalf(o,vMX,vT1,"v_max_f32")
            o.append(valu("v_max_f32",vMX,vMX,vM))
            o.append(valu("v_sub_f32",vT1,vM,vMX))
            o.append(valu("v_mul_f32",vT1,sC,vT1))
            o.append(trans("v_exp_f32",al,vT1))
            o.append(valu("v_mov_b32",vM,vMX))
            o.append(valu("v_mul_f32",vNM,sC,vMX))
            o.append(valu("v_add_f32",vTH,sTHR,vMX))
            o.append(valu("v_sub_f32",vNM,"0",vNM))
            o.append(valu("v_mul_f32",vLa,vLa,al)); o.append(valu("v_mul_f32",vLb,vLb,al))
        if not lazy:
            update(o); return o
        o.append(I(f"v_cmp_gt_f32 vcc, v{vMX}, v{vTH}",'valu',rd=[vMX,vTH],sw=['vcc']))
        o.append(salu(f"s_mov_b32 {sFL[j%3]}, 0"))
        o.append(raw(f"s_cbranch_vccnz L_rareA{j}"))
        o.append(label(f"L_backA{j}"))
        r=[label(f"L_rareA{j}"),nop(3)]
        update(r)
        r.append(salu(f"s_mov_b32 {sFL[j%3]}, 1"))
        r.append(nop(3))
        r.append(raw(f"s_branch L_backA{j}"))
        rare.extend(r)
        return o
    def sm_exp(j,half,scale=None):
        a,b=vBLK[blk[j][0]],vBLK[blk[j][1]]
        src=a if half==0 else b
        dstp=a+8*half
        seq=[]
        n=16
        F=lambda i: valu("v_fma_f32",src+i,src+i,sC,vNM)
        E=lambda i: trans("v_exp_f32",src+i,src+i)
        A=lambda i: valu("v_add_f32",vLa if i%2==0 else vLb,vLa if i%2==0 else vLb,src+i)
        Cv=lambda k: valu("v_cvt_pk_bf16_f32",dstp+k,src+2*k,src+2*k+1)
        for i in range(n+3):
            if i<n: seq.append(F(i))
            if 0<=i-1<n: seq.append(E(i-1))
            if 0<=i-2<n: seq.append(A(i-2))
            if scale is None and i-3>=0 and (i-3)%2==1: seq.append(Cv((i-3)//2))
        return seq
    def resc(j,al=None):
        al=vAL[j%3] if al is None else al
        return [valu("v_mul_f32",vO+i,vO+i,al) for i in range(64)]
    def resc_point(j):
        if j==0: return []
        if not lazy: return resc(j)
        o=[salu(f"s_cmp_lg_u32 {sFL[j%3]}, 0"),raw(f"s_cbranch_scc1 L_rareB{j}"),label(f"L_backB{j}")]
        r=[label(f"L_rareB{j}"),nop(15)]+resc(j)+[nop(3),raw(f"s_branch L_backB{j}")]
        rare.extend(r)
        return o

    def phase(items,fill,head_cost=head,bar=True,after=None,pre=()):
        if bar: P.append(I("s_barrier",'barrier',tag='drain')); stamp()
        n=len(items)
        fill=list(fill); fi=0
        after=after or {}
        tot=sum(f.cost for f in fill)+sum(4*len(r) for r,_ in items)
        per=max(budget,(tot-head_cost)/max(n,1))
        for k in range(min(pf,n)):
            P.extend(items[k][0])
        P.extend(pre)
        acc=0
        def place(limit,g):
            nonlocal fi,acc
            while fi<len(fill) and acc+fill[fi].cost<=limit+1e-9 and after.get(id(fill[fi]),-1)<g:
                P.append(fill[fi]); acc+=fill[fi].cost; fi+=1
        place(head_cost,0)
        base=acc
        for g in range(n):
            P.append(items[g][1])
            if g+pf<n:
                P.extend(items[g+pf][0]); acc+=4*len(items[g+pf][0])
            place(base+per*(g+1),g+1 if g+1<n else 10**9)
        while fi<len(fill): P.append(fill[fi]); fi+=1

    H=[]
    e=H.append
    e(f"; @launch grid=(256,1,1) block=(512,1,1) lds=163840")
    e('.amdgcn_target "amdgcn-amd-amdhsa--gfx950"')
    e(f".text\n.globl {KN}\n.p2align 8\n.type {KN},@function\n{KN}:")
    e("s_load_dwordx4 s[4:7], s[0:1], 0")
    e("s_load_dwordx4 s[8:11], s[0:1], 16")
    if stamps:
        e("s_load_dwordx2 s[12:13], s[0:1], 40")
        e("s_memrealtime s[46:47]\ns_memtime s[48:49]")
    if diag is not None: e("s_memrealtime s[46:47]")
    e("s_cmp_ge_u32 s2, 256\ns_cbranch_scc1 L_end")
    e("s_and_b32 s14, s2, 7\ns_lshr_b32 s15, s2, 4\ns_lshl_b32 s15, s15, 3\ns_add_u32 s14, s14, s15")
    e("s_bfe_u32 s15, s2, 0x10003")
    e("v_lshrrev_b32 v1, 6, v0\nv_and_b32 v2, 63, v0")
    e("s_lshl_b32 s17, s14, 17")
    e("v_readfirstlane_b32 s16, v1")
    e("s_lshl_b32 s18, s14, 16\ns_lshl_b32 s19, s15, 15\ns_add_u32 s18, s18, s19")
    e("s_cmp_ge_u32 s16, 4\ns_cbranch_scc1 L_loader")
    if cprio: e(f"s_setprio {cprio}")
    e(f"s_mov_b32 {sC}, {f2u(C_SCALE):#x}")
    e(f"s_mov_b32 {sTHR}, {f2u(thr/C_SCALE):#x}")
    e("v_and_b32 v3, 31, v2")
    e("v_lshrrev_b32 v4, 5, v2")
    e("v_and_b32 v5, 15, v2")
    e("v_lshlrev_b32 v6, 8, v3")
    for s in range(8):
        e(f"v_or_b32 v7, {2*s}, v4\nv_xor_b32 v7, v7, v5\nv_lshl_add_u32 v{vKA+s}, v7, 4, v6")
    e("v_lshrrev_b32 v7, 2, v5")
    e("v_and_b32 v9, 3, v5")
    e("v_bfe_u32 v10, v2, 4, 1")
    e("v_lshl_add_u32 v11, v4, 2, v7")
    e("v_lshlrev_b32 v11, 8, v11")
    e("v_lshl_add_u32 v11, v10, 5, v11")
    e("v_lshl_add_u32 v11, v9, 3, v11")
    e(f"v_add_u32 v11, {VB}, v11")
    for dt in range(4):
        e(f"v_xor_b32 v12, {dt}, v7\nv_lshl_add_u32 v{vVA+dt}, v12, 6, v11")
    e("s_lshl_b32 s45, s16, 13")
    e(f"v_lshl_add_u32 v{vOA}, v4, 4, v6\nv_add_u32 v{vOA}, s45, v{vOA}")
    e(f"s_add_u32 s45, s45, {QB}")
    for s in range(8):
        e(f"v_add_u32 v{vFR+s}, s45, v{vKA+s}")
    e("s_waitcnt lgkmcnt(0)")
    e("s_add_u32 s32, s10, s18\ns_addc_u32 s33, s11, 0\ns_mov_b32 s34, 32768\ns_mov_b32 s35, 0x20000")
    if stamps: e("s_mov_b32 s36, s12\ns_mov_b32 s37, s13\ns_mov_b32 s38, 0x1000000\ns_mov_b32 s39, 0x20000")
    P.append(I("s_barrier",'barrier')); stamp()
    for s in range(8): P.append(dsr128(vQ+4*s,vFR+s,0))
    phase(qk_job(0),[])
    phase(qk_job(1),sm_max(0)+sm_stat(0)+sm_exp(0,0)+sm_exp(0,1)); free.append(blk[0][1])
    phase(qk_job(2),sm_max(1)+sm_stat(1)+sm_exp(1,0)+sm_exp(1,1)); free.append(blk[1][1])
    for j in range(5):
        phase(pv_job(j),sm_max(j+2)+sm_stat(j+2)+sm_exp(j+2,0)); free.append(blk[j][0])
        phase(qk_job(j+3),resc_point(j+1)+sm_exp(j+2,1)); free.append(blk[j+2][1])
    phase(pv_job(5),sm_max(7)+sm_stat(7)+sm_exp(7,0,scale=1)); free.append(blk[5][0])
    P.extend(resc_point(6))
    a7,b7=vBLK[blk[7][0]],vBLK[blk[7][1]]
    fin=sm_exp(7,1,scale=1)
    fin.append(valu("v_add_f32",vLa,vLa,vLb))
    crosshalf(fin,vLa,vT1,"v_add_f32")
    fin.append(trans("v_rcp_f32",vRL,vLa))
    fin.append(valu("v_mul_f32",vT2,vRL,vAL[7%3]))
    norm=[]
    for half,src in ((0,a7),(1,b7)):
        for k in range(8):
            norm.append(valu("v_mul_f32",src+2*k,src+2*k,vRL)); norm.append(valu("v_mul_f32",src+2*k+1,src+2*k+1,vRL))
            norm.append(valu("v_cvt_pk_bf16_f32",a7+8*half+k,src+2*k,src+2*k+1))
    osc=[valu("v_mul_f32",vO+i,vO+i,vT2) for i in range(64)]
    after={}
    for i,ins in enumerate(osc): after[id(ins)]=4*(i//16)+3+1
    phase(pv_job(6,order_dt_outer=True),fin+norm+osc,after=after)
    tper=4//vsplit
    for piece in range(vsplit):
        ts=range(piece*tper,(piece+1)*tper)
        last = piece==vsplit-1
        if not last:
            phase(pv_job(7,ts=ts),[])
        else:
            items=pv_job(7,ts=ts,order_dt_outer=True)
            ep=[]; after={}
            for dt in range(4):
                o=vO+16*dt
                blkins=[]
                for k in range(8): blkins.append(valu("v_cvt_pk_bf16_f32",o+k,o+2*k,o+2*k+1))
                for pr in range(2):
                    blkins.append(perm32(o+4*pr,o+4*pr+2)); blkins.append(perm32(o+4*pr+1,o+4*pr+3))
                for pr in range(2):
                    blkins.append(store4(o+4*pr,vOA,"s[32:35]",64*dt+32*pr,stflags))
                for ins in blkins: after[id(ins)]=tper*(dt+1)-1+1
                ep+=blkins
            phase(items,ep,after=after,head_cost=0)
    stamp()
    pre=[]
    if lazy:
        pass
    prog=P
    if lazy:
        idx=[i for i,x in enumerate(prog) if x.text=="s_cbranch_vccnz L_rareA7"][0]
        prog.insert(idx-2,valu("v_mov_b32",vAL[7%3],"1.0"))
    if nomem==1 or nomem==3: prog=[wait_lgkm(0) if x.kind=='barrier' else x for x in prog]
    prog=insert_lgkm(prog)
    prog,added=pad_hazards(prog,verbose)
    sys.stderr.write(f"consumer: {len(prog)} instrs, nops added {added}, est cycles {est_cycles(prog)}\n")
    H.append(text(prog))
    if stamps:
        ns=stamp_idx[0]
        e("s_waitcnt vmcnt(0)")
        e(f"s_memtime s[{50+2*ns}:{51+2*ns}]\ns_memrealtime s[{52+2*ns}:{53+2*ns}]\ns_waitcnt lgkmcnt(0)")
        e("s_cmp_lg_u32 s16, 0\ns_cbranch_scc1 L_end")
        e("s_lshl_b32 s45, s2, 8\nv_mov_b32 v7, s45")
        regs=[46,48]+[50+2*i for i in range(ns+2)]
        for i,r in enumerate(regs):
            e(f"v_mov_b32 v8, s{r}\nbuffer_store_dword v8, v7, s[36:39], 0 offen offset:{4*i}\ns_nop 1")
        sys.stderr.write(f"nstamps={len(regs)}\n")
    if diag is not None:
        e("s_waitcnt vmcnt(0)")
        if diag=='end': e("s_memrealtime s[60:61]")
        if diag=='x1':
            e(".p2align 3\n.rept 2048\nv_fma_f32 v10, v11, v12, v13\n.endr")
        elif diag=='x2':
            e("s_mov_b32 s62, 0\n.p2align 3\nL_x2:\n.rept 256\nv_fma_f32 v10, v11, v12, v13\n.endr\ns_add_u32 s62, s62, 1\ns_cmp_lt_u32 s62, 8\ns_cbranch_scc1 L_x2")
        elif diag=='cyc':
            e("s_memtime s[62:63]\ns_waitcnt lgkmcnt(0)\nL_spin:\ns_memtime s[64:65]\ns_waitcnt lgkmcnt(0)\ns_sub_u32 s66, s64, s62\ns_cmp_lt_u32 s66, 20000\ns_cbranch_scc1 L_spin")
        elif diag=='rt':
            e("s_memrealtime s[62:63]\ns_waitcnt lgkmcnt(0)\nL_spin:\ns_memrealtime s[64:65]\ns_waitcnt lgkmcnt(0)\ns_sub_u32 s66, s64, s62\ns_cmp_lt_u32 s66, 1000\ns_cbranch_scc1 L_spin")
        else:
            e(f"s_memrealtime s[62:63]\ns_waitcnt lgkmcnt(0)\ns_sub_u32 s67, s60, s46\ns_mul_i32 s67, s67, {dk}\ns_min_u32 s67, s67, 100000\nL_spin:\ns_memrealtime s[64:65]\ns_waitcnt lgkmcnt(0)\ns_sub_u32 s66, s64, s62\ns_cmp_lt_u32 s66, s67\ns_cbranch_scc1 L_spin")
    e("s_endpgm")
    rp,_=pad_hazards(rare)
    H.append(text(rp))
    e("L_loader:")
    if nomem in (1,2): e("s_endpgm")
    if nomem==3:
        _e=e
        def e(t): _e(t.replace("s_barrier","s_nop 0"))
    if lprio: e(f"s_setprio {lprio}")
    e("s_sub_u32 s16, s16, 4")
    e("v_lshrrev_b32 v3, 4, v2\nv_and_b32 v4, 15, v2")
    e("s_lshl_b32 s44, s16, 2")
    e("v_add_u32 v5, s44, v3")
    e("v_xor_b32 v6, v4, v5\nv_lshlrev_b32 v6, 4, v6\nv_lshl_add_u32 v6, v5, 8, v6")
    e("v_lshlrev_b32 v7, 2, v3\nv_xor_b32 v7, v4, v7\nv_lshlrev_b32 v7, 4, v7\nv_lshl_add_u32 v7, v5, 8, v7")
    e("s_lshl_b32 s44, s16, 10")
    e("s_waitcnt lgkmcnt(0)")
    e("s_add_u32 s28, s4, s18\ns_addc_u32 s29, s5, 0\ns_mov_b32 s30, 32768\ns_mov_b32 s31, 0x20000")
    e("s_add_u32 s20, s6, s17\ns_addc_u32 s21, s7, 0\ns_mov_b32 s22, 131072\ns_mov_b32 s23, 0x20000")
    e("s_add_u32 s24, s8, s17\ns_addc_u32 s25, s9, 0\ns_mov_b32 s26, 131072\ns_mov_b32 s27, 0x20000")
    def issue(n):
        kind,j=order[n]
        srd,vo,base={'Q':("s[28:31]","v6",QB+j*16384),'K':("s[20:23]","v6",KB+(j%4)*16384),'V':("s[24:27]","v7",VB+(j%4)*16384)}[kind]
        for g in range(4):
            e(f"s_add_u32 m0, s44, {base+g*4096}")
            e(f"s_mov_b32 s45, {j*16384+g*4096}")
            e(f"buffer_load_dwordx4 {vo}, {srd}, s45 offen {ldflags} lds")
    issued=0
    for n in range(depth): issue(n); issued+=1
    for n in range(18):
        if n==17:
            for piece in range(vsplit):
                e(f"s_waitcnt vmcnt({4-(piece+1)*tper})\ns_barrier")
            break
        e(f"s_waitcnt vmcnt({4*(issued-n-1)})")
        if n>=1 and not issue_first: e("s_barrier")
        if issued<18:
            kind,j=order[issued]
            if kind in 'KV' and j>=4:
                y=order.index((kind,j-4)); assert y+1<=(n-1 if issue_first else n),(issued,y,n)
            issue(issued); issued+=1
        if n>=1 and issue_first: e("s_barrier")
    e("L_end:\ns_endpgm")
    e(f'.section .rodata,"a"\n.p2align 6\n.amdhsa_kernel {KN}')
    e("  .amdhsa_next_free_vgpr 256\n  .amdhsa_next_free_sgpr 102\n  .amdhsa_accum_offset 256\n  .amdhsa_group_segment_fixed_size 0\n  .amdhsa_kernarg_size 48\n  .amdhsa_user_sgpr_count 2\n  .amdhsa_user_sgpr_kernarg_segment_ptr 1\n  .amdhsa_system_sgpr_workgroup_id_x 1\n.end_amdhsa_kernel")
    return "\n".join(H)+"\n"

if __name__=="__main__":
    name=sys.argv[1]; kw={}
    for a in sys.argv[2:]:
        k,v=a.split("=",1)
        try: v=int(v)
        except:
            try: v=float(v)
            except: pass
        kw[k]=v
    open(name,"w").write(gen(**kw))
```

```python
import sys, math, struct
from asmlib import *

KN="standalone__gqa_softmax__near_ridge_kernel"
C_SCALE = math.log2(math.e)/math.sqrt(128.0)
def f2u(x): return struct.unpack("<I",struct.pack("<f",x))[0]

KSL=16640; VSL=17408
KB=0; VB=4*KSL; FB=VB+4*VSL; SB=FB+2048; STG=4608
LDS_TOTAL=SB+4*STG

def pkmul(d,a,b):
    return I(f"v_pk_mul_f32 {vr(d,2)}, {vr(a,2)}, {vr(b,2)}",'valu',rd=R(a,2)+R(b,2),wr=R(d,2),cost=6)

def gen(depth=3, ldflags="nt", stflags="", stamps=0, pf=6, G=2, lthr=2.0**24, budget=24, fl=4, lprio=0, cprio=0,
        verbose=0, diag=None, dk=1, nomem=0, codepf=1, touch=0, lds=163840, xmap=0, NFR=8, tq=1, lsleep=2,
        cinit=1, forceslow=0, pace=1):
    vKA,vVA0,vVA2,vVH,vFA,vSA=10,11,12,13,14,15
    vNM,vLa,vLb,vMX,vT1,vOA=16,17,18,19,20,21
    vRL=22
    vF=[24,25]; vSG=26; vWA=27; vRA=28; vGK=29; vGV=30; vT2=31
    vQ=32; vFR=64
    vNB=vFR+4*NFR
    vBLK=[vNB+16+16*i for i in range(5)]
    vO=vBLK[4]+16
    assert vO+64<=256, vO
    sC="s40"; sTHR="s41"
    order=[('Q',0),('Q',1),('K',0),('K',1),('K',2)]
    for j in range(5): order+=[('V',j),('K',j+3)]
    order+=[('V',5),('H',0),('H',1)]
    def landed_val(kind,j,t=3):
        n=order.index((kind,j))
        if (kind,j)==('H',1): return 18+t
        return n+1
    cons_seq=[('K',1),('V',0),('V',1),('V',3)]
    cons_val={x:i+1 for i,x in enumerate(cons_seq)}
    need_cons={('K',4):('K',1),('K',6):('V',0),('K',7):('V',1),('H',0):('V',3)}

    rare=[]
    stamp_idx=[0]; dcount=[0]
    def stamp():
        o=[]
        if diag is not None:
            if dcount[0]==diag: o.append(raw("s_memrealtime s[60:61]"))
            dcount[0]+=1
        if stamps:
            i=stamp_idx[0]; stamp_idx[0]+=1
            o.append(raw(f"s_memtime s[{50+2*i}:{51+2*i}]"))
        return o
    chk_n=[0]
    def flag_read():
        r=vF[chk_n[0]%2]
        return I(f"ds_read_b32 v{r}, v{vFA}",'dsr',rd=[vFA],wr=[r])
    def flag_check(val):
        n=chk_n[0]; r=vF[n%2]; chk_n[0]+=1
        if nomem: return stamp()
        o=[I(f"v_cmp_gt_u32 vcc, {val}, v{r}",'valu',rd=[r],sw=['vcc']), raw(f"s_cbranch_vccnz L_spin{n}"), label(f"L_back{n}")]+stamp()
        rare.extend([label(f"L_spin{n}"), raw(f"ds_read_b32 v{r}, v{vFA}"), raw("s_waitcnt lgkmcnt(0)"),
                     raw(f"v_cmp_gt_u32 vcc, {val}, v{r}"), raw(f"s_cbranch_vccnz L_spin{n}"), raw(f"s_branch L_back{n}")])
        return o
    def signal(key):
        if key not in cons_val: return []
        return [valu("v_mov_b32",vSG,str(cons_val[key])), I(f"ds_write_b32 v{vSA}, v{vSG}",'dsw',rd=[vSA,vSG])]

    free=list(range(5)); blk={}
    M=[]; fr=[0]; idx={}
    def next_fr():
        r=vFR+4*(fr[0]%NFR); fr[0]+=1; return r
    def add_qk(j):
        a=free.pop(0); b=free.pop(0); blk[j]=(a,b); slot=j%4
        idx[('QK',j)]=len(M)
        for u in range(2):
            d=vBLK[blk[j][u]]
            for s in range(8):
                f=next_fr()
                c0 = vNB if (cinit and j>0) else "0"
                M.append(dict(mfma=mfma32(d,f,vQ+4*s,c0 if s==0 else d), reads=[dsr128(f,vKA,KB+slot*KSL+u*512+s*32)],
                              need=landed_val('K',j) if (u,s)==(0,0) else None, sig=('K',j) if (u,s)==(1,7) else None))
    def add_pv(j):
        slot=j%4; p=vBLK[blk[j][0]]
        idx[('PV',j)]=len(M)
        va=vVA0 if slot<2 else vVA2
        for n,(t,dt) in enumerate([(t,dt) for t in range(4) for dt in range(4)]):
            f=next_fr()
            rds=[dsrtr(f+2*u,va,(slot%2)*VSL+t*4352+u*512+64*dt) for u in range(2)]
            c="0" if (j==0 and t==0) else vO+16*dt
            M.append(dict(mfma=mfma32(vO+16*dt,f,p+4*t,c),reads=rds,need=landed_val('V',j) if n==0 else None,sig=('V',j) if n==15 else None))
    def add_h(half):
        idx[('H',half)]=len(M)
        for t8 in range(8):
            j=6+t8//4; p=vBLK[blk[j][0]]+4*(t8%4)
            for dl in range(2):
                dt=2*half+dl; f=next_fr()
                rds=[dsrtr(f+2*u,vVH,half*VSL+t8*2176+u*512+64*dl) for u in range(2)]
                need=None
                if half==0 and (t8,dl)==(0,0): need=landed_val('H',0)
                if half==1 and t8%2==0 and dl==0: need=landed_val('H',1,t8//2)
                M.append(dict(mfma=mfma32(vO+16*dt,f,p,vO+16*dt),reads=rds,need=need,sig=None))
    add_qk(0); add_qk(1); free.append(blk[0][1]); add_qk(2); free.append(blk[1][1])
    for j in range(5):
        add_pv(j); free.append(blk[j][0])
        add_qk(j+3); free.append(blk[j+2][1])
    add_pv(5); add_h(0); add_h(1)
    NM=len(M); assert NM==256
    def first_writer_after(block,start):
        regs=frozenset(R(vBLK[block],16))
        for i in range(start,NM):
            if M[i]['mfma'].wr & regs: return i
        return NM
    def first_reader(regs,start):
        regs=frozenset(regs)
        for i in range(start,NM):
            if M[i]['mfma'].rd & regs: return i
        return NM
    F=[]
    def addF(lst,avail,due):
        for x in lst: F.append((x,avail,due))
    def crosshalf(o,reg,tmp,op):
        o.append(valu("v_mov_b32",tmp,reg)); o.append(perm32(reg,tmp)); o.append(valu(op,reg,reg,tmp))
    def max_blk(src,dst,first):
        o=[valu("v_max3_f32",dst,src,src+1,src+2) if first else valu("v_max3_f32",dst,dst,src,src+1)]
        k=3 if first else 2
        while k+1<16: o.append(valu("v_max3_f32",dst,dst,src+k,src+k+1)); k+=2
        if k<16: o.append(valu("v_max_f32",dst,dst,src+k))
        return o
    def exp_blk(src,dstp,pre):
        seq=[]; n=16
        for i in range(n+3):
            if i<n and pre=='fma': seq.append(valu("v_fma_f32",src+i,src+i,sC,vNM))
            if i<n and pre=='add': seq.append(valu("v_add_f32",src+i,src+i,vNM))
            if 0<=i-1<n: seq.append(trans("v_exp_f32",src+i-1,src+i-1))
            if 0<=i-2<n:
                l=vLa if (i-2)%2==0 else vLb; seq.append(valu("v_add_f32",l,l,src+i-2))
            if i-3>=0 and (i-3)%2==1:
                k=(i-3)//2; seq.append(valu("v_cvt_pk_bf16_f32",dstp+k,src+2*k,src+2*k+1))
        return seq
    HZ=2
    a0=vBLK[blk[0][0]]
    st=max_blk(a0,vMX,True); crosshalf(st,vMX,vT1,"v_max_f32")
    if cinit:
        st.append(valu("v_sub_f32",vNM,"0",vMX))
        st+=[valu("v_sub_f32",vNB+i,"0",vMX) for i in range(16)]
        addF(st,8+HZ,16)
    else:
        st+=[valu("v_mul_f32",vNM,sC,vMX),valu("v_sub_f32",vNM,"0",vNM)]
        addF(st,8+HZ,48)
    for j in range(8):
        q0=idx[('QK',j)]
        a,b=vBLK[blk[j][0]],vBLK[blk[j][1]]
        pre = ('add' if j==0 else None) if cinit else 'fma'
        dueA=first_reader(R(a,8),q0+16)
        dueB=min(first_reader(R(a+8,8),q0+16), first_writer_after(blk[j][1],q0+16))
        addF(exp_blk(a,a,pre),q0+8+HZ,dueA)
        addF(exp_blk(b,a+8,pre),q0+16+HZ,dueB)
    h1=idx[('H',1)]
    fin=[valu("v_add_f32",vLa,vLa,vLb)]
    crosshalf(fin,vLa,vT1,"v_add_f32")
    fin.append(I(f"v_cmp_nge_f32 vcc, {sTHR}, v{vLa}",'valu',rd=[vLa],sw=['vcc'],sr=[sTHR]))
    fin.append(trans("v_rcp_f32",vRL,vLa))
    if not nomem: fin.append(raw("s_cbranch_vccnz L_slow" if not forceslow else "s_branch L_slow"))
    fin.append(valu("v_mov_b32",vRL+1,vRL))
    addF(fin,0,h1+4)
    vE=[vBLK[blk[6][1]],vBLK[blk[7][1]]]
    def ep_scale(dt,pk=False):
        o=vO+16*dt
        if pk: return [pkmul(o+2*k,o+2*k,vRL) for k in range(8)]
        return [valu("v_mul_f32",o+k,o+k,vRL) for k in range(16)]
    def ep_cvt(dt):
        o=vO+16*dt; return [valu("v_cvt_pk_bf16_f32",o+k,o+2*k,o+2*k+1) for k in range(8)]
    def ep_wr(dt):
        o=vO+16*dt; return [dsw64(vWA,o+2*k,(dt%2)*64+16*k) for k in range(4)]
    def ep_rd(half): return [dsr128(vE[half]+4*i,vRA,i*8*144) for i in range(4)]
    def ep_st(half):
        r=[]
        for i in range(4):
            so="0" if i<2 else "s45"
            r.append(I(f"buffer_store_dwordx4 {vr(vE[half]+4*i,4)}, v{vOA}, s[32:35], {so} offen offset:{(i%2)*2048+half*128} {stflags}".rstrip(),'st4',rd=[vOA]+R(vE[half]+4*i,4),cost=16))
        return r
    addF(ep_scale(0)+ep_cvt(0)+ep_wr(0)+ep_scale(1)+ep_cvt(1)+ep_wr(1)+ep_rd(0),h1+HZ,NM)
    addF(ep_st(0),h1+11,NM)
    P=[]
    P.append(flag_read()); P+=flag_check(landed_val('Q',1))
    for s in range(8): P.append(dsr128(vQ+4*s,vT1,32*s))
    P+=[valu("v_mov_b32",vLa,"0"),valu("v_mov_b32",vLb,"0")]
    if cinit:
        P+=[valu("v_mov_b32",vRL,sC),valu("v_mov_b32",vRL+1,sC)]
        t=vBLK[4]
        for r in range(32):
            a=t+2*(r%8)
            P+=[valu("v_lshlrev_b32",a,"16",vQ+r),valu("v_and_b32",a+1,"0xffff0000",vQ+r)]
            if r>=1:
                b=t+2*((r-1)%8); P.append(pkmul(b,b,vRL))
            if r>=2:
                b=t+2*((r-2)%8); P.append(valu("v_cvt_pk_bf16_f32",vQ+r-2,b,b+1))
        b=t+2*(31%8); P.append(pkmul(b,b,vRL))
        for r in (30,31):
            b=t+2*(r%8); P.append(valu("v_cvt_pk_bf16_f32",vQ+r,b,b+1))
    fi=0; cost=0
    def issue_reads(i):
        nonlocal cost
        m=M[i]
        if m['need'] is not None:
            if not m.get('fr'): P.append(flag_read()); cost+=4
            P.extend(flag_check(m['need'])); cost+=8
        P.extend(m['reads']); cost+=4*len(m['reads'])
        if m['sig'] is not None:
            s=signal(m['sig']); P.extend(s); cost+=4*len(s)
    def rg(i):
        g=i-pf
        if i>=h1+4*tq: g=max(g, h1+4*((i-h1)//4)-1)
        return max(g,-1)
    by_gap={}
    for i in range(NM): by_gap.setdefault(rg(i),[]).append(i)
    needs=[i for i in range(NM) if M[i]['need'] is not None]
    fr_gap={}
    for a,b in zip([None]+needs[:-1],needs):
        g=rg(b)-fl
        if a is not None: g=max(g,rg(a))
        if g<rg(b) and g>=0: fr_gap[g]=b
    for i in by_gap[-1]: issue_reads(i)
    carry=0
    for g in range(NM):
        while fi<len(F) and any(F[k][2]<=g for k in range(fi,min(fi+200,len(F)))):
            assert F[fi][1]<=g+HZ, ("filler forced before avail",F[fi][0].text,F[fi][1],g)
            P.append(F[fi][0]); fi+=1
        cost=0
        if G>1 and g%G==0:
            extra=set()
            for k in range(1,G):
                if g+k<NM and M[g+k]['need'] is None and rg(g+k)<g-1:
                    for r in M[g+k]['reads']: extra|=r.wr
                else: break
            P.append(I("",'touch',rd=extra,cost=0))
        P.append(M[g]['mfma'])
        if (g+1)%G==0: cost+=4
        for i in by_gap.get(g,[]): issue_reads(i)
        if g in fr_gap:
            P.append(flag_read()); M[fr_gap[g]]['fr']=True; cost+=4
        lim=budget+carry
        while fi<len(F) and F[fi][1]<=g+1 and cost+F[fi][0].cost<=lim:
            P.append(F[fi][0]); cost+=F[fi][0].cost; fi+=1
        carry=max(-8,min(4,lim-cost))
    while fi<len(F): P.append(F[fi][0]); fi+=1
    hi=ep_scale(2,True)+ep_cvt(2)+ep_wr(2)+ep_scale(3,True)+ep_cvt(3)+ep_wr(3)+ep_rd(1)+ep_st(1)
    P+=hi
    P+=stamp()
    prog=insert_lgkm(P)
    prog=[x for x in prog if x.kind!='touch']
    prog,added=pad_hazards(prog,verbose)
    nw=sum(1 for x in prog if x.kind=='wait')
    sys.stderr.write(f"consumer: {len(prog)} instrs, waits {nw}, nops added {added}, est cycles {est_cycles(prog)}\n")

    S=[]
    sa=vBLK[0]; kf=vBLK[1]
    S+= [label("L_slow"), raw("s_waitcnt vmcnt(0) lgkmcnt(0)"), nop(15), nop(15)]
    S+= [valu("v_mov_b32",vMX,"0xff800000"), raw("s_mov_b32 s46, 0"), label("L_s1")]
    def kload():
        o=[raw(f"buffer_load_dwordx4 {vr(kf+4*s,4)}, v{vGK}, s[20:23], s46 offen offset:{32*s}") for s in range(8)]
        o.append(raw("s_waitcnt vmcnt(0)"))
        return o
    S+=kload()
    S+=[mfma32(sa,kf+4*s,vQ+4*s,"0" if s==0 else sa) for s in range(8)]
    S+=max_blk(sa,vMX,False)
    S+=[raw("s_add_u32 s46, s46, 8192"),raw("s_cmp_lt_u32 s46, 131072"),raw("s_cbranch_scc1 L_s1")]
    crosshalf(S,vMX,vT1,"v_max_f32")
    if cinit: S+=[valu("v_sub_f32",vNM,"0",vMX)]
    else: S+=[valu("v_mul_f32",vNM,sC,vMX),valu("v_sub_f32",vNM,"0",vNM)]
    S+=[valu("v_mov_b32",vLa,"0"),valu("v_mov_b32",vLb,"0")]+[valu("v_mov_b32",vO+i,"0") for i in range(64)]
    S+=[raw("s_mov_b32 s46, 0"), label("L_s2")]
    S+=kload()
    S+=[mfma32(sa,kf+4*s,vQ+4*s,"0" if s==0 else sa) for s in range(8)]
    S+=exp_blk(sa,sa,'add' if cinit else 'fma')
    for t in range(2):
        for r in range(4):
            S+=[raw(f"s_add_u32 m0, s47, {r*1088}"),raw(f"s_add_u32 s48, s46, {t*4096+r*256}"),
                raw(f"buffer_load_dwordx4 v{vGV}, s[24:27], s48 offen lds")]
        S.append(raw("s_waitcnt vmcnt(0)"))
        for dt in range(4):
            S+=[raw(f"ds_read_b64_tr_b16 {vr(kf+4*dt+2*u,2)}, v{vT2} offset:{u*512+64*dt}") for u in range(2)]
        S.append(raw("s_waitcnt lgkmcnt(0)"))
        S+=[mfma32(vO+16*dt,kf+4*dt,sa+4*t,vO+16*dt) for dt in range(4)]
    S+=[nop(15),raw("s_add_u32 s46, s46, 8192"),raw("s_cmp_lt_u32 s46, 131072"),raw("s_cbranch_scc1 L_s2")]
    S.append(valu("v_add_f32",vLa,vLa,vLb)); crosshalf(S,vLa,vT1,"v_add_f32")
    S+=[trans("v_rcp_f32",vRL,vLa),nop(1)]
    for half in range(2):
        for dt in (2*half,2*half+1): S+=ep_scale(dt)+ep_cvt(dt)+ep_wr(dt)
        S+=ep_rd(half)+[raw("s_waitcnt lgkmcnt(0)")]+ep_st(half)
    S.append(raw("s_endpgm"))
    S,_=pad_hazards(S)

    H=[]; e=H.append
    e(f"; @launch grid=(256,1,1) block=(512,1,1) lds={lds}")
    e('.amdgcn_target "amdgcn-amd-amdhsa--gfx950"')
    e(f".text\n.globl {KN}\n.p2align 8\n.type {KN},@function\n{KN}:")
    e("s_load_dwordx4 s[4:7], s[0:1], 0")
    e("s_load_dwordx4 s[8:11], s[0:1], 16")
    if stamps:
        e("s_load_dwordx2 s[12:13], s[0:1], 40")
        e("s_memrealtime s[96:97]\ns_memtime s[98:99]")
    if diag is not None: e("s_memrealtime s[96:97]")
    e("s_cmp_ge_u32 s2, 256\ns_cbranch_scc1 L_end")
    if xmap==0: e("s_and_b32 s14, s2, 7\ns_lshr_b32 s15, s2, 4\ns_lshl_b32 s15, s15, 3\ns_add_u32 s14, s14, s15")
    else: e("s_and_b32 s14, s2, 7\ns_lshr_b32 s15, s2, 4\ns_lshl_b32 s14, s14, 4\ns_add_u32 s14, s14, s15")
    e("s_bfe_u32 s15, s2, 0x10003")
    e("v_lshrrev_b32 v1, 6, v0\nv_and_b32 v2, 63, v0")
    e("s_lshl_b32 s17, s14, 17")
    e("v_readfirstlane_b32 s16, v1")
    e("s_lshl_b32 s18, s14, 16\ns_lshl_b32 s19, s15, 15\ns_add_u32 s18, s18, s19")
    e(f"v_lshlrev_b32 v{vSA}, 2, v0\nv_add_u32 v{vSA}, {FB}, v{vSA}\nv_mov_b32 v{vSG}, 0\nds_write_b32 v{vSA}, v{vSG}")
    e(f"v_and_b32 v3, 3, v2\nv_lshlrev_b32 v3, 8, v3\nv_lshl_add_u32 v{vFA}, v2, 2, v3")
    e("s_getpc_b64 s[36:37]\nL_pc:")
    e("s_cmp_ge_u32 s16, 4\ns_cbranch_scc1 L_consumer")
    if nomem==1: e("s_waitcnt lgkmcnt(0)\ns_barrier\ns_endpgm")
    if lprio: e(f"s_setprio {lprio}")
    e("s_add_u32 s36, s36, L_table-L_pc\ns_addc_u32 s37, s37, 0\ns_mov_b32 s38, 128\ns_mov_b32 s39, 0x20000")
    e(f"v_add_u32 v{vFA}, {FB+1024}, v{vFA}")
    e("v_lshrrev_b32 v3, 4, v2\nv_and_b32 v4, 15, v2\nv_lshlrev_b32 v4, 4, v4")
    e("s_lshl_b32 s44, s16, 8")
    e("v_add_u32 v4, s44, v4")
    e("v_lshl_add_u32 v6, v3, 12, v4")
    e("v_lshl_add_u32 v7, v3, 10, v4")
    e("s_mul_i32 s42, s16, 1040\ns_mul_i32 s43, s16, 1088")
    e(f"s_add_u32 s44, s44, {FB}")
    e("s_waitcnt lgkmcnt(0)")
    ldiag = diag if isinstance(diag,str) and diag.startswith('l') else None
    lst=[0]
    def lstamp(name):
        if ldiag==name: e("s_memrealtime s[60:61]")
        if stamps:
            i=lst[0]; lst[0]+=1
            e(f"s_memtime s[{50+2*i}:{51+2*i}]")
    lstamp('l0')
    e("s_add_u32 s28, s4, s18\ns_addc_u32 s29, s5, 0\ns_mov_b32 s30, 32768\ns_mov_b32 s31, 0x20000")
    e("s_add_u32 s20, s6, s17\ns_addc_u32 s21, s7, 0\ns_mov_b32 s22, 131072\ns_mov_b32 s23, 0x20000")
    e("s_add_u32 s24, s8, s17\ns_addc_u32 s25, s9, 0\ns_mov_b32 s26, 131072\ns_mov_b32 s27, 0x20000")
    lw_n=[0]
    def lwait(key):
        n=lw_n[0]; lw_n[0]+=1
        if nomem: return
        e(f"s_branch L_lx{n}\nL_lw{n}:\ns_sleep {lsleep}\nL_lx{n}:\nds_read_b32 v8, v{vFA}\ns_waitcnt lgkmcnt(0)\nv_cmp_gt_u32 vcc, {cons_val[key]}, v8\ns_cbranch_vccnz L_lw{n}")
    cnt=[]
    def lflag(val):
        e(f"s_mov_b32 m0, s44\ns_mov_b32 s45, {4*val}\nbuffer_load_dword v{vSG}, s[36:39], s45 offen lds")
    def issue(n):
        kind,j=order[n]; c=0
        if (kind,j) in need_cons: lwait(need_cons[(kind,j)])
        for g in range(4):
            if kind=='V':
                e(f"s_add_u32 m0, s43, {VB+(j%4)*VSL+g*4352}\ns_mov_b32 s45, {j*16384+g*4096}")
                e(f"buffer_load_dwordx4 v7, s[24:27], s45 offen {ldflags} lds")
            elif kind=='H':
                e(f"s_add_u32 m0, s43, {VB+(2+j)*VSL+g*4352}\ns_mov_b32 s45, {6*16384+g*8192+j*128}")
                e(f"buffer_load_dwordx4 v9, s[24:27], s45 offen {ldflags} lds")
            else:
                base = KB+(j%4)*KSL if kind=='K' else VB+(2+j)*VSL
                srd = "s[20:23]" if kind=='K' else "s[28:31]"
                e(f"s_add_u32 m0, s42, {base+g*4160}\ns_mov_b32 s45, {j*16384+g*1024}")
                e(f"buffer_load_dwordx4 v6, {srd}, s45 offen {ldflags} lds")
            c+=1
            if (kind,j)==('H',1): lflag(18+g); c+=1
        if n>=1 and (kind,j)!=('H',1): lflag(n+1); c+=1
        cnt.append(c)
    issued=0
    for n in range(depth):
        issue(n); issued+=1
        if n==0:
            lstamp('l1')
    lstamp('l2')
    e("s_barrier")
    e("s_lshr_b32 s46, s16, 1\ns_lshl_b32 s46, s46, 12\ns_and_b32 s47, s16, 1\ns_lshl_b32 s47, s47, 9\ns_add_u32 s46, s46, s47")
    e("v_and_b32 v9, 7, v2\nv_lshlrev_b32 v9, 4, v9\nv_lshl_add_u32 v9, v3, 10, v9\nv_bfe_u32 v5, v2, 3, 1\nv_lshl_add_u32 v9, v5, 8, v9\nv_add_u32 v9, s46, v9")
    if ldiag=='l3': e(f"s_waitcnt vmcnt({sum(cnt)-1})\ns_memrealtime s[60:61]")
    for n in range(18):
        if pace or stamps or ldiag:
            e(f"s_waitcnt vmcnt({sum(cnt[n+1:])})")
        lstamp(f'l{10+n}')
        if issued<18: issue(issued); issued+=1
        elif not (stamps or ldiag): break
    if stamps:
        while lst[0]<22: lstamp('x')
        e("s_memrealtime s[94:95]\ns_waitcnt lgkmcnt(0)")
        e("s_mov_b32 s36, s12\ns_mov_b32 s37, s13\ns_mov_b32 s38, 0x1000000\ns_mov_b32 s39, 0x20000")
        e("s_cmp_lg_u32 s16, 0\ns_cbranch_scc1 L_end")
        e("s_lshl_b32 s45, s2, 8\ns_add_u32 s45, s45, 65536\nv_mov_b32 v7, s45")
        for i,r in enumerate([96,98]+[50+2*i for i in range(23)]):
            e(f"v_mov_b32 v8, s{r}\nbuffer_store_dword v8, v7, s[36:39], 0 offen offset:{4*i}\ns_nop 1")
    if ldiag:
        e(f"s_memrealtime s[62:63]\ns_waitcnt lgkmcnt(0)\ns_sub_u32 s67, s60, s96\ns_add_u32 s67, s67, 500\ns_min_u32 s67, s67, 100000\nL_lspin:\ns_memrealtime s[64:65]\ns_waitcnt lgkmcnt(0)\ns_sub_u32 s66, s64, s62\ns_cmp_lt_u32 s66, s67\ns_cbranch_scc1 L_lspin")
    e("s_waitcnt vmcnt(0)")
    e("L_end:\ns_endpgm")
    e(".p2align 7\nL_table:\n"+"\n".join(f".long {i}" for i in range(32)))
    e("L_consumer:")
    if cprio: e(f"s_setprio {cprio}")
    e("s_sub_u32 s16, s16, 4")
    if codepf:
        e("s_add_u32 s36, s36, L_main-L_pc\ns_addc_u32 s37, s37, 0\ns_mov_b32 s38, L_codeend-L_main\ns_mov_b32 s39, 0x20000")
        e("s_lshr_b32 s45, s2, 3\ns_lshl_b32 s45, s45, 2\ns_add_u32 s45, s45, s16\ns_lshl_b32 s45, s45, 7")
        e("v_mov_b32 v9, 0")
        e("buffer_load_dword v39, v9, s[36:39], s45 offen")
    if diag=='c0': e("s_memrealtime s[60:61]")
    e(f"v_add_u32 v{vFA}, {FB}, v{vFA}")
    e(f"s_mov_b32 {sC}, {f2u(C_SCALE):#x}\ns_mov_b32 {sTHR}, {f2u(lthr):#x}")
    e("v_lshrrev_b32 v4, 5, v2\nv_and_b32 v5, 15, v2\nv_bfe_u32 v6, v2, 4, 1")
    e(f"v_mul_u32_u24 v{vKA}, 1040, v5\nv_lshl_add_u32 v{vKA}, v6, 8, v{vKA}\nv_lshl_add_u32 v{vKA}, v4, 4, v{vKA}")
    e("v_lshrrev_b32 v7, 2, v5\nv_and_b32 v8, 3, v5")
    e("v_lshlrev_b32 v3, 8, v4\nv_lshl_add_u32 v3, v6, 5, v3\nv_lshl_add_u32 v3, v8, 3, v3")
    e(f"v_mul_u32_u24 v{vT2}, 1088, v7\nv_add_u32 v{vT2}, v{vT2}, v3")
    e(f"v_add_u32 v{vVA0}, {VB}, v{vT2}\nv_add_u32 v{vVA2}, {VB+2*VSL}, v{vT2}")
    e(f"v_lshrrev_b32 v8, 1, v7\nv_mul_u32_u24 v{vVH}, 1088, v8\nv_and_b32 v8, 1, v7\nv_lshl_add_u32 v{vVH}, v8, 7, v{vVH}\nv_add_u32 v{vVH}, v{vVH}, v3\nv_add_u32 v{vVH}, {VB+2*VSL}, v{vVH}")
    e(f"s_lshr_b32 s45, s16, 1\ns_mul_i32 s45, s45, {VSL}\ns_and_b32 s19, s16, 1\ns_lshl_b32 s19, s19, 9\ns_add_u32 s45, s45, s19\ns_add_u32 s45, s45, {VB+2*VSL}")
    e(f"v_add_u32 v{vT1}, s45, v{vKA}")
    e(f"s_mul_i32 s47, s16, {STG}\ns_add_u32 s47, s47, {SB}")
    e(f"v_add_u32 v{vT2}, s47, v{vT2}")
    e(f"v_and_b32 v3, 31, v2\nv_mul_u32_u24 v{vWA}, 144, v3\nv_lshl_add_u32 v{vWA}, v4, 3, v{vWA}\nv_add_u32 v{vWA}, s47, v{vWA}")
    e(f"v_lshlrev_b32 v{vGK}, 8, v3\nv_lshl_add_u32 v{vGK}, v4, 4, v{vGK}")
    e(f"v_lshrrev_b32 v3, 4, v2\nv_lshlrev_b32 v{vGV}, 10, v3\nv_lshl_add_u32 v{vGV}, v5, 4, v{vGV}")
    e(f"v_lshrrev_b32 v3, 3, v2\nv_and_b32 v8, 7, v2\nv_mul_u32_u24 v{vRA}, 144, v3\nv_lshl_add_u32 v{vRA}, v8, 4, v{vRA}\nv_add_u32 v{vRA}, s47, v{vRA}")
    e(f"s_lshl_b32 s45, s16, 13\nv_lshlrev_b32 v{vOA}, 8, v3\nv_lshl_add_u32 v{vOA}, v8, 4, v{vOA}\nv_add_u32 v{vOA}, s45, v{vOA}")
    e("s_mov_b32 s45, 4096")
    e("s_waitcnt lgkmcnt(0)\ns_barrier")
    e("s_add_u32 s32, s10, s18\ns_addc_u32 s33, s11, 0\ns_mov_b32 s34, 32768\ns_mov_b32 s35, 0x20000")
    e("s_add_u32 s20, s6, s17\ns_addc_u32 s21, s7, 0\ns_mov_b32 s22, 131072\ns_mov_b32 s23, 0x20000")
    e("s_add_u32 s24, s8, s17\ns_addc_u32 s25, s9, 0\ns_mov_b32 s26, 131072\ns_mov_b32 s27, 0x20000")
    if touch:
        e("v_mov_b32 v9, 0")
        e("s_cmp_lg_u32 s16, 0\ns_cbranch_scc1 L_notouch")
        if touch&1: e("buffer_load_dword v38, v9, s[24:27], 0 offen nt")
        if touch&2: e("buffer_load_dword v37, v9, s[32:35], 0 offen nt")
        e("L_notouch:")
    if codepf or touch: e("s_waitcnt vmcnt(0)")
    e(".p2align 3\nL_main:")
    H.append(text(prog))
    if stamps:
        ns=stamp_idx[0]
        e("s_waitcnt vmcnt(0)")
        e(f"s_memtime s[{50+2*ns}:{51+2*ns}]\ns_memrealtime s[{52+2*ns}:{53+2*ns}]\ns_waitcnt lgkmcnt(0)")
        e("s_mov_b32 s36, s12\ns_mov_b32 s37, s13\ns_mov_b32 s38, 0x1000000\ns_mov_b32 s39, 0x20000")
        e("s_cmp_lg_u32 s16, 0\ns_cbranch_scc1 L_end2")
        e("s_lshl_b32 s45, s2, 8\nv_mov_b32 v7, s45")
        regs=[96,98]+[50+2*i for i in range(ns+2)]
        assert regs[-1]<=94
        for i,r in enumerate(regs):
            e(f"v_mov_b32 v8, s{r}\nbuffer_store_dword v8, v7, s[36:39], 0 offen offset:{4*i}\ns_nop 1")
        sys.stderr.write(f"nstamps={len(regs)}\n")
        e("L_end2:")
    if diag is not None and not ldiag:
        e("s_waitcnt vmcnt(0)")
        if diag=='end': e("s_memrealtime s[60:61]")
        e(f"s_memrealtime s[62:63]\ns_waitcnt lgkmcnt(0)\ns_sub_u32 s67, s60, s96\ns_mul_i32 s67, s67, {dk}\ns_min_u32 s67, s67, 100000\nL_spin:\ns_memrealtime s[64:65]\ns_waitcnt lgkmcnt(0)\ns_sub_u32 s66, s64, s62\ns_cmp_lt_u32 s66, s67\ns_cbranch_scc1 L_spin")
    e("s_endpgm")
    H.append(text(rare))
    e("L_codeend:")
    H.append(text(S))
    e(f'.section .rodata,"a"\n.p2align 6\n.amdhsa_kernel {KN}')
    e("  .amdhsa_next_free_vgpr 256\n  .amdhsa_next_free_sgpr 102\n  .amdhsa_accum_offset 256\n  .amdhsa_group_segment_fixed_size 0\n  .amdhsa_kernarg_size 48\n  .amdhsa_user_sgpr_count 2\n  .amdhsa_user_sgpr_kernarg_segment_ptr 1\n  .amdhsa_system_sgpr_workgroup_id_x 1\n.end_amdhsa_kernel")
    return "\n".join(H)+"\n"

if __name__=="__main__":
    name=sys.argv[1]; kw={}
    for a in sys.argv[2:]:
        k,v=a.split("=",1)
        try: v=int(v)
        except:
            try: v=float(v)
            except: pass
        kw[k]=v
    open(name,"w").write(gen(**kw))
```

```python
import sys, math, struct
from asmlib import *

KN="standalone__gqa_softmax__near_ridge_kernel"
C_SCALE = math.log2(math.e)/math.sqrt(128.0)
def f2u(x): return struct.unpack("<I",struct.pack("<f",x))[0]

KSL=16640; VSL=17408
KB=0; VB=4*KSL; FB=VB+4*VSL; SB=FB+2048; STG=4608
LDS_TOTAL=SB+4*STG

def pkmul(d,a,b):
    return I(f"v_pk_mul_f32 {vr(d,2)}, {vr(a,2)}, {vr(b,2)}",'valu',rd=R(a,2)+R(b,2),wr=R(d,2),cost=6)

def gen(depth=3, ldflags="nt", stflags="", stamps=0, pf=6, G=2, lthr=2.0**24, budget=24, fl=4, lprio=0, cprio=0,
        verbose=0, diag=None, dk=1, nomem=0, codepf=1, touch=0, lds=163840, xmap=0, NFR=8, tq=1, lsleep=2,
        cinit=1, forceslow=0, pace=1):
    vKA,vVA0,vVA2,vVH,vFA,vSA=10,11,12,13,14,15
    vNM,vLa,vLb,vMX,vT1,vOA=16,17,18,19,20,21
    vRL=22
    vF=[24,25]; vSG=26; vWA=27; vRA=28; vGK=29; vGV=30; vT2=31
    vQ=32; vFR=64
    vNB=vFR+4*NFR
    vBLK=[vNB+16+16*i for i in range(5)]
    vO=vBLK[4]+16
    assert vO+64<=256, vO
    sC="s40"; sTHR="s41"
    order=[('Q',0),('Q',1),('K',0),('K',1),('K',2)]
    for j in range(5): order+=[('V',j),('K',j+3)]
    order+=[('V',5),('H',0),('H',1)]
    def landed_val(kind,j,t=3):
        n=order.index((kind,j))
        if (kind,j)==('H',1): return 18+t
        return n+1
    cons_seq=[('K',1),('V',0),('V',1),('V',3)]
    cons_val={x:i+1 for i,x in enumerate(cons_seq)}
    need_cons={('K',4):('K',1),('K',6):('V',0),('K',7):('V',1),('H',0):('V',3)}

    rare=[]
    stamp_idx=[0]; dcount=[0]
    def stamp():
        o=[]
        if diag is not None:
            if dcount[0]==diag: o.append(raw("s_memrealtime s[60:61]"))
            dcount[0]+=1
        if stamps:
            i=stamp_idx[0]; stamp_idx[0]+=1
            o.append(raw(f"s_memtime s[{50+2*i}:{51+2*i}]"))
        return o
    chk_n=[0]
    def flag_read():
        r=vF[chk_n[0]%2]
        return I(f"ds_read_b32 v{r}, v{vFA}",'dsr',rd=[vFA],wr=[r])
    def flag_check(val):
        n=chk_n[0]; r=vF[n%2]; chk_n[0]+=1
        if nomem: return stamp()
        o=[I(f"v_cmp_gt_u32 vcc, {val}, v{r}",'valu',rd=[r],sw=['vcc']), raw(f"s_cbranch_vccnz L_spin{n}"), label(f"L_back{n}")]+stamp()
        rare.extend([label(f"L_spin{n}"), raw(f"ds_read_b32 v{r}, v{vFA}"), raw("s_waitcnt lgkmcnt(0)"),
                     raw(f"v_cmp_gt_u32 vcc, {val}, v{r}"), raw(f"s_cbranch_vccnz L_spin{n}"), raw(f"s_branch L_back{n}")])
        return o
    def signal(key):
        if key not in cons_val: return []
        return [valu("v_mov_b32",vSG,str(cons_val[key])), I(f"ds_write_b32 v{vSA}, v{vSG}",'dsw',rd=[vSA,vSG])]

    free=list(range(5)); blk={}
    M=[]; fr=[0]; idx={}
    def next_fr():
        r=vFR+4*(fr[0]%NFR); fr[0]+=1; return r
    def add_qk(j):
        a=free.pop(0); b=free.pop(0); blk[j]=(a,b); slot=j%4
        idx[('QK',j)]=len(M)
        for u in range(2):
            d=vBLK[blk[j][u]]
            for s in range(8):
                f=next_fr()
                c0 = vNB if (cinit and j>0) else "0"
                M.append(dict(mfma=mfma32(d,f,vQ+4*s,c0 if s==0 else d), reads=[dsr128(f,vKA,KB+slot*KSL+u*512+s*32)],
                              need=landed_val('K',j) if (u,s)==(0,0) else None, sig=('K',j) if (u,s)==(1,7) else None))
    def add_pv(j):
        slot=j%4; p=vBLK[blk[j][0]]
        idx[('PV',j)]=len(M)
        va=vVA0 if slot<2 else vVA2
        for n,(t,dt) in enumerate([(t,dt) for t in range(4) for dt in range(4)]):
            f=next_fr()
            rds=[dsrtr(f+2*u,va,(slot%2)*VSL+t*4352+u*512+64*dt) for u in range(2)]
            c="0" if (j==0 and t==0) else vO+16*dt
            M.append(dict(mfma=mfma32(vO+16*dt,f,p+4*t,c),reads=rds,need=landed_val('V',j) if n==0 else None,sig=('V',j) if n==15 else None))
    def add_h(half):
        idx[('H',half)]=len(M)
        for t8 in range(8):
            j=6+t8//4; p=vBLK[blk[j][0]]+4*(t8%4)
            for dl in range(2):
                dt=2*half+dl; f=next_fr()
                rds=[dsrtr(f+2*u,vVH,half*VSL+t8*2176+u*512+64*dl) for u in range(2)]
                need=None
                if half==0 and (t8,dl)==(0,0): need=landed_val('H',0)
                if half==1 and t8%2==0 and dl==0: need=landed_val('H',1,t8//2)
                M.append(dict(mfma=mfma32(vO+16*dt,f,p,vO+16*dt),reads=rds,need=need,sig=None))
    add_qk(0); add_qk(1); free.append(blk[0][1]); add_qk(2); free.append(blk[1][1])
    for j in range(5):
        add_pv(j); free.append(blk[j][0])
        add_qk(j+3); free.append(blk[j+2][1])
    add_pv(5); add_h(0); add_h(1)
    NM=len(M); assert NM==256
    def first_writer_after(block,start):
        regs=frozenset(R(vBLK[block],16))
        for i in range(start,NM):
            if M[i]['mfma'].wr & regs: return i
        return NM
    def first_reader(regs,start):
        regs=frozenset(regs)
        for i in range(start,NM):
            if M[i]['mfma'].rd & regs: return i
        return NM
    F=[]
    def addF(lst,avail,due):
        for x in lst: F.append((x,avail,due))
    def crosshalf(o,reg,tmp,op):
        o.append(valu("v_mov_b32",tmp,reg)); o.append(perm32(reg,tmp)); o.append(valu(op,reg,reg,tmp))
    def max_blk(src,dst,first):
        o=[valu("v_max3_f32",dst,src,src+1,src+2) if first else valu("v_max3_f32",dst,dst,src,src+1)]
        k=3 if first else 2
        while k+1<16: o.append(valu("v_max3_f32",dst,dst,src+k,src+k+1)); k+=2
        if k<16: o.append(valu("v_max_f32",dst,dst,src+k))
        return o
    def exp_blk(src,dstp,pre):
        seq=[]; n=16
        for i in range(n+3):
            if i<n and pre=='fma': seq.append(valu("v_fma_f32",src+i,src+i,sC,vNM))
            if i<n and pre=='add': seq.append(valu("v_add_f32",src+i,src+i,vNM))
            if 0<=i-1<n: seq.append(trans("v_exp_f32",src+i-1,src+i-1))
            if 0<=i-2<n:
                l=vLa if (i-2)%2==0 else vLb; seq.append(valu("v_add_f32",l,l,src+i-2))
            if i-3>=0 and (i-3)%2==1:
                k=(i-3)//2; seq.append(valu("v_cvt_pk_bf16_f32",dstp+k,src+2*k,src+2*k+1))
        return seq
    HZ=2
    a0=vBLK[blk[0][0]]
    st=max_blk(a0,vMX,True); crosshalf(st,vMX,vT1,"v_max_f32")
    if cinit:
        st.append(valu("v_sub_f32",vNM,"0",vMX))
        st+=[valu("v_sub_f32",vNB+i,"0",vMX) for i in range(16)]
        addF(st,8+HZ,16)
    else:
        st+=[valu("v_mul_f32",vNM,sC,vMX),valu("v_sub_f32",vNM,"0",vNM)]
        addF(st,8+HZ,48)
    for j in range(8):
        q0=idx[('QK',j)]
        a,b=vBLK[blk[j][0]],vBLK[blk[j][1]]
        pre = ('add' if j==0 else None) if cinit else 'fma'
        dueA=first_reader(R(a,8),q0+16)
        dueB=min(first_reader(R(a+8,8),q0+16), first_writer_after(blk[j][1],q0+16))
        addF(exp_blk(a,a,pre),q0+8+HZ,dueA)
        addF(exp_blk(b,a+8,pre),q0+16+HZ,dueB)
    h1=idx[('H',1)]
    fin=[valu("v_add_f32",vLa,vLa,vLb)]
    crosshalf(fin,vLa,vT1,"v_add_f32")
    fin.append(trans("v_rcp_f32",vRL,vLa))
    br="" if nomem else ("\n    s_cbranch_vccnz L_slow" if not forceslow else "\n    s_branch L_slow")
    fin.append(I(f"v_cmp_nge_f32 vcc, {sTHR}, v{vLa}"+br,'valu',rd=[vLa],sw=['vcc'],sr=[sTHR],cost=8))
    fin.append(valu("v_mov_b32",vRL+1,vRL))
    addF(fin,0,h1+4)
    vE=[vBLK[blk[6][1]],vBLK[blk[7][1]]]
    def ep_scale(dt,pk=False):
        o=vO+16*dt
        if pk: return [pkmul(o+2*k,o+2*k,vRL) for k in range(8)]
        return [valu("v_mul_f32",o+k,o+k,vRL) for k in range(16)]
    def ep_cvt(dt):
        o=vO+16*dt; return [valu("v_cvt_pk_bf16_f32",o+k,o+2*k,o+2*k+1) for k in range(8)]
    def ep_wr(dt):
        o=vO+16*dt; return [dsw64(vWA,o+2*k,(dt%2)*64+16*k) for k in range(4)]
    def ep_rd(half): return [dsr128(vE[half]+4*i,vRA,i*8*144) for i in range(4)]
    def ep_st(half):
        r=[]
        for i in range(4):
            so="0" if i<2 else "s45"
            r.append(I(f"buffer_store_dwordx4 {vr(vE[half]+4*i,4)}, v{vOA}, s[32:35], {so} offen offset:{(i%2)*2048+half*128} {stflags}".rstrip(),'st4',rd=[vOA]+R(vE[half]+4*i,4),cost=16))
        return r
    addF(ep_scale(0)+ep_cvt(0)+ep_wr(0)+ep_scale(1)+ep_cvt(1)+ep_wr(1)+ep_rd(0),h1+HZ,NM)
    addF(ep_st(0),h1+11,NM)
    P=[]
    P.append(flag_read()); P+=flag_check(landed_val('Q',1))
    for s in range(8): P.append(dsr128(vQ+4*s,vT1,32*s))
    P+=[valu("v_mov_b32",vLa,"0"),valu("v_mov_b32",vLb,"0")]
    if cinit:
        P+=[valu("v_mov_b32",vRL,sC),valu("v_mov_b32",vRL+1,sC)]
        t=vBLK[4]
        for r in range(32):
            a=t+2*(r%8)
            P+=[valu("v_lshlrev_b32",a,"16",vQ+r),valu("v_and_b32",a+1,"0xffff0000",vQ+r)]
            if r>=1:
                b=t+2*((r-1)%8); P.append(pkmul(b,b,vRL))
            if r>=2:
                b=t+2*((r-2)%8); P.append(valu("v_cvt_pk_bf16_f32",vQ+r-2,b,b+1))
        b=t+2*(31%8); P.append(pkmul(b,b,vRL))
        for r in (30,31):
            b=t+2*(r%8); P.append(valu("v_cvt_pk_bf16_f32",vQ+r,b,b+1))
    fi=0; cost=0
    def issue_reads(i):
        nonlocal cost
        m=M[i]
        if m['need'] is not None:
            if not m.get('fr'): P.append(flag_read()); cost+=4
            P.extend(flag_check(m['need'])); cost+=8
        P.extend(m['reads']); cost+=4*len(m['reads'])
        if m['sig'] is not None:
            s=signal(m['sig']); P.extend(s); cost+=4*len(s)
    def rg(i):
        g=i-pf
        if i>=h1+4*tq: g=max(g, h1+4*((i-h1)//4)-1)
        return max(g,-1)
    by_gap={}
    for i in range(NM): by_gap.setdefault(rg(i),[]).append(i)
    needs=[i for i in range(NM) if M[i]['need'] is not None]
    fr_gap={}
    for a,b in zip([None]+needs[:-1],needs):
        g=rg(b)-fl
        if a is not None: g=max(g,rg(a))
        if g<rg(b) and g>=0: fr_gap[g]=b
    for i in by_gap[-1]: issue_reads(i)
    carry=0
    for g in range(NM):
        while fi<len(F) and any(F[k][2]<=g for k in range(fi,min(fi+200,len(F)))):
            assert F[fi][1]<=g+HZ, ("filler forced before avail",F[fi][0].text,F[fi][1],g)
            P.append(F[fi][0]); fi+=1
        cost=0
        if G>1 and g%G==0:
            extra=set()
            for k in range(1,G):
                if g+k<NM and M[g+k]['need'] is None and rg(g+k)<g-1:
                    for r in M[g+k]['reads']: extra|=r.wr
                else: break
            P.append(I("",'touch',rd=extra,cost=0))
        P.append(M[g]['mfma'])
        if (g+1)%G==0: cost+=4
        for i in by_gap.get(g,[]): issue_reads(i)
        if g in fr_gap:
            P.append(flag_read()); M[fr_gap[g]]['fr']=True; cost+=4
        lim=budget+carry
        while fi<len(F) and F[fi][1]<=g+1 and cost+F[fi][0].cost<=lim:
            P.append(F[fi][0]); cost+=F[fi][0].cost; fi+=1
        carry=max(-8,min(4,lim-cost))
    while fi<len(F): P.append(F[fi][0]); fi+=1
    hi=ep_scale(2,True)+ep_cvt(2)+ep_wr(2)+ep_scale(3,True)+ep_cvt(3)+ep_wr(3)+ep_rd(1)+ep_st(1)
    P+=hi
    P+=stamp()
    prog=insert_lgkm(P)
    prog=[x for x in prog if x.kind!='touch']
    prog,added=pad_hazards(prog,verbose)
    nw=sum(1 for x in prog if x.kind=='wait')
    sys.stderr.write(f"consumer: {len(prog)} instrs, waits {nw}, nops added {added}, est cycles {est_cycles(prog)}\n")

    S=[]
    sa=vBLK[0]; kf=vBLK[1]
    S+= [label("L_slow"), raw("s_waitcnt vmcnt(0) lgkmcnt(0)"), nop(15), nop(15)]
    S+= [valu("v_mov_b32",vMX,"0xff800000"), raw("s_mov_b32 s46, 0"), label("L_s1")]
    def kload():
        o=[raw(f"buffer_load_dwordx4 {vr(kf+4*s,4)}, v{vGK}, s[20:23], s46 offen offset:{32*s}") for s in range(8)]
        o.append(raw("s_waitcnt vmcnt(0)"))
        return o
    S+=kload()
    S+=[mfma32(sa,kf+4*s,vQ+4*s,"0" if s==0 else sa) for s in range(8)]
    S+=max_blk(sa,vMX,False)
    S+=[raw("s_add_u32 s46, s46, 8192"),raw("s_cmp_lt_u32 s46, 131072"),raw("s_cbranch_scc1 L_s1")]
    crosshalf(S,vMX,vT1,"v_max_f32")
    if cinit: S+=[valu("v_sub_f32",vNM,"0",vMX)]
    else: S+=[valu("v_mul_f32",vNM,sC,vMX),valu("v_sub_f32",vNM,"0",vNM)]
    S+=[valu("v_mov_b32",vLa,"0"),valu("v_mov_b32",vLb,"0")]+[valu("v_mov_b32",vO+i,"0") for i in range(64)]
    S+=[raw("s_mov_b32 s46, 0"), label("L_s2")]
    S+=kload()
    S+=[mfma32(sa,kf+4*s,vQ+4*s,"0" if s==0 else sa) for s in range(8)]
    S+=exp_blk(sa,sa,'add' if cinit else 'fma')
    for t in range(2):
        for r in range(4):
            S+=[raw(f"s_add_u32 m0, s47, {r*1088}"),raw(f"s_add_u32 s48, s46, {t*4096+r*256}"),
                raw(f"buffer_load_dwordx4 v{vGV}, s[24:27], s48 offen lds")]
        S.append(raw("s_waitcnt vmcnt(0)"))
        for dt in range(4):
            S+=[raw(f"ds_read_b64_tr_b16 {vr(kf+4*dt+2*u,2)}, v{vT2} offset:{u*512+64*dt}") for u in range(2)]
        S.append(raw("s_waitcnt lgkmcnt(0)"))
        S+=[mfma32(vO+16*dt,kf+4*dt,sa+4*t,vO+16*dt) for dt in range(4)]
    S+=[nop(15),raw("s_add_u32 s46, s46, 8192"),raw("s_cmp_lt_u32 s46, 131072"),raw("s_cbranch_scc1 L_s2")]
    S.append(valu("v_add_f32",vLa,vLa,vLb)); crosshalf(S,vLa,vT1,"v_add_f32")
    S+=[trans("v_rcp_f32",vRL,vLa),nop(1)]
    for half in range(2):
        for dt in (2*half,2*half+1): S+=ep_scale(dt)+ep_cvt(dt)+ep_wr(dt)
        S+=ep_rd(half)+[raw("s_waitcnt lgkmcnt(0)")]+ep_st(half)
    S.append(raw("s_endpgm"))
    S,_=pad_hazards(S)

    H=[]; e=H.append
    e(f"; @launch grid=(256,1,1) block=(512,1,1) lds={lds}")
    e('.amdgcn_target "amdgcn-amd-amdhsa--gfx950"')
    e(f".text\n.globl {KN}\n.p2align 8\n.type {KN},@function\n{KN}:")
    e("s_load_dwordx4 s[4:7], s[0:1], 0")
    e("s_load_dwordx4 s[8:11], s[0:1], 16")
    if stamps:
        e("s_load_dwordx2 s[12:13], s[0:1], 40")
        e("s_memrealtime s[96:97]\ns_memtime s[98:99]")
    if diag is not None: e("s_memrealtime s[96:97]")
    e("s_cmp_ge_u32 s2, 256\ns_cbranch_scc1 L_end")
    if xmap==0: e("s_and_b32 s14, s2, 7\ns_lshr_b32 s15, s2, 4\ns_lshl_b32 s15, s15, 3\ns_add_u32 s14, s14, s15")
    else: e("s_and_b32 s14, s2, 7\ns_lshr_b32 s15, s2, 4\ns_lshl_b32 s14, s14, 4\ns_add_u32 s14, s14, s15")
    e("s_bfe_u32 s15, s2, 0x10003")
    e("v_lshrrev_b32 v1, 6, v0\nv_and_b32 v2, 63, v0")
    e("s_lshl_b32 s17, s14, 17")
    e("v_readfirstlane_b32 s16, v1")
    e("s_lshl_b32 s18, s14, 16\ns_lshl_b32 s19, s15, 15\ns_add_u32 s18, s18, s19")
    e(f"v_lshlrev_b32 v{vSA}, 2, v0\nv_add_u32 v{vSA}, {FB}, v{vSA}\nv_mov_b32 v{vSG}, 0\nds_write_b32 v{vSA}, v{vSG}")
    e(f"v_and_b32 v3, 3, v2\nv_lshlrev_b32 v3, 8, v3\nv_lshl_add_u32 v{vFA}, v2, 2, v3")
    e("s_getpc_b64 s[36:37]\nL_pc:")
    e("s_cmp_ge_u32 s16, 4\ns_cbranch_scc1 L_consumer")
    if nomem==1: e("s_waitcnt lgkmcnt(0)\ns_barrier\ns_endpgm")
    if lprio: e(f"s_setprio {lprio}")
    e("s_add_u32 s36, s36, L_table-L_pc\ns_addc_u32 s37, s37, 0\ns_mov_b32 s38, 128\ns_mov_b32 s39, 0x20000")
    e(f"v_add_u32 v{vFA}, {FB+1024}, v{vFA}")
    e("v_lshrrev_b32 v3, 4, v2\nv_and_b32 v4, 15, v2\nv_lshlrev_b32 v4, 4, v4")
    e("s_lshl_b32 s44, s16, 8")
    e("v_add_u32 v4, s44, v4")
    e("v_lshl_add_u32 v6, v3, 12, v4")
    e("v_lshl_add_u32 v7, v3, 10, v4")
    e("s_mul_i32 s42, s16, 1040\ns_mul_i32 s43, s16, 1088")
    e(f"s_add_u32 s44, s44, {FB}")
    e("s_waitcnt lgkmcnt(0)")
    ldiag = diag if isinstance(diag,str) and diag.startswith('l') else None
    lst=[0]
    def lstamp(name):
        if ldiag==name: e("s_memrealtime s[60:61]")
        if stamps:
            i=lst[0]; lst[0]+=1
            e(f"s_memtime s[{50+2*i}:{51+2*i}]")
    lstamp('l0')
    e("s_add_u32 s28, s4, s18\ns_addc_u32 s29, s5, 0\ns_mov_b32 s30, 32768\ns_mov_b32 s31, 0x20000")
    e("s_add_u32 s20, s6, s17\ns_addc_u32 s21, s7, 0\ns_mov_b32 s22, 131072\ns_mov_b32 s23, 0x20000")
    e("s_add_u32 s24, s8, s17\ns_addc_u32 s25, s9, 0\ns_mov_b32 s26, 131072\ns_mov_b32 s27, 0x20000")
    lw_n=[0]
    def lwait(key):
        n=lw_n[0]; lw_n[0]+=1
        if nomem: return
        e(f"s_branch L_lx{n}\nL_lw{n}:\ns_sleep {lsleep}\nL_lx{n}:\nds_read_b32 v8, v{vFA}\ns_waitcnt lgkmcnt(0)\nv_cmp_gt_u32 vcc, {cons_val[key]}, v8\ns_cbranch_vccnz L_lw{n}")
    cnt=[]
    def lflag(val):
        e(f"s_mov_b32 m0, s44\ns_mov_b32 s45, {4*val}\nbuffer_load_dword v{vSG}, s[36:39], s45 offen lds")
    def issue(n):
        kind,j=order[n]; c=0
        if (kind,j) in need_cons: lwait(need_cons[(kind,j)])
        for g in range(4):
            if kind=='V':
                e(f"s_add_u32 m0, s43, {VB+(j%4)*VSL+g*4352}\ns_mov_b32 s45, {j*16384+g*4096}")
                e(f"buffer_load_dwordx4 v7, s[24:27], s45 offen {ldflags} lds")
            elif kind=='H':
                e(f"s_add_u32 m0, s43, {VB+(2+j)*VSL+g*4352}\ns_mov_b32 s45, {6*16384+g*8192+j*128}")
                e(f"buffer_load_dwordx4 v9, s[24:27], s45 offen {ldflags} lds")
            else:
                base = KB+(j%4)*KSL if kind=='K' else VB+(2+j)*VSL
                srd = "s[20:23]" if kind=='K' else "s[28:31]"
                e(f"s_add_u32 m0, s42, {base+g*4160}\ns_mov_b32 s45, {j*16384+g*1024}")
                e(f"buffer_load_dwordx4 v6, {srd}, s45 offen {ldflags} lds")
            c+=1
            if (kind,j)==('H',1): lflag(18+g); c+=1
        if n>=1 and (kind,j)!=('H',1): lflag(n+1); c+=1
        cnt.append(c)
    issued=0
    for n in range(depth):
        issue(n); issued+=1
        if n==0:
            lstamp('l1')
    lstamp('l2')
    e("s_barrier")
    e("s_lshr_b32 s46, s16, 1\ns_lshl_b32 s46, s46, 12\ns_and_b32 s47, s16, 1\ns_lshl_b32 s47, s47, 9\ns_add_u32 s46, s46, s47")
    e("v_and_b32 v9, 7, v2\nv_lshlrev_b32 v9, 4, v9\nv_lshl_add_u32 v9, v3, 10, v9\nv_bfe_u32 v5, v2, 3, 1\nv_lshl_add_u32 v9, v5, 8, v9\nv_add_u32 v9, s46, v9")
    if ldiag=='l3': e(f"s_waitcnt vmcnt({sum(cnt)-1})\ns_memrealtime s[60:61]")
    for n in range(18):
        if pace or stamps or ldiag:
            e(f"s_waitcnt vmcnt({sum(cnt[n+1:])})")
        lstamp(f'l{10+n}')
        if issued<18: issue(issued); issued+=1
        elif not (stamps or ldiag): break
    if stamps:
        while lst[0]<22: lstamp('x')
        e("s_memrealtime s[94:95]\ns_waitcnt lgkmcnt(0)")
        e("s_mov_b32 s36, s12\ns_mov_b32 s37, s13\ns_mov_b32 s38, 0x1000000\ns_mov_b32 s39, 0x20000")
        e("s_cmp_lg_u32 s16, 0\ns_cbranch_scc1 L_end")
        e("s_lshl_b32 s45, s2, 8\ns_add_u32 s45, s45, 65536\nv_mov_b32 v7, s45")
        for i,r in enumerate([96,98]+[50+2*i for i in range(23)]):
            e(f"v_mov_b32 v8, s{r}\nbuffer_store_dword v8, v7, s[36:39], 0 offen offset:{4*i}\ns_nop 1")
    if ldiag:
        e(f"s_memrealtime s[62:63]\ns_waitcnt lgkmcnt(0)\ns_sub_u32 s67, s60, s96\ns_mul_i32 s67, s67, {dk}\ns_add_u32 s67, s67, 500\ns_min_u32 s67, s67, 100000\nL_lspin:\ns_memrealtime s[64:65]\ns_waitcnt lgkmcnt(0)\ns_sub_u32 s66, s64, s62\ns_cmp_lt_u32 s66, s67\ns_cbranch_scc1 L_lspin")
    e("s_waitcnt vmcnt(0)")
    e("L_end:\ns_endpgm")
    e(".p2align 7\nL_table:\n"+"\n".join(f".long {i}" for i in range(32)))
    e("L_consumer:")
    if cprio: e(f"s_setprio {cprio}")
    e("s_sub_u32 s16, s16, 4")
    if codepf:
        e("s_add_u32 s36, s36, L_main-L_pc\ns_addc_u32 s37, s37, 0\ns_mov_b32 s38, L_codeend-L_main\ns_mov_b32 s39, 0x20000")
        e("s_lshr_b32 s45, s2, 3\ns_lshl_b32 s45, s45, 2\ns_add_u32 s45, s45, s16\ns_lshl_b32 s45, s45, 7")
        e("v_mov_b32 v9, 0")
        e("buffer_load_dword v39, v9, s[36:39], s45 offen")
    if diag=='c0': e("s_memrealtime s[60:61]")
    e(f"v_add_u32 v{vFA}, {FB}, v{vFA}")
    e(f"s_mov_b32 {sC}, {f2u(C_SCALE):#x}\ns_mov_b32 {sTHR}, {f2u(lthr):#x}")
    e("v_lshrrev_b32 v4, 5, v2\nv_and_b32 v5, 15, v2\nv_bfe_u32 v6, v2, 4, 1")
    e(f"v_mul_u32_u24 v{vKA}, 1040, v5\nv_lshl_add_u32 v{vKA}, v6, 8, v{vKA}\nv_lshl_add_u32 v{vKA}, v4, 4, v{vKA}")
    e("v_lshrrev_b32 v7, 2, v5\nv_and_b32 v8, 3, v5")
    e("v_lshlrev_b32 v3, 8, v4\nv_lshl_add_u32 v3, v6, 5, v3\nv_lshl_add_u32 v3, v8, 3, v3")
    e(f"v_mul_u32_u24 v{vT2}, 1088, v7\nv_add_u32 v{vT2}, v{vT2}, v3")
    e(f"v_add_u32 v{vVA0}, {VB}, v{vT2}\nv_add_u32 v{vVA2}, {VB+2*VSL}, v{vT2}")
    e(f"v_lshrrev_b32 v8, 1, v7\nv_mul_u32_u24 v{vVH}, 1088, v8\nv_and_b32 v8, 1, v7\nv_lshl_add_u32 v{vVH}, v8, 7, v{vVH}\nv_add_u32 v{vVH}, v{vVH}, v3\nv_add_u32 v{vVH}, {VB+2*VSL}, v{vVH}")
    e(f"s_lshr_b32 s45, s16, 1\ns_mul_i32 s45, s45, {VSL}\ns_and_b32 s19, s16, 1\ns_lshl_b32 s19, s19, 9\ns_add_u32 s45, s45, s19\ns_add_u32 s45, s45, {VB+2*VSL}")
    e(f"v_add_u32 v{vT1}, s45, v{vKA}")
    e(f"s_mul_i32 s47, s16, {STG}\ns_add_u32 s47, s47, {SB}")
    e(f"v_add_u32 v{vT2}, s47, v{vT2}")
    e(f"v_and_b32 v3, 31, v2\nv_mul_u32_u24 v{vWA}, 144, v3\nv_lshl_add_u32 v{vWA}, v4, 3, v{vWA}\nv_add_u32 v{vWA}, s47, v{vWA}")
    e(f"v_lshlrev_b32 v{vGK}, 8, v3\nv_lshl_add_u32 v{vGK}, v4, 4, v{vGK}")
    e(f"v_lshrrev_b32 v3, 4, v2\nv_lshlrev_b32 v{vGV}, 10, v3\nv_lshl_add_u32 v{vGV}, v5, 4, v{vGV}")
    e(f"v_lshrrev_b32 v3, 3, v2\nv_and_b32 v8, 7, v2\nv_mul_u32_u24 v{vRA}, 144, v3\nv_lshl_add_u32 v{vRA}, v8, 4, v{vRA}\nv_add_u32 v{vRA}, s47, v{vRA}")
    e(f"s_lshl_b32 s45, s16, 13\nv_lshlrev_b32 v{vOA}, 8, v3\nv_lshl_add_u32 v{vOA}, v8, 4, v{vOA}\nv_add_u32 v{vOA}, s45, v{vOA}")
    e("s_mov_b32 s45, 4096")
    e("s_waitcnt lgkmcnt(0)\ns_barrier")
    e("s_add_u32 s32, s10, s18\ns_addc_u32 s33, s11, 0\ns_mov_b32 s34, 32768\ns_mov_b32 s35, 0x20000")
    e("s_add_u32 s20, s6, s17\ns_addc_u32 s21, s7, 0\ns_mov_b32 s22, 131072\ns_mov_b32 s23, 0x20000")
    e("s_add_u32 s24, s8, s17\ns_addc_u32 s25, s9, 0\ns_mov_b32 s26, 131072\ns_mov_b32 s27, 0x20000")
    if touch:
        e("v_mov_b32 v9, 0")
        e("s_cmp_lg_u32 s16, 0\ns_cbranch_scc1 L_notouch")
        if touch&1: e("buffer_load_dword v38, v9, s[24:27], 0 offen nt")
        if touch&2: e("buffer_load_dword v37, v9, s[32:35], 0 offen nt")
        e("L_notouch:")
    if codepf or touch: e("s_waitcnt vmcnt(0)")
    e(".p2align 3\nL_main:")
    H.append(text(prog))
    if stamps:
        ns=stamp_idx[0]
        e("s_waitcnt vmcnt(0)")
        e(f"s_memtime s[{50+2*ns}:{51+2*ns}]\ns_memrealtime s[{52+2*ns}:{53+2*ns}]\ns_waitcnt lgkmcnt(0)")
        e("s_mov_b32 s36, s12\ns_mov_b32 s37, s13\ns_mov_b32 s38, 0x1000000\ns_mov_b32 s39, 0x20000")
        e("s_cmp_lg_u32 s16, 0\ns_cbranch_scc1 L_end2")
        e("s_lshl_b32 s45, s2, 8\nv_mov_b32 v7, s45")
        regs=[96,98]+[50+2*i for i in range(ns+2)]
        assert regs[-1]<=94
        for i,r in enumerate(regs):
            e(f"v_mov_b32 v8, s{r}\nbuffer_store_dword v8, v7, s[36:39], 0 offen offset:{4*i}\ns_nop 1")
        sys.stderr.write(f"nstamps={len(regs)}\n")
        e("L_end2:")
    if diag is not None and not ldiag:
        e("s_waitcnt vmcnt(0)")
        if diag=='end': e("s_memrealtime s[60:61]")
        e(f"s_memrealtime s[62:63]\ns_waitcnt lgkmcnt(0)\ns_sub_u32 s67, s60, s96\ns_mul_i32 s67, s67, {dk}\ns_min_u32 s67, s67, 100000\nL_spin:\ns_memrealtime s[64:65]\ns_waitcnt lgkmcnt(0)\ns_sub_u32 s66, s64, s62\ns_cmp_lt_u32 s66, s67\ns_cbranch_scc1 L_spin")
    e("s_endpgm")
    H.append(text(rare))
    e("L_codeend:")
    H.append(text(S))
    e(f'.section .rodata,"a"\n.p2align 6\n.amdhsa_kernel {KN}')
    e("  .amdhsa_next_free_vgpr 256\n  .amdhsa_next_free_sgpr 102\n  .amdhsa_accum_offset 256\n  .amdhsa_group_segment_fixed_size 0\n  .amdhsa_kernarg_size 48\n  .amdhsa_user_sgpr_count 2\n  .amdhsa_user_sgpr_kernarg_segment_ptr 1\n  .amdhsa_system_sgpr_workgroup_id_x 1\n.end_amdhsa_kernel")
    return "\n".join(H)+"\n"

if __name__=="__main__":
    name=sys.argv[1]; kw={}
    for a in sys.argv[2:]:
        k,v=a.split("=",1)
        try: v=int(v)
        except:
            try: v=float(v)
            except: pass
        kw[k]=v
    open(name,"w").write(gen(**kw))
```

```python
import sys, math, struct
from asmlib import *

KN="standalone__gqa_softmax__near_ridge_kernel"
C_SCALE = math.log2(math.e)/math.sqrt(128.0)
def f2u(x): return struct.unpack("<I",struct.pack("<f",x))[0]

KSL=16640; VSL=17408
KB=0; VB=4*KSL; FB=VB+4*VSL; SB=FB+2048; STG=4608
LDS_TOTAL=SB+4*STG

def pkmul(d,a,b):
    return I(f"v_pk_mul_f32 {vr(d,2)}, {vr(a,2)}, {vr(b,2)}",'valu',rd=R(a,2)+R(b,2),wr=R(d,2),cost=6)

def gen(depth=3, ldflags="nt", stflags="", stamps=0, pf=6, G=2, lthr=2.0**24, budget=24, fl=4, lprio=0, cprio=0,
        verbose=0, diag=None, dk=1, nomem=0, codepf=1, touch=0, lds=163840, xmap=0, NFR=8, tq=1, lsleep=2,
        cinit=1, forceslow=0, pace=1, dry=0):
    vKA,vVA0,vVA2,vVH,vFA,vSA=10,11,12,13,14,15
    vNM,vLa,vLb,vMX,vT1,vOA=16,17,18,19,20,21
    vRL=22
    vF=[24,25]; vSG=26; vWA=27; vRA=28; vGK=29; vGV=30; vT2=31
    vQ=32; vFR=64
    vNB=vFR+4*NFR
    vBLK=[vNB+16+16*i for i in range(5)]
    vO=vBLK[4]+16
    assert vO+64<=256, vO
    sC="s40"; sTHR="s41"
    order=[('Q',0),('Q',1),('K',0),('K',1),('K',2)]
    for j in range(5): order+=[('V',j),('K',j+3)]
    order+=[('V',5),('H',0),('H',1)]
    def landed_val(kind,j,t=3):
        n=order.index((kind,j))
        if (kind,j)==('H',1): return 18+t
        return n+1
    cons_seq=[('K',1),('V',0),('V',1),('V',3)]
    cons_val={x:i+1 for i,x in enumerate(cons_seq)}
    need_cons={('K',4):('K',1),('K',6):('V',0),('K',7):('V',1),('H',0):('V',3)}

    rare=[]
    stamp_idx=[0]; dcount=[0]
    def stamp():
        o=[]
        if diag is not None:
            if dcount[0]==diag: o.append(raw("s_memrealtime s[60:61]"))
            dcount[0]+=1
        if stamps:
            i=stamp_idx[0]; stamp_idx[0]+=1
            o.append(raw(f"s_memtime s[{50+2*i}:{51+2*i}]"))
        return o
    chk_n=[0]
    def flag_read():
        r=vF[chk_n[0]%2]
        return I(f"ds_read_b32 v{r}, v{vFA}",'dsr',rd=[vFA],wr=[r])
    def flag_check(val):
        n=chk_n[0]; r=vF[n%2]; chk_n[0]+=1
        if nomem: return stamp()
        o=[I(f"v_cmp_gt_u32 vcc, {val}, v{r}",'valu',rd=[r],sw=['vcc']), raw(f"s_cbranch_vccnz L_spin{n}"), label(f"L_back{n}")]+stamp()
        rare.extend([label(f"L_spin{n}"), raw(f"ds_read_b32 v{r}, v{vFA}"), raw("s_waitcnt lgkmcnt(0)"),
                     raw(f"v_cmp_gt_u32 vcc, {val}, v{r}"), raw(f"s_cbranch_vccnz L_spin{n}"), raw(f"s_cbranch_execnz L_back{n}" if dry else f"s_branch L_back{n}")])
        return o
    def signal(key):
        if key not in cons_val: return []
        return [valu("v_mov_b32",vSG,str(cons_val[key])), I(f"ds_write_b32 v{vSA}, v{vSG}",'dsw',rd=[vSA,vSG])]

    free=list(range(5)); blk={}
    M=[]; fr=[0]; idx={}
    def next_fr():
        r=vFR+4*(fr[0]%NFR); fr[0]+=1; return r
    def add_qk(j):
        a=free.pop(0); b=free.pop(0); blk[j]=(a,b); slot=j%4
        idx[('QK',j)]=len(M)
        for u in range(2):
            d=vBLK[blk[j][u]]
            for s in range(8):
                f=next_fr()
                c0 = vNB if (cinit and j>0) else "0"
                M.append(dict(mfma=mfma32(d,f,vQ+4*s,c0 if s==0 else d), reads=[dsr128(f,vKA,KB+slot*KSL+u*512+s*32)],
                              need=landed_val('K',j) if (u,s)==(0,0) else None, sig=('K',j) if (u,s)==(1,7) else None))
    def add_pv(j):
        slot=j%4; p=vBLK[blk[j][0]]
        idx[('PV',j)]=len(M)
        va=vVA0 if slot<2 else vVA2
        for n,(t,dt) in enumerate([(t,dt) for t in range(4) for dt in range(4)]):
            f=next_fr()
            rds=[dsrtr(f+2*u,va,(slot%2)*VSL+t*4352+u*512+64*dt) for u in range(2)]
            c="0" if (j==0 and t==0) else vO+16*dt
            M.append(dict(mfma=mfma32(vO+16*dt,f,p+4*t,c),reads=rds,need=landed_val('V',j) if n==0 else None,sig=('V',j) if n==15 else None))
    def add_h(half):
        idx[('H',half)]=len(M)
        for t8 in range(8):
            j=6+t8//4; p=vBLK[blk[j][0]]+4*(t8%4)
            for dl in range(2):
                dt=2*half+dl; f=next_fr()
                rds=[dsrtr(f+2*u,vVH,half*VSL+t8*2176+u*512+64*dl) for u in range(2)]
                need=None
                if half==0 and (t8,dl)==(0,0): need=landed_val('H',0)
                if half==1 and t8%2==0 and dl==0: need=landed_val('H',1,t8//2)
                M.append(dict(mfma=mfma32(vO+16*dt,f,p,vO+16*dt),reads=rds,need=need,sig=None))
    add_qk(0); add_qk(1); free.append(blk[0][1]); add_qk(2); free.append(blk[1][1])
    for j in range(5):
        add_pv(j); free.append(blk[j][0])
        add_qk(j+3); free.append(blk[j+2][1])
    add_pv(5); add_h(0); add_h(1)
    NM=len(M); assert NM==256
    def first_writer_after(block,start):
        regs=frozenset(R(vBLK[block],16))
        for i in range(start,NM):
            if M[i]['mfma'].wr & regs: return i
        return NM
    def first_reader(regs,start):
        regs=frozenset(regs)
        for i in range(start,NM):
            if M[i]['mfma'].rd & regs: return i
        return NM
    F=[]
    def addF(lst,avail,due):
        for x in lst: F.append((x,avail,due))
    def crosshalf(o,reg,tmp,op):
        o.append(valu("v_mov_b32",tmp,reg)); o.append(perm32(reg,tmp)); o.append(valu(op,reg,reg,tmp))
    def max_blk(src,dst,first):
        o=[valu("v_max3_f32",dst,src,src+1,src+2) if first else valu("v_max3_f32",dst,dst,src,src+1)]
        k=3 if first else 2
        while k+1<16: o.append(valu("v_max3_f32",dst,dst,src+k,src+k+1)); k+=2
        if k<16: o.append(valu("v_max_f32",dst,dst,src+k))
        return o
    def exp_blk(src,dstp,pre):
        seq=[]; n=16
        for i in range(n+3):
            if i<n and pre=='fma': seq.append(valu("v_fma_f32",src+i,src+i,sC,vNM))
            if i<n and pre=='add': seq.append(valu("v_add_f32",src+i,src+i,vNM))
            if 0<=i-1<n: seq.append(trans("v_exp_f32",src+i-1,src+i-1))
            if 0<=i-2<n:
                l=vLa if (i-2)%2==0 else vLb; seq.append(valu("v_add_f32",l,l,src+i-2))
            if i-3>=0 and (i-3)%2==1:
                k=(i-3)//2; seq.append(valu("v_cvt_pk_bf16_f32",dstp+k,src+2*k,src+2*k+1))
        return seq
    HZ=2
    a0=vBLK[blk[0][0]]
    st=max_blk(a0,vMX,True); crosshalf(st,vMX,vT1,"v_max_f32")
    if cinit:
        st.append(valu("v_sub_f32",vNM,"0",vMX))
        st+=[valu("v_sub_f32",vNB+i,"0",vMX) for i in range(16)]
        addF(st,8+HZ,16)
    else:
        st+=[valu("v_mul_f32",vNM,sC,vMX),valu("v_sub_f32",vNM,"0",vNM)]
        addF(st,8+HZ,48)
    for j in range(8):
        q0=idx[('QK',j)]
        a,b=vBLK[blk[j][0]],vBLK[blk[j][1]]
        pre = ('add' if j==0 else None) if cinit else 'fma'
        dueA=first_reader(R(a,8),q0+16)
        dueB=min(first_reader(R(a+8,8),q0+16), first_writer_after(blk[j][1],q0+16))
        addF(exp_blk(a,a,pre),q0+8+HZ,dueA)
        addF(exp_blk(b,a+8,pre),q0+16+HZ,dueB)
    h1=idx[('H',1)]
    fin=[valu("v_add_f32",vLa,vLa,vLb)]
    crosshalf(fin,vLa,vT1,"v_add_f32")
    fin.append(trans("v_rcp_f32",vRL,vLa))
    br="" if nomem else ("\n    s_cbranch_vccnz L_slow" if not forceslow else "\n    s_branch L_slow")
    fin.append(I(f"v_cmp_nge_f32 vcc, {sTHR}, v{vLa}"+br,'valu',rd=[vLa],sw=['vcc'],sr=[sTHR],cost=8))
    fin.append(valu("v_mov_b32",vRL+1,vRL))
    addF(fin,0,h1+4)
    vE=[vBLK[blk[6][1]],vBLK[blk[7][1]]]
    def ep_scale(dt,pk=False):
        o=vO+16*dt
        if pk: return [pkmul(o+2*k,o+2*k,vRL) for k in range(8)]
        return [valu("v_mul_f32",o+k,o+k,vRL) for k in range(16)]
    def ep_cvt(dt):
        o=vO+16*dt; return [valu("v_cvt_pk_bf16_f32",o+k,o+2*k,o+2*k+1) for k in range(8)]
    def ep_wr(dt):
        o=vO+16*dt; return [dsw64(vWA,o+2*k,(dt%2)*64+16*k) for k in range(4)]
    def ep_rd(half): return [dsr128(vE[half]+4*i,vRA,i*8*144) for i in range(4)]
    def ep_st(half):
        r=[]
        for i in range(4):
            so="0" if i<2 else "s45"
            r.append(I(f"buffer_store_dwordx4 {vr(vE[half]+4*i,4)}, v{vOA}, s[32:35], {so} offen offset:{(i%2)*2048+half*128} {stflags}".rstrip(),'st4',rd=[vOA]+R(vE[half]+4*i,4),cost=16))
        return r
    addF(ep_scale(0)+ep_cvt(0)+ep_wr(0)+ep_scale(1)+ep_cvt(1)+ep_wr(1)+ep_rd(0),h1+HZ,NM)
    addF(ep_st(0),h1+11,NM)
    P=[]
    P.append(flag_read()); P+=flag_check(landed_val('Q',1))
    for s in range(8): P.append(dsr128(vQ+4*s,vT1,32*s))
    P+=[valu("v_mov_b32",vLa,"0"),valu("v_mov_b32",vLb,"0")]
    if cinit:
        P+=[valu("v_mov_b32",vRL,sC),valu("v_mov_b32",vRL+1,sC)]
        t=vBLK[4]
        for r in range(32):
            a=t+2*(r%8)
            P+=[valu("v_lshlrev_b32",a,"16",vQ+r),valu("v_and_b32",a+1,"0xffff0000",vQ+r)]
            if r>=1:
                b=t+2*((r-1)%8); P.append(pkmul(b,b,vRL))
            if r>=2:
                b=t+2*((r-2)%8); P.append(valu("v_cvt_pk_bf16_f32",vQ+r-2,b,b+1))
        b=t+2*(31%8); P.append(pkmul(b,b,vRL))
        for r in (30,31):
            b=t+2*(r%8); P.append(valu("v_cvt_pk_bf16_f32",vQ+r,b,b+1))
    fi=0; cost=0
    def issue_reads(i):
        nonlocal cost
        m=M[i]
        if m['need'] is not None:
            if not m.get('fr'): P.append(flag_read()); cost+=4
            P.extend(flag_check(m['need'])); cost+=8
        P.extend(m['reads']); cost+=4*len(m['reads'])
        if m['sig'] is not None:
            s=signal(m['sig']); P.extend(s); cost+=4*len(s)
    def rg(i):
        g=i-pf
        if i>=h1+4*tq: g=max(g, h1+4*((i-h1)//4)-1)
        return max(g,-1)
    by_gap={}
    for i in range(NM): by_gap.setdefault(rg(i),[]).append(i)
    needs=[i for i in range(NM) if M[i]['need'] is not None]
    fr_gap={}
    for a,b in zip([None]+needs[:-1],needs):
        g=rg(b)-fl
        if a is not None: g=max(g,rg(a))
        if g<rg(b) and g>=0: fr_gap[g]=b
    for i in by_gap[-1]: issue_reads(i)
    carry=0
    for g in range(NM):
        while fi<len(F) and any(F[k][2]<=g for k in range(fi,min(fi+200,len(F)))):
            assert F[fi][1]<=g+HZ, ("filler forced before avail",F[fi][0].text,F[fi][1],g)
            P.append(F[fi][0]); fi+=1
        cost=0
        if G>1 and g%G==0:
            extra=set()
            for k in range(1,G):
                if g+k<NM and M[g+k]['need'] is None and rg(g+k)<g-1:
                    for r in M[g+k]['reads']: extra|=r.wr
                else: break
            P.append(I("",'touch',rd=extra,cost=0))
        P.append(M[g]['mfma'])
        if (g+1)%G==0: cost+=4
        for i in by_gap.get(g,[]): issue_reads(i)
        if g in fr_gap:
            P.append(flag_read()); M[fr_gap[g]]['fr']=True; cost+=4
        lim=budget+carry
        while fi<len(F) and F[fi][1]<=g+1 and cost+F[fi][0].cost<=lim:
            P.append(F[fi][0]); cost+=F[fi][0].cost; fi+=1
        carry=max(-8,min(4,lim-cost))
    while fi<len(F): P.append(F[fi][0]); fi+=1
    hi=ep_scale(2,True)+ep_cvt(2)+ep_wr(2)+ep_scale(3,True)+ep_cvt(3)+ep_wr(3)+ep_rd(1)+ep_st(1)
    P+=hi
    P+=stamp()
    prog=insert_lgkm(P)
    prog=[x for x in prog if x.kind!='touch']
    prog,added=pad_hazards(prog,verbose)
    if dry:
        def sz(x):
            if x.kind=='label': return 0
            n=0
            for t in x.text.split("\n"):
                t=t.strip(); op=t.split()[0]
                if op.startswith(('s_waitcnt','s_nop','s_cbranch','s_branch')): n+=4
                elif op in('v_exp_f32','v_rcp_f32','v_add_f32','v_mul_f32','v_mov_b32','v_sub_f32','v_max_f32','v_lshlrev_b32','v_permlane32_swap_b32') or op.startswith('v_cmp'): n+=4
                else: n+=8
            return n
        tot=sum(sz(x) for x in prog)+28*chk_n[0]
        out=[]; acc=0; q=1; i=0
        while i<len(prog):
            x=prog[i]
            if q<4 and acc>=tot*q/4 and x.kind=='mfma':
                out.append(raw("s_cbranch_execz L_drydone")); out.append(label(f"L_q{q}")); q+=1
            if x.kind=='st4':
                j=i
                while j+1<len(prog) and prog[j+1].kind in('st4','wait'): j+=1
                out.append(raw(f"s_cbranch_execz L_sk{i}")); out+=prog[i:j+1]; out.append(label(f"L_sk{i}"))
                acc+=sum(sz(y) for y in prog[i:j+1]); i=j+1; continue
            out.append(x); acc+=sz(x); i+=1
        out.append(raw("s_cbranch_execz L_spin0"))
        prog=out
        rare.append(raw("s_branch L_drydone"))
    nw=sum(1 for x in prog if x.kind=='wait')
    sys.stderr.write(f"consumer: {len(prog)} instrs, waits {nw}, nops added {added}, est cycles {est_cycles(prog)}\n")

    S=[]
    sa=vBLK[0]; kf=vBLK[1]
    S+= [label("L_slow"), raw("s_waitcnt vmcnt(0) lgkmcnt(0)"), nop(15), nop(15)]
    S+= [valu("v_mov_b32",vMX,"0xff800000"), raw("s_mov_b32 s46, 0"), label("L_s1")]
    def kload():
        o=[raw(f"buffer_load_dwordx4 {vr(kf+4*s,4)}, v{vGK}, s[20:23], s46 offen offset:{32*s}") for s in range(8)]
        o.append(raw("s_waitcnt vmcnt(0)"))
        return o
    S+=kload()
    S+=[mfma32(sa,kf+4*s,vQ+4*s,"0" if s==0 else sa) for s in range(8)]
    S+=max_blk(sa,vMX,False)
    S+=[raw("s_add_u32 s46, s46, 8192"),raw("s_cmp_lt_u32 s46, 131072"),raw("s_cbranch_scc1 L_s1")]
    crosshalf(S,vMX,vT1,"v_max_f32")
    if cinit: S+=[valu("v_sub_f32",vNM,"0",vMX)]
    else: S+=[valu("v_mul_f32",vNM,sC,vMX),valu("v_sub_f32",vNM,"0",vNM)]
    S+=[valu("v_mov_b32",vLa,"0"),valu("v_mov_b32",vLb,"0")]+[valu("v_mov_b32",vO+i,"0") for i in range(64)]
    S+=[raw("s_mov_b32 s46, 0"), label("L_s2")]
    S+=kload()
    S+=[mfma32(sa,kf+4*s,vQ+4*s,"0" if s==0 else sa) for s in range(8)]
    S+=exp_blk(sa,sa,'add' if cinit else 'fma')
    for t in range(2):
        for r in range(4):
            S+=[raw(f"s_add_u32 m0, s47, {r*1088}"),raw(f"s_add_u32 s48, s46, {t*4096+r*256}"),
                raw(f"buffer_load_dwordx4 v{vGV}, s[24:27], s48 offen lds")]
        S.append(raw("s_waitcnt vmcnt(0)"))
        for dt in range(4):
            S+=[raw(f"ds_read_b64_tr_b16 {vr(kf+4*dt+2*u,2)}, v{vT2} offset:{u*512+64*dt}") for u in range(2)]
        S.append(raw("s_waitcnt lgkmcnt(0)"))
        S+=[mfma32(vO+16*dt,kf+4*dt,sa+4*t,vO+16*dt) for dt in range(4)]
    S+=[nop(15),raw("s_add_u32 s46, s46, 8192"),raw("s_cmp_lt_u32 s46, 131072"),raw("s_cbranch_scc1 L_s2")]
    S.append(valu("v_add_f32",vLa,vLa,vLb)); crosshalf(S,vLa,vT1,"v_add_f32")
    S+=[trans("v_rcp_f32",vRL,vLa),nop(1)]
    for half in range(2):
        for dt in (2*half,2*half+1): S+=ep_scale(dt)+ep_cvt(dt)+ep_wr(dt)
        S+=ep_rd(half)+[raw("s_waitcnt lgkmcnt(0)")]+ep_st(half)
    S.append(raw("s_endpgm"))
    S,_=pad_hazards(S)

    H=[]; e=H.append
    e(f"; @launch grid=(256,1,1) block=(512,1,1) lds={lds}")
    e('.amdgcn_target "amdgcn-amd-amdhsa--gfx950"')
    e(f".text\n.globl {KN}\n.p2align 8\n.type {KN},@function\n{KN}:")
    e("s_load_dwordx4 s[4:7], s[0:1], 0")
    e("s_load_dwordx4 s[8:11], s[0:1], 16")
    if stamps:
        e("s_load_dwordx2 s[12:13], s[0:1], 40")
        e("s_memrealtime s[96:97]\ns_memtime s[98:99]")
    if diag is not None: e("s_memrealtime s[96:97]")
    e("s_cmp_ge_u32 s2, 256\ns_cbranch_scc1 L_end")
    if xmap==0: e("s_and_b32 s14, s2, 7\ns_lshr_b32 s15, s2, 4\ns_lshl_b32 s15, s15, 3\ns_add_u32 s14, s14, s15")
    else: e("s_and_b32 s14, s2, 7\ns_lshr_b32 s15, s2, 4\ns_lshl_b32 s14, s14, 4\ns_add_u32 s14, s14, s15")
    e("s_bfe_u32 s15, s2, 0x10003")
    e("v_lshrrev_b32 v1, 6, v0\nv_and_b32 v2, 63, v0")
    e("s_lshl_b32 s17, s14, 17")
    e("v_readfirstlane_b32 s16, v1")
    e("s_lshl_b32 s18, s14, 16\ns_lshl_b32 s19, s15, 15\ns_add_u32 s18, s18, s19")
    e(f"v_lshlrev_b32 v{vSA}, 2, v0\nv_add_u32 v{vSA}, {FB}, v{vSA}\nv_mov_b32 v{vSG}, 0\nds_write_b32 v{vSA}, v{vSG}")
    e(f"v_and_b32 v3, 3, v2\nv_lshlrev_b32 v3, 8, v3\nv_lshl_add_u32 v{vFA}, v2, 2, v3")
    e("s_getpc_b64 s[36:37]\nL_pc:")
    e("s_cmp_ge_u32 s16, 4\ns_cbranch_scc1 L_consumer")
    if nomem==1: e("s_waitcnt lgkmcnt(0)\ns_barrier\ns_endpgm")
    if lprio: e(f"s_setprio {lprio}")
    e("s_add_u32 s36, s36, L_table-L_pc\ns_addc_u32 s37, s37, 0\ns_mov_b32 s38, 128\ns_mov_b32 s39, 0x20000")
    e(f"v_add_u32 v{vFA}, {FB+1024}, v{vFA}")
    e("v_lshrrev_b32 v3, 4, v2\nv_and_b32 v4, 15, v2\nv_lshlrev_b32 v4, 4, v4")
    e("s_lshl_b32 s44, s16, 8")
    e("v_add_u32 v4, s44, v4")
    e("v_lshl_add_u32 v6, v3, 12, v4")
    e("v_lshl_add_u32 v7, v3, 10, v4")
    e("s_mul_i32 s42, s16, 1040\ns_mul_i32 s43, s16, 1088")
    e(f"s_add_u32 s44, s44, {FB}")
    e("s_waitcnt lgkmcnt(0)")
    ldiag = diag if isinstance(diag,str) and diag.startswith('l') else None
    lst=[0]
    def lstamp(name):
        if ldiag==name: e("s_memrealtime s[60:61]")
        if stamps:
            i=lst[0]; lst[0]+=1
            e(f"s_memtime s[{50+2*i}:{51+2*i}]")
    lstamp('l0')
    e("s_add_u32 s28, s4, s18\ns_addc_u32 s29, s5, 0\ns_mov_b32 s30, 32768\ns_mov_b32 s31, 0x20000")
    e("s_add_u32 s20, s6, s17\ns_addc_u32 s21, s7, 0\ns_mov_b32 s22, 131072\ns_mov_b32 s23, 0x20000")
    e("s_add_u32 s24, s8, s17\ns_addc_u32 s25, s9, 0\ns_mov_b32 s26, 131072\ns_mov_b32 s27, 0x20000")
    lw_n=[0]
    def lwait(key):
        n=lw_n[0]; lw_n[0]+=1
        if nomem: return
        e(f"s_branch L_lx{n}\nL_lw{n}:\ns_sleep {lsleep}\nL_lx{n}:\nds_read_b32 v8, v{vFA}\ns_waitcnt lgkmcnt(0)\nv_cmp_gt_u32 vcc, {cons_val[key]}, v8\ns_cbranch_vccnz L_lw{n}")
    cnt=[]
    def lflag(val):
        e(f"s_mov_b32 m0, s44\ns_mov_b32 s45, {4*val}\nbuffer_load_dword v{vSG}, s[36:39], s45 offen lds")
    def issue(n):
        kind,j=order[n]; c=0
        if (kind,j) in need_cons: lwait(need_cons[(kind,j)])
        for g in range(4):
            if kind=='V':
                e(f"s_add_u32 m0, s43, {VB+(j%4)*VSL+g*4352}\ns_mov_b32 s45, {j*16384+g*4096}")
                e(f"buffer_load_dwordx4 v7, s[24:27], s45 offen {ldflags} lds")
            elif kind=='H':
                e(f"s_add_u32 m0, s43, {VB+(2+j)*VSL+g*4352}\ns_mov_b32 s45, {6*16384+g*8192+j*128}")
                e(f"buffer_load_dwordx4 v9, s[24:27], s45 offen {ldflags} lds")
            else:
                base = KB+(j%4)*KSL if kind=='K' else VB+(2+j)*VSL
                srd = "s[20:23]" if kind=='K' else "s[28:31]"
                e(f"s_add_u32 m0, s42, {base+g*4160}\ns_mov_b32 s45, {j*16384+g*1024}")
                e(f"buffer_load_dwordx4 v6, {srd}, s45 offen {ldflags} lds")
            c+=1
            if (kind,j)==('H',1): lflag(18+g); c+=1
        if n>=1 and (kind,j)!=('H',1): lflag(n+1); c+=1
        cnt.append(c)
    issued=0
    for n in range(depth):
        issue(n); issued+=1
        if n==0:
            lstamp('l1')
    lstamp('l2')
    e("s_barrier")
    e("s_lshr_b32 s46, s16, 1\ns_lshl_b32 s46, s46, 12\ns_and_b32 s47, s16, 1\ns_lshl_b32 s47, s47, 9\ns_add_u32 s46, s46, s47")
    e("v_and_b32 v9, 7, v2\nv_lshlrev_b32 v9, 4, v9\nv_lshl_add_u32 v9, v3, 10, v9\nv_bfe_u32 v5, v2, 3, 1\nv_lshl_add_u32 v9, v5, 8, v9\nv_add_u32 v9, s46, v9")
    if ldiag=='l3': e(f"s_waitcnt vmcnt({sum(cnt)-1})\ns_memrealtime s[60:61]")
    for n in range(18):
        if pace or stamps or ldiag:
            e(f"s_waitcnt vmcnt({sum(cnt[n+1:])})")
        lstamp(f'l{10+n}')
        if issued<18: issue(issued); issued+=1
        elif not (stamps or ldiag): break
    if stamps:
        while lst[0]<22: lstamp('x')
        e("s_memrealtime s[94:95]\ns_waitcnt lgkmcnt(0)")
        e("s_mov_b32 s36, s12\ns_mov_b32 s37, s13\ns_mov_b32 s38, 0x1000000\ns_mov_b32 s39, 0x20000")
        e("s_cmp_lg_u32 s16, 0\ns_cbranch_scc1 L_end")
        e("s_lshl_b32 s45, s2, 8\ns_add_u32 s45, s45, 65536\nv_mov_b32 v7, s45")
        for i,r in enumerate([96,98]+[50+2*i for i in range(23)]):
            e(f"v_mov_b32 v8, s{r}\nbuffer_store_dword v8, v7, s[36:39], 0 offen offset:{4*i}\ns_nop 1")
    if ldiag:
        e(f"s_memrealtime s[62:63]\ns_waitcnt lgkmcnt(0)\ns_sub_u32 s67, s60, s96\ns_mul_i32 s67, s67, {dk}\ns_add_u32 s67, s67, 500\ns_min_u32 s67, s67, 100000\nL_lspin:\ns_memrealtime s[64:65]\ns_waitcnt lgkmcnt(0)\ns_sub_u32 s66, s64, s62\ns_cmp_lt_u32 s66, s67\ns_cbranch_scc1 L_lspin")
    e("s_waitcnt vmcnt(0)")
    e("L_end:\ns_endpgm")
    e(".p2align 7\nL_table:\n"+"\n".join(f".long {i}" for i in range(32)))
    e("L_consumer:")
    if cprio: e(f"s_setprio {cprio}")
    e("s_sub_u32 s16, s16, 4")
    if codepf:
        e("s_add_u32 s36, s36, L_main-L_pc\ns_addc_u32 s37, s37, 0\ns_mov_b32 s38, L_codeend-L_main\ns_mov_b32 s39, 0x20000")
        e("s_lshr_b32 s45, s2, 3\ns_lshl_b32 s45, s45, 2\ns_add_u32 s45, s45, s16\ns_lshl_b32 s45, s45, 7")
        e("v_mov_b32 v9, 0")
        e("buffer_load_dword v39, v9, s[36:39], s45 offen")
    if diag=='c0': e("s_memrealtime s[60:61]")
    e(f"v_add_u32 v{vFA}, {FB}, v{vFA}")
    e(f"s_mov_b32 {sC}, {f2u(C_SCALE):#x}\ns_mov_b32 {sTHR}, {f2u(lthr):#x}")
    e("v_lshrrev_b32 v4, 5, v2\nv_and_b32 v5, 15, v2\nv_bfe_u32 v6, v2, 4, 1")
    e(f"v_mul_u32_u24 v{vKA}, 1040, v5\nv_lshl_add_u32 v{vKA}, v6, 8, v{vKA}\nv_lshl_add_u32 v{vKA}, v4, 4, v{vKA}")
    e("v_lshrrev_b32 v7, 2, v5\nv_and_b32 v8, 3, v5")
    e("v_lshlrev_b32 v3, 8, v4\nv_lshl_add_u32 v3, v6, 5, v3\nv_lshl_add_u32 v3, v8, 3, v3")
    e(f"v_mul_u32_u24 v{vT2}, 1088, v7\nv_add_u32 v{vT2}, v{vT2}, v3")
    e(f"v_add_u32 v{vVA0}, {VB}, v{vT2}\nv_add_u32 v{vVA2}, {VB+2*VSL}, v{vT2}")
    e(f"v_lshrrev_b32 v8, 1, v7\nv_mul_u32_u24 v{vVH}, 1088, v8\nv_and_b32 v8, 1, v7\nv_lshl_add_u32 v{vVH}, v8, 7, v{vVH}\nv_add_u32 v{vVH}, v{vVH}, v3\nv_add_u32 v{vVH}, {VB+2*VSL}, v{vVH}")
    e(f"s_lshr_b32 s45, s16, 1\ns_mul_i32 s45, s45, {VSL}\ns_and_b32 s19, s16, 1\ns_lshl_b32 s19, s19, 9\ns_add_u32 s45, s45, s19\ns_add_u32 s45, s45, {VB+2*VSL}")
    e(f"v_add_u32 v{vT1}, s45, v{vKA}")
    e(f"s_mul_i32 s47, s16, {STG}\ns_add_u32 s47, s47, {SB}")
    e(f"v_add_u32 v{vT2}, s47, v{vT2}")
    e(f"v_and_b32 v3, 31, v2\nv_mul_u32_u24 v{vWA}, 144, v3\nv_lshl_add_u32 v{vWA}, v4, 3, v{vWA}\nv_add_u32 v{vWA}, s47, v{vWA}")
    e(f"v_lshlrev_b32 v{vGK}, 8, v3\nv_lshl_add_u32 v{vGK}, v4, 4, v{vGK}")
    e(f"v_lshrrev_b32 v3, 4, v2\nv_lshlrev_b32 v{vGV}, 10, v3\nv_lshl_add_u32 v{vGV}, v5, 4, v{vGV}")
    e(f"v_lshrrev_b32 v3, 3, v2\nv_and_b32 v8, 7, v2\nv_mul_u32_u24 v{vRA}, 144, v3\nv_lshl_add_u32 v{vRA}, v8, 4, v{vRA}\nv_add_u32 v{vRA}, s47, v{vRA}")
    e(f"s_lshl_b32 s45, s16, 13\nv_lshlrev_b32 v{vOA}, 8, v3\nv_lshl_add_u32 v{vOA}, v8, 4, v{vOA}\nv_add_u32 v{vOA}, s45, v{vOA}")
    e("s_mov_b32 s45, 4096")
    e("s_waitcnt lgkmcnt(0)\ns_barrier")
    e("s_add_u32 s32, s10, s18\ns_addc_u32 s33, s11, 0\ns_mov_b32 s34, 32768\ns_mov_b32 s35, 0x20000")
    e("s_add_u32 s20, s6, s17\ns_addc_u32 s21, s7, 0\ns_mov_b32 s22, 131072\ns_mov_b32 s23, 0x20000")
    e("s_add_u32 s24, s8, s17\ns_addc_u32 s25, s9, 0\ns_mov_b32 s26, 131072\ns_mov_b32 s27, 0x20000")
    if touch:
        e("v_mov_b32 v9, 0")
        e("s_cmp_lg_u32 s16, 0\ns_cbranch_scc1 L_notouch")
        if touch&1: e("buffer_load_dword v38, v9, s[24:27], 0 offen nt")
        if touch&2: e("buffer_load_dword v37, v9, s[32:35], 0 offen nt")
        e("L_notouch:")
    if dry:
        e(f"v_mov_b32 v9, v{vT1}")
        e("s_mov_b64 exec, 0")
        e("s_cmp_eq_u32 s16, 0\ns_cbranch_scc1 L_main\ns_cmp_eq_u32 s16, 1\ns_cbranch_scc1 L_q1\ns_cmp_eq_u32 s16, 2\ns_cbranch_scc1 L_q2\ns_branch L_q3")
        e("L_drydone:\ns_mov_b64 exec, -1\ns_waitcnt lgkmcnt(0)\ns_nop 15\ns_nop 15")
        if diag=='c1': e("s_memrealtime s[60:61]")
    if codepf or touch: e("s_waitcnt vmcnt(0)")
    e(".p2align 3\nL_main:")
    H.append(text(prog))
    if stamps:
        ns=stamp_idx[0]
        e("s_waitcnt vmcnt(0)")
        e(f"s_memtime s[{50+2*ns}:{51+2*ns}]\ns_memrealtime s[{52+2*ns}:{53+2*ns}]\ns_waitcnt lgkmcnt(0)")
        e("s_mov_b32 s36, s12\ns_mov_b32 s37, s13\ns_mov_b32 s38, 0x1000000\ns_mov_b32 s39, 0x20000")
        e("s_cmp_lg_u32 s16, 0\ns_cbranch_scc1 L_end2")
        e("s_lshl_b32 s45, s2, 8\nv_mov_b32 v7, s45")
        regs=[96,98]+[50+2*i for i in range(ns+2)]
        assert regs[-1]<=94
        for i,r in enumerate(regs):
            e(f"v_mov_b32 v8, s{r}\nbuffer_store_dword v8, v7, s[36:39], 0 offen offset:{4*i}\ns_nop 1")
        sys.stderr.write(f"nstamps={len(regs)}\n")
        e("L_end2:")
    if diag is not None and not ldiag:
        e("s_waitcnt vmcnt(0)")
        if diag=='end': e("s_memrealtime s[60:61]")
        e(f"s_memrealtime s[62:63]\ns_waitcnt lgkmcnt(0)\ns_sub_u32 s67, s60, s96\ns_mul_i32 s67, s67, {dk}\ns_min_u32 s67, s67, 100000\nL_spin:\ns_memrealtime s[64:65]\ns_waitcnt lgkmcnt(0)\ns_sub_u32 s66, s64, s62\ns_cmp_lt_u32 s66, s67\ns_cbranch_scc1 L_spin")
    e("s_endpgm")
    H.append(text(rare))
    e("L_codeend:")
    H.append(text(S))
    e(f'.section .rodata,"a"\n.p2align 6\n.amdhsa_kernel {KN}')
    e("  .amdhsa_next_free_vgpr 256\n  .amdhsa_next_free_sgpr 102\n  .amdhsa_accum_offset 256\n  .amdhsa_group_segment_fixed_size 0\n  .amdhsa_kernarg_size 48\n  .amdhsa_user_sgpr_count 2\n  .amdhsa_user_sgpr_kernarg_segment_ptr 1\n  .amdhsa_system_sgpr_workgroup_id_x 1\n.end_amdhsa_kernel")
    return "\n".join(H)+"\n"

if __name__=="__main__":
    name=sys.argv[1]; kw={}
    for a in sys.argv[2:]:
        k,v=a.split("=",1)
        try: v=int(v)
        except:
            try: v=float(v)
            except: pass
        kw[k]=v
    open(name,"w").write(gen(**kw))
```

```python
import sys, math, struct
from asmlib import *

KN="standalone__gqa_softmax__near_ridge_kernel"
C_SCALE = math.log2(math.e)/math.sqrt(128.0)
def f2u(x): return struct.unpack("<I",struct.pack("<f",x))[0]

KSL=16640; VSL=17408; SS=KSL+VSL
FB=4*SS; SB=FB+2048; STG=4608
def VOFF(j): return ((j+1)%4)*SS+KSL
QOFF=[VOFF(2),VOFF(3)]

def pkmul(d,a,b):
    return I(f"v_pk_mul_f32 {vr(d,2)}, {vr(a,2)}, {vr(b,2)}",'valu',rd=R(a,2)+R(b,2),wr=R(d,2),cost=6)

def gen(depth=3, ldflags="nt", stflags="", stamps=0, pf=6, G=2, lthr=2.0**24, budget=24, fl=4, lprio=0, cprio=0,
        verbose=0, diag=None, dk=1, nomem=0, lds=163840, xmap=0, NFR=8, lsleep=2,
        cinit=1, forceslow=0, dry=1, touch=0, HZ=2, nvgpr=256, xtra=0, xk='s_nop 0', nosig=0, noflag=0, tst=0, flagk=0):
    vKA,vVA,vKC,vVC,vVH,vFA,vSA=10,11,12,13,14,15,16
    vNM,vLa,vLb,vMX,vT1,vOA=17,18,19,20,21,24
    vRL=22
    vFK,vFV=25,26; vSG=27; vWA=28; vRA=29; vGK=30; vGV=31; vT2=9
    vQ=32; vFR=64
    vNB=vFR+4*NFR
    vSa=vNB+16; vSb=vSa+16; vP=vSb+16; vO=vP+16; vE=vO+64
    assert vE+32<=256
    sC="s40"; sTHR="s41"; sKo="s42"; sVo="s43"; sNK="s44"; sNV="s49"; sIT="s48"
    rare=[]
    scnt=[0]
    def stamp(name):
        o=[]
        if diag==name: o.append(raw("s_memrealtime s[60:61]"))
        if stamps and not name.startswith('L'):
            i=scnt[0]; scnt[0]+=1; o.append(raw(f"s_memtime s[{50+2*i}:{51+2*i}]"))
        return o
    def flag_read(r): return I(f"ds_read_b32 v{r}, v{vFA}",'dsr',rd=[vFA],wr=[r])
    stubs={}
    def flag_check(r,val,name,op="gt"):
        if nomem: return []
        if name not in stubs:
            stubs[name]=1
            rare.extend([label(f"L_spin{name}"), raw(f"ds_read_b32 v{r}, v{vFA}"), raw("s_waitcnt lgkmcnt(0)"),
                     raw(f"v_cmp_{op}_u32 vcc, {val}, v{r}"), raw(f"s_cbranch_vccnz L_spin{name}"), raw(f"s_cbranch_execnz L_back{name}" if dry else f"s_branch L_back{name}")])
        return [I(f"v_cmp_{op}_u32 vcc, {val}, v{r}\n    s_cbranch_vccnz L_spin{name}\nL_back{name}:",'valu',rd=[r],sw=['vcc'],cost=8)]
    def signal(val): return [] if nosig else [valu("v_mov_b32",vSG,val), I(f"ds_write_b32 v{vSA}, v{vSG}",'dsw',rd=[vSA,vSG])]
    def FR(slot): return vFR+4*(slot%NFR)
    def kind(g):
        blk,o=divmod(g,8)
        return ('K',o+8*(blk//2)) if blk%2==0 else ('V',o+8*(blk//2))
    def qk(n,f,first=False):
        u,s=divmod(n,8); d=vSa if u==0 else vSb
        c0=vNB if (cinit and not first) else "0"
        return mfma32(d,f,vQ+4*s,c0 if s==0 else d)
    def qk_rd(n,f):
        u,s=divmod(n,8); return [dsr128(f,vKC,u*512+s*32)]
    def pv(n,f):
        t,dt=divmod(n,4); return mfma32(vO+16*dt,f,vP+4*t,vO+16*dt)
    def pv_rd(n,f):
        t,dt=divmod(n,4); return [dsrtr(f+2*u,vVC,t*4352+u*512+64*dt) for u in range(2)]
    def s_mf(g):
        k,n=kind(g); return qk(n,FR(g)) if k=='K' else pv(n,FR(g))
    def s_rd(g):
        k,n=kind(g); return qk_rd(n,FR(g)) if k=='K' else pv_rd(n,FR(g))
    hseq=[(0,t,dl) for t in range(4) for dl in range(2)]+[(1,t,dl) for t in range(4) for dl in range(2)]
    def hv(n):
        half,t,dl=hseq[n]; dt=2*half+dl; return mfma32(vO+16*dt,FR(n),vP+4*t,vO+16*dt)
    def hv_rd(n):
        half,t,dl=hseq[n]; return [dsrtr(FR(n)+2*u,vVH,half*8704+t*2176+u*512+64*dl) for u in range(2)]
    def crosshalf(o,reg,tmp,op):
        o.append(valu("v_mov_b32",tmp,reg)); o.append(perm32(reg,tmp)); o.append(valu(op,reg,reg,tmp))
    def max_blk(src,dst,first):
        o=[valu("v_max3_f32",dst,src,src+1,src+2) if first else valu("v_max3_f32",dst,dst,src,src+1)]
        k=3 if first else 2
        while k+1<16: o.append(valu("v_max3_f32",dst,dst,src+k,src+k+1)); k+=2
        if k<16: o.append(valu("v_max_f32",dst,dst,src+k))
        return o
    def exp_stream(src,pre):
        seq=[]; n=16
        for i in range(n+2):
            if i<n and pre=='fma': seq.append((valu("v_fma_f32",src+i,src+i,sC,vNM),max(0,i-2)))
            if i<n and pre=='add': seq.append((valu("v_add_f32",src+i,src+i,vNM),max(0,i-2)))
            if 0<=i-1<n: seq.append((trans("v_exp_f32",src+i-1,src+i-1),max(0,i-2)))
            if 0<=i-2<n:
                l=vLa if (i-2)%2==0 else vLb; seq.append((valu("v_add_f32",l,l,src+i-2),i-1))
        return seq
    def cvt(half,k):
        src=vSa if half==0 else vSb
        return valu("v_cvt_pk_bf16_f32",vP+8*half+k,src+2*k,src+2*k+1)

    assert pf<=7
    fixed={g:[] for g in range(32)}
    gK=32-pf; gV=8-pf
    rot=gK-fl
    def nxt(g,kd):
        o=[]; n=g+pf-32
        if kd=='K':
            if g==rot: o+=[flag_read(vFK), salu(f"s_add_u32 {sKo}, {sKo}, {SS}")]
            if g==rot+1: o+=[salu(f"s_cmp_eq_u32 {sKo}, {4*SS}"), salu(f"s_cselect_b32 {sKo}, 0, {sKo}")]
            if g==gK-1: o+=[valu("v_add_u32",vKC,sKo,vKA)]
            if g==gK: o+=flag_check(vFK,sNK,"K")+stamp('LK')
            if n>=0: o+=s_rd(n)
            if g==(gV-fl)%32: o+=[flag_read(vFV), valu("v_add_u32",vVC,sKo,vVA)]
        else:
            if g==rot: o+=[flag_read(vFK)]
            if g==gK: o+=flag_check(vFK,"18","H0")+stamp('h0')
            if n>=0: o+=hv_rd(n)
        return o
    assert (gV-fl)%32>31-pf and (gV-fl)%32>=rot
    for g in range(32):
        n=g+pf
        if g==gV: fixed[g]+=flag_check(vFV,sNK,"V",op="ge")+stamp('LV')
        if n<32: fixed[g]+=s_rd(n)
        if n==31: fixed[g]+=signal(sNK)
        if g==rot-2: fixed[g]+=[salu(f"s_add_u32 {sNK}, {sNK}, 2")]
        if g==rot-1: fixed[g]+=[salu(f"s_cmp_lt_u32 {sNK}, 18")]
    def fixed_cost(g):
        c=sum(x.cost for x in fixed[g])+sum(x.cost for x in nxt(g,'K'))
        if (g+1)%G==0: c+=4
        if g==rot: c+=8
        return c
    pre=None if cinit else 'fma'
    a0=7+HZ; b0=23+HZ
    sm={g:[] for g in range(a0,a0+32)}
    A=exp_stream(vSa,pre); B=exp_stream(vSb,pre); ai=0; bi=0; adone=0; bdone=0; ca=0; cb=0; carry=0
    for g in range(a0,a0+32):
        room=budget+carry-fixed_cost(g%32); used=0
        while True:
            cand=None
            if ca<8 and adone>=2*ca+2 and g>=(11 if ca<4 else 15): cand=('ca',cvt(0,ca))
            elif ai<len(A): cand=('a',A[ai][0])
            elif cb<8 and bdone>=2*cb+2 and g>=(27 if cb<4 else 31): cand=('cb',cvt(1,cb))
            elif bi<len(B) and g>=b0: cand=('b',B[bi][0])
            if cand is None: break
            force = (g==31 and ca<8) or (g==a0+31)
            if used+cand[1].cost>room and not force: break
            sm[g].append(cand[1]); used+=cand[1].cost
            if cand[0]=='ca': ca+=1
            elif cand[0]=='cb': cb+=1
            elif cand[0]=='a': adone=A[ai][1]; ai+=1
            else: bdone=B[bi][1]; bi+=1
        carry=max(-8,min(4,room-used))
    assert ca==8 and cb==8 and ai==len(A) and bi==len(B),(ca,cb,ai,bi)
    lastsm=max(g for g in sm if sm[g])
    def smgap(g): return (sm.get(g,[]) if g>=a0 else sm.get(g+32,[]))
    def touch_for(mf_reads):
        ex=set()
        for r in mf_reads: ex|=r.wr
        return I("",'touch',rd=ex,cost=0)
    def slot_mfma(g):
        o=[]
        if G>1 and g%G==0:
            nx=[]
            for k in range(1,G): nx+=s_rd(g+k)
            o.append(touch_for(nx))
        o.append(s_mf(g))
        return o
    PRO=[]
    PRO+=[flag_read(vFV)]+flag_check(vFV,"s46","Q")+stamp('q')
    for s in range(8): PRO.append(dsr128(vQ+4*s,vT1,32*s))
    PRO+=[valu("v_mov_b32",vLa,"0"),valu("v_mov_b32",vLb,"0"),valu("v_mov_b32",vKC,vKA)]
    if cinit:
        PRO+=[valu("v_mov_b32",vRL,sC),valu("v_mov_b32",vRL+1,sC)]
        t=vE
        for r in range(34):
            if r<32:
                a=t+2*(r%8); PRO+=[valu("v_lshlrev_b32",a,"16",vQ+r),valu("v_and_b32",a+1,"0xffff0000",vQ+r)]
            if 1<=r<33:
                b=t+2*((r-1)%8); PRO.append(pkmul(b,b,vRL))
            if r>=2:
                b=t+2*((r-2)%8); PRO.append(valu("v_cvt_pk_bf16_f32",vQ+r-2,b,b+1))
    if dry: PRO+=[raw("s_cbranch_execz L_q2"),label("L_q1")]
    PRO+=[flag_read(vFK)]+flag_check(vFK,"3","K0")+stamp('k0')
    for n in range(pf): PRO+=qk_rd(n,FR(n))
    st=max_blk(vSa,vMX,True); crosshalf(st,vMX,vT1,"v_max_f32")
    if cinit:
        st.append(valu("v_sub_f32",vNM,"0",vMX))
        st+=[valu("v_add_f32",vSa+i,vSa+i,vNM) for i in range(16)]
        st+=[valu("v_sub_f32",vNB+i,"0",vMX) for i in range(16)]
    else: st+=[valu("v_mul_f32",vNM,sC,vMX),valu("v_sub_f32",vNM,"0",vNM)]
    subB=[valu("v_add_f32",vSb+i,vSb+i,vNM) for i in range(16)] if cinit else []
    for g in range(a0,32):
        if g==b0: st+=subB
        st+=sm[g]
    si=0
    for g in range(16):
        PRO.append(qk(g,FR(g),True))
        if g+pf<16: PRO+=qk_rd(g+pf,FR(g+pf))
        if g+pf==15: PRO+=signal("1")
        if g>=a0:
            c=0
            while si<len(st) and c<24: PRO.append(st[si]); c+=st[si].cost; si+=1
    rem=st[si:]; cut=max(0,len(rem)-24)
    PRO+=rem[:cut]
    PRO+=[salu(f"s_mov_b32 {sKo}, {SS}"),salu(f"s_mov_b32 {sNK}, 4"),valu("v_add_u32",vKC,str(SS),vKA),valu("v_add_u32",vVC,str(SS),vVA),flag_read(vFK)]+flag_check(vFK,"4","K1")+stamp('k1')
    for g in range(gK,32):
        PRO+=[x for x in nxt(g,'K') if x.kind=='dsr']
    PRO+=rem[cut:]
    PRO+=[raw("s_cbranch_execz L_drydone")] if dry else []
    PRO+=[raw("s_branch L_slot0")]
    def body_hi(kd):
        o=[]
        for g in range(rot,32):
            if g>rot: o+=slot_mfma(g)
            o+=fixed[g]+nxt(g,kd)+smgap(g)
        return o
    def body_lo():
        o=[]
        for g in range(0,rot+1):
            o+=slot_mfma(g)
            if g<rot: o+=fixed[g]+smgap(g)
        return o
    HI=body_hi('K'); LO=body_lo(); HF=body_hi('H')
    def ep_scale(dt,pk=False):
        o=vO+16*dt
        if pk: return [pkmul(o+2*k,o+2*k,vRL) for k in range(8)]
        return [valu("v_mul_f32",o+k,o+k,vRL) for k in range(16)]
    def ep_cvt(dt):
        o=vO+16*dt; return [valu("v_cvt_pk_bf16_f32",o+k,o+2*k,o+2*k+1) for k in range(8)]
    def ep_wr(dt):
        o=vO+16*dt; return [dsw64(vWA,o+2*k,(dt%2)*64+16*k) for k in range(4)]
    def ep_rd(half): return [dsr128(vE+16*half+4*i,vRA,i*8*144) for i in range(4)]
    skn=[0]
    def ep_st(half,i,guard=True):
        so="0" if i<2 else "s45"; r=vE+16*half+4*i
        t=f"buffer_store_dwordx4 {vr(r,4)}, v{vOA}, s[32:35], {so} offen offset:{(i%2)*2048+half*128} {stflags}".rstrip()
        return I(t,'st4',rd=[vOA]+R(r,4),cost=16)
    def guarded(lst):
        if not dry: return lst
        n=skn[0]; skn[0]+=1
        return [raw(f"s_cbranch_execz L_sk{n}")]+lst+[label(f"L_sk{n}")]
    rest=[]
    for g in range(32,a0+32): rest+=sm[g]
    fin=[valu("v_add_f32",vLa,vLa,vLb)]
    crosshalf(fin,vLa,vT1,"v_add_f32")
    fin.append(trans("v_rcp_f32",vRL,vLa))
    br="" if nomem else ("\n    s_cbranch_vccnz L_slow" if not forceslow else "\n    s_cbranch_execnz L_slow")
    fin.append(I(f"v_cmp_nge_f32 vcc, {sTHR}, v{vLa}"+br,'valu',rd=[vLa],sw=['vcc'],sr=[sTHR],cost=8))
    fin.append(valu("v_mov_b32",vRL+1,vRL))
    FIN=[]
    q=list(rest);
    def take(q,c):
        o=[]
        while q and c>0: x=q.pop(0); o.append(x); c-=x.cost
        return o
    per=sum(x.cost for x in rest)/4.0
    for n in range(8):
        if n==4: FIN+=q; q=list(fin)
        FIN.append(hv(n))
        if n+pf<8: FIN+=hv_rd(n+pf)
        if n==3: FIN+=[flag_read(vFV)]
        if n==5: FIN+=flag_check(vFV,"19","H1")+stamp('h1')+hv_rd(8)+hv_rd(9)
        if n==6: FIN+=hv_rd(10)+hv_rd(11)+[flag_read(vFK)]
        FIN+=take(q,per if n<4 else 12)
    FIN+=q
    lo=ep_scale(0)+ep_cvt(0)+ep_wr(0)+ep_scale(1)+ep_cvt(1)+ep_wr(1)+ep_rd(0)
    FIN.append(hv(8)); FIN.append(hv(9))
    FIN+=flag_check(vFK,"20","H2")+stamp('h2')+hv_rd(12)+hv_rd(13)+hv_rd(14)+hv_rd(15)
    q=lo
    for n in range(10,16):
        FIN+=take(q,40)
        FIN.append(hv(n))
    FIN+=q
    T=(lambda n: stamp(n)) if tst else (lambda n: [])
    FIN+=T('t0')
    FIN+=guarded([ep_st(0,0),ep_st(0,1)])+T('t1')
    FIN+=ep_scale(2,True)+T('t2')+ep_cvt(2)+T('t3')+ep_wr(2)+T('t4')
    FIN+=guarded([ep_st(0,2),ep_st(0,3)])+T('t5')
    FIN+=ep_scale(3,True)+ep_cvt(3)+T('t6')+ep_wr(3)+T('t7')+ep_rd(1)+T('t8')
    FIN+=guarded([ep_st(1,0)]+T('t9')+[ep_st(1,i) for i in range(1,4)])
    FIN+=stamp('st')

    MK=lambda n: I(n,'mark',cost=0)
    def process(trace):
        p=insert_lgkm(trace); p=[x for x in p if x.kind!='touch']
        return p
    def ws0(x): return x
    trace=PRO+[MK('a')]+LO+[MK('b')]+HI+[MK('c')]+LO+[MK('d')]+HI+[MK('e')]+LO+[MK('f')]+HF+[MK('g')]+FIN
    for x in trace:
        if x.kind=='mark': x.kind='label'; x.tag='mark'
    p=process(trace); p,added=pad_hazards(p,verbose)
    def seg(a,b):
        ia=0 if a is None else [i for i,x in enumerate(p) if x.tag=='mark' and x.text==a][0]+1
        ib=len(p) if b is None else [i for i,x in enumerate(p) if x.tag=='mark' and x.text==b][0]
        return p[ia:ib]
    PROf=seg(None,'a'); LOf=seg('e','f'); HIf=seg('d','e'); HFf=seg('f','g'); FINf=seg('g',None)
    assert [x.text for x in seg('c','d')]==[x.text for x in LOf]
    assert [x.text for x in seg('b','c')]==[x.text for x in HIf]
    br=raw("s_cbranch_scc1 L_top")
    chk=PROf+LOf+[br]+HIf+LOf+[br]+HIf+LOf+[br]+HFf+FINf
    c2=insert_lgkm(chk); assert len(c2)==len(chk),"lgkm fold problem"
    c3,ad=pad_hazards(chk); assert ad==0,"hazard fold problem"
    full=PROf+(LOf+[br]+HIf)*6+LOf+[br]+HFf+FINf
    sys.stderr.write(f"consumer: pro {len(PROf)} loop {len(HIf)+len(LOf)} fin {len(HFf)+len(FINf)} nops {added}; est loop {(est_cycles((HIf+LOf+[br])*3)-est_cycles(HIf+LOf+[br]))/2} pro {est_cycles(PROf)} fin {est_cycles(HFf+FINf)} total {est_cycles(full)} lastsm {lastsm}\n")

    S=[]; sa=vSa; kf=vE
    S+=[label("L_slow"), raw("s_waitcnt vmcnt(0) lgkmcnt(0)"), nop(15), nop(15)]
    S+=[valu("v_mov_b32",vMX,"0xff800000"), raw("s_mov_b32 s46, 0"), label("L_s1")]
    def kload():
        return [raw(f"buffer_load_dwordx4 {vr(kf+4*s,4)}, v{vGK}, s[20:23], s46 offen offset:{32*s}") for s in range(8)]+[raw("s_waitcnt vmcnt(0)")]
    S+=kload()+[mfma32(sa,kf+4*s,vQ+4*s,"0" if s==0 else sa) for s in range(8)]+max_blk(sa,vMX,False)
    S+=[raw("s_add_u32 s46, s46, 8192"),raw("s_cmp_lt_u32 s46, 131072"),raw("s_cbranch_scc1 L_s1")]
    crosshalf(S,vMX,vT1,"v_max_f32")
    S+=[valu("v_sub_f32",vNM,"0",vMX)] if cinit else [valu("v_mul_f32",vNM,sC,vMX),valu("v_sub_f32",vNM,"0",vNM)]
    S+=[valu("v_mov_b32",vLa,"0"),valu("v_mov_b32",vLb,"0")]+[valu("v_mov_b32",vO+i,"0") for i in range(64)]
    S+=[raw("s_mov_b32 s46, 0"), label("L_s2")]
    S+=kload()+[mfma32(sa,kf+4*s,vQ+4*s,"0" if s==0 else sa) for s in range(8)]
    S+=[x for x,_ in exp_stream(sa,'add' if cinit else 'fma')]+[cvt(0,k) for k in range(8)]
    for t in range(2):
        for r in range(4):
            S+=[raw(f"s_add_u32 m0, s47, {r*1088}"),raw(f"s_add_u32 s19, s46, {t*4096+r*256}"),raw(f"buffer_load_dwordx4 v{vGV}, s[24:27], s19 offen lds")]
        S.append(raw("s_waitcnt vmcnt(0)"))
        for dt in range(4): S+=[raw(f"ds_read_b64_tr_b16 {vr(kf+4*dt+2*u,2)}, v{vT2} offset:{u*512+64*dt}") for u in range(2)]
        S.append(raw("s_waitcnt lgkmcnt(0)"))
        S+=[mfma32(vO+16*dt,kf+4*dt,vP+4*t,vO+16*dt) for dt in range(4)]
    S+=[nop(15),raw("s_add_u32 s46, s46, 8192"),raw("s_cmp_lt_u32 s46, 131072"),raw("s_cbranch_scc1 L_s2")]
    S.append(valu("v_add_f32",vLa,vLa,vLb)); crosshalf(S,vLa,vT1,"v_add_f32")
    S+=[trans("v_rcp_f32",vRL,vLa),nop(1)]
    for half in range(2):
        for dt in (2*half,2*half+1): S+=ep_scale(dt)+ep_cvt(dt)+ep_wr(dt)
        S+=ep_rd(half)+[raw("s_waitcnt lgkmcnt(0)")]+[ep_st(half,i) for i in range(4)]
    S.append(raw("s_endpgm"))
    S,_=pad_hazards(S)

    H=[]; e=H.append
    e(f"; @launch grid=(256,1,1) block=(512,1,1) lds={lds}")
    e('.amdgcn_target "amdgcn-amd-amdhsa--gfx950"')
    e(f".text\n.globl {KN}\n.p2align 8\n.type {KN},@function\n{KN}:")
    e("s_load_dwordx4 s[4:7], s[0:1], 0")
    e("s_load_dwordx4 s[8:11], s[0:1], 16")
    if stamps:
        e("s_load_dwordx2 s[12:13], s[0:1], 40")
        e("s_memrealtime s[96:97]\ns_memtime s[98:99]")
    if diag is not None: e("s_memrealtime s[96:97]")
    e("s_cmp_ge_u32 s2, 256\ns_cbranch_scc1 L_end")
    e("v_lshrrev_b32 v1, 6, v0\nv_and_b32 v2, 63, v0")
    if xmap==0: e("s_and_b32 s14, s2, 7\ns_lshr_b32 s15, s2, 4\ns_lshl_b32 s15, s15, 3\ns_add_u32 s14, s14, s15")
    else: e("s_and_b32 s14, s2, 7\ns_lshr_b32 s15, s2, 4\ns_lshl_b32 s14, s14, 4\ns_add_u32 s14, s14, s15")
    e("v_readfirstlane_b32 s16, v1")
    e("s_bfe_u32 s15, s2, 0x10003")
    e("s_lshl_b32 s17, s14, 17")
    e("s_lshl_b32 s18, s14, 16\ns_lshl_b32 s19, s15, 15\ns_add_u32 s18, s18, s19")
    e(f"v_lshlrev_b32 v{vSA}, 2, v0\nv_add_u32 v{vSA}, {FB}, v{vSA}\nv_mov_b32 v{vSG}, 0\nds_write_b32 v{vSA}, v{vSG}")
    e(f"v_and_b32 v3, 3, v2\nv_lshlrev_b32 v3, 8, v3\nv_lshl_add_u32 v{vFA}, v2, 2, v3")
    e("s_cmp_ge_u32 s16, 4\ns_cbranch_scc1 L_consumer")
    if nomem==1: e("s_waitcnt lgkmcnt(0)\ns_barrier\ns_endpgm")
    if lprio: e(f"s_setprio {lprio}")
    e("s_getpc_b64 s[36:37]\nL_pc:")
    e("s_add_u32 s36, s36, L_table-L_pc\ns_addc_u32 s37, s37, 0\ns_mov_b32 s38, 128\ns_mov_b32 s39, 0x20000")
    e("v_lshrrev_b32 v3, 4, v2\nv_and_b32 v4, 15, v2\nv_lshlrev_b32 v4, 4, v4")
    e("s_lshl_b32 s44, s16, 8")
    e("v_add_u32 v4, s44, v4")
    e("v_lshl_add_u32 v6, v3, 12, v4\nv_lshl_add_u32 v7, v3, 10, v4")
    e("s_mul_i32 s42, s16, 1040\ns_mul_i32 s43, s16, 1088")
    e(f"s_add_u32 s44, s44, {FB}")
    e(f"s_add_u32 s46, s42, {QOFF[0]}")
    e("s_mov_b32 s30, 32768\ns_mov_b32 s31, 0x20000\ns_mov_b32 s22, 131072\ns_mov_b32 s23, 0x20000\ns_mov_b32 s26, 131072\ns_mov_b32 s27, 0x20000")
    e("s_movk_i32 s40, 3136")
    e("s_waitcnt lgkmcnt(0)")
    ldiag = diag if isinstance(diag,str) and diag.startswith('l') else None
    lst=[0]
    def lstamp(name):
        if ldiag==name: e("s_memrealtime s[60:61]")
        if stamps:
            i=lst[0]; lst[0]+=1; e(f"s_memtime s[{50+2*i}:{51+2*i}]")
    lstamp('l0')
    e("s_add_u32 s28, s4, s18\ns_addc_u32 s29, s5, 0")
    def kq_stage(srd,m0base,soff):
        e(f"s_mov_b32 m0, {m0base}")
        for g in range(4):
            if g==0: e("s_nop 0")
            e(f"buffer_load_dwordx4 v6, {srd}, {soff} offen offset:{g*1024} {ldflags} lds")
            if g<3: e("s_add_u32 m0, m0, s40\ns_nop 0")
    def lflag(soff):
        if noflag: e("s_nop 0"); return
        if flagk==0: e(f"s_mov_b32 m0, s44\ns_nop 0\nbuffer_load_dword v{vSG}, s[36:39], {soff} offen lds")
        if flagk==1: e(f"s_mov_b32 m0, s44\ns_nop 0\nbuffer_load_dword v{vSG}, s[36:39], {soff} offen nt lds")
        if flagk==2: e(f"s_mov_b32 m0, s44\ns_mov_b64 exec, 1\nbuffer_load_dwordx4 v{vSG}, s[36:39], {soff} offen nt lds\ns_mov_b64 exec, -1")
        if flagk==3: e(f"s_mov_b32 m0, s44\ns_mov_b64 exec, 1\nbuffer_load_dword v{vSG}, s[36:39], {soff} offen lds\ns_mov_b64 exec, -1")
        if flagk==4: e(f"s_mov_b32 m0, s44\ns_nop 0\nbuffer_load_dword v{vSG}, s[28:31], 0 offen nt lds")
    kq_stage("s[28:31]","s46","0")
    lflag("4")
    lstamp('l1')
    e(f"s_add_u32 s46, s42, {QOFF[1]}\ns_movk_i32 s45, 16384")
    kq_stage("s[28:31]","s46","s45"); lflag("8")
    e("s_add_u32 s20, s6, s17\ns_addc_u32 s21, s7, 0")
    kq_stage("s[20:23]","s42","0"); lflag("12")
    lstamp('l2')
    e("s_add_u32 s24, s8, s17\ns_addc_u32 s25, s9, 0")
    e(f"v_add_u32 v{vFA}, {FB+1024}, v{vFA}")
    e("s_lshr_b32 s46, s16, 1\ns_lshl_b32 s46, s46, 12\ns_and_b32 s47, s16, 1\ns_lshl_b32 s47, s47, 9\ns_add_u32 s46, s46, s47")
    e("v_and_b32 v9, 7, v2\nv_lshlrev_b32 v9, 4, v9\nv_lshl_add_u32 v9, v3, 10, v9\nv_bfe_u32 v5, v2, 3, 1\nv_lshl_add_u32 v9, v5, 8, v9\nv_add_u32 v9, s46, v9")
    e(f"s_mov_b32 s46, {SS}\ns_mov_b32 s49, 16\ns_add_u32 s43, s43, {KSL}")
    e("s_barrier")
    W=(4 if noflag else 5)*(depth-1)
    e("L_lloop:")
    if not nomem:
        e("s_cmp_lt_u32 s49, 32\ns_cbranch_scc1 L_lgo\ns_lshr_b32 s14, s49, 2\ns_sub_u32 s14, s14, 6\ns_cmp_lt_u32 s49, 48\ns_cselect_b32 s14, 1, s14")
        e(f"s_branch L_lx\nL_lw:\ns_sleep {lsleep}\nL_lx:\nds_read_b32 v8, v{vFA}\ns_waitcnt lgkmcnt(0)\nv_cmp_gt_u32 vcc, s14, v8\ns_cbranch_vccnz L_lw\nL_lgo:")
    e("s_add_u32 s47, s46, s42")
    for _ in range(xtra): e(xk)
    e(f"s_waitcnt vmcnt({W})")
    kq_stage("s[20:23]","s47","s45"); lflag("s49")
    e("s_sub_u32 s15, s45, 16384\ns_add_u32 s49, s49, 4")
    e(f"s_waitcnt vmcnt({W})")
    e("s_add_u32 m0, s46, s43")
    for g in range(4):
        if g==0: e("s_nop 0")
        e(f"buffer_load_dwordx4 v7, s[24:27], s15 offen {ldflags} lds")
        if g<3: e("s_add_u32 m0, m0, 4352\ns_add_u32 s15, s15, 4096")
    lflag("s49")
    e(f"s_add_u32 s49, s49, 4\ns_add_u32 s45, s45, 16384\ns_add_u32 s46, s46, {SS}\ns_cmp_eq_u32 s46, {4*SS}\ns_cselect_b32 s46, 0, s46")
    e("s_cmp_lt_u32 s49, 72\ns_cbranch_scc1 L_lloop")
    lstamp('l3')
    if not nomem: e(f"s_branch L_lx2\nL_lw2:\ns_sleep {lsleep}\nL_lx2:\nds_read_b32 v8, v{vFA}\ns_waitcnt lgkmcnt(0)\nv_cmp_gt_u32 vcc, 12, v8\ns_cbranch_vccnz L_lw2")
    e(f"s_waitcnt vmcnt({W})")
    for half in range(2):
        for g in range(2):
            e(f"s_add_u32 m0, s43, {half*8704+g*4352}\ns_mov_b32 s45, {7*16384+g*8192+half*128}")
            e(f"buffer_load_dwordx4 v9, s[24:27], s45 offen {ldflags} lds")
            v={(0,1):18,(1,0):19,(1,1):20}.get((half,g))
            if v: e(f"s_movk_i32 s45, {4*v}"); lflag("s45")
    e("s_waitcnt vmcnt(0)")
    lstamp('l4')
    if stamps:
        e("s_memrealtime s[94:95]\ns_waitcnt lgkmcnt(0)")
        e("s_mov_b32 s36, s12\ns_mov_b32 s37, s13\ns_mov_b32 s38, 0x1000000\ns_mov_b32 s39, 0x20000")
        e("s_cmp_lg_u32 s16, 0\ns_cbranch_scc1 L_end")
        e("s_lshl_b32 s45, s2, 8\ns_add_u32 s45, s45, 65536\nv_mov_b32 v7, s45")
        for i,r in enumerate([96,98]+[50+2*min(i,lst[0]-1) for i in range(scnt[0]+2)]+[94]):
            e(f"v_mov_b32 v8, s{r}\nbuffer_store_dword v8, v7, s[36:39], 0 offen offset:{4*i}\ns_nop 1")
    if ldiag:
        e(f"s_memrealtime s[62:63]\ns_waitcnt lgkmcnt(0)\ns_sub_u32 s67, s60, s96\ns_mul_i32 s67, s67, {dk}\ns_add_u32 s67, s67, 500\ns_min_u32 s67, s67, 100000\nL_lspin:\ns_memrealtime s[64:65]\ns_waitcnt lgkmcnt(0)\ns_sub_u32 s66, s64, s62\ns_cmp_lt_u32 s66, s67\ns_cbranch_scc1 L_lspin")
    e("L_end:\ns_endpgm")
    e(".p2align 7\nL_table:\n"+"\n".join(f".long {i}" for i in range(32)))
    e("L_consumer:")
    if cprio: e(f"s_setprio {cprio}")
    e("s_sub_u32 s16, s16, 4")
    e(f"v_add_u32 v{vFA}, {FB}, v{vFA}")
    e("v_lshrrev_b32 v4, 5, v2\nv_and_b32 v5, 15, v2\nv_bfe_u32 v6, v2, 4, 1")
    e(f"v_mul_u32_u24 v{vKA}, 1040, v5\nv_lshl_add_u32 v{vKA}, v6, 8, v{vKA}\nv_lshl_add_u32 v{vKA}, v4, 4, v{vKA}")
    e("v_lshrrev_b32 v7, 2, v5\nv_and_b32 v8, 3, v5")
    e("v_lshlrev_b32 v3, 8, v4\nv_lshl_add_u32 v3, v6, 5, v3\nv_lshl_add_u32 v3, v8, 3, v3")
    e(f"v_mul_u32_u24 v{vT2}, 1088, v7\nv_add_u32 v{vT2}, v{vT2}, v3")
    e(f"v_add_u32 v{vVA}, {KSL}, v{vT2}\nv_mov_b32 v{vVC}, v{vVA}\nv_mov_b32 v{vKC}, v{vKA}")
    e(f"v_lshrrev_b32 v8, 1, v7\nv_mul_u32_u24 v{vVH}, 1088, v8\nv_and_b32 v8, 1, v7\nv_lshl_add_u32 v{vVH}, v8, 7, v{vVH}\nv_add_u32 v{vVH}, v{vVH}, v3\nv_add_u32 v{vVH}, {VOFF(7)}, v{vVH}")
    e(f"s_mul_i32 s47, s16, {STG}\ns_add_u32 s47, s47, {SB}")
    e(f"v_add_u32 v{vT2}, s47, v{vT2}")
    e(f"v_and_b32 v3, 31, v2\nv_mul_u32_u24 v{vWA}, 144, v3\nv_lshl_add_u32 v{vWA}, v4, 3, v{vWA}\nv_add_u32 v{vWA}, s47, v{vWA}")
    e(f"v_lshlrev_b32 v{vGK}, 8, v3\nv_lshl_add_u32 v{vGK}, v4, 4, v{vGK}")
    e(f"v_lshrrev_b32 v3, 4, v2\nv_lshlrev_b32 v{vGV}, 10, v3\nv_lshl_add_u32 v{vGV}, v5, 4, v{vGV}")
    e(f"v_lshrrev_b32 v3, 3, v2\nv_and_b32 v8, 7, v2\nv_mul_u32_u24 v{vRA}, 144, v3\nv_lshl_add_u32 v{vRA}, v8, 4, v{vRA}\nv_add_u32 v{vRA}, s47, v{vRA}")
    e(f"s_lshl_b32 s45, s16, 13\nv_lshlrev_b32 v{vOA}, 8, v3\nv_lshl_add_u32 v{vOA}, v8, 4, v{vOA}\nv_add_u32 v{vOA}, s45, v{vOA}")
    e(f"v_mov_b32 v{vT1}, v{vKA}")
    if dry:
        e("s_mov_b64 exec, 0")
        e("s_cmp_eq_u32 s16, 0\ns_cbranch_scc1 L_main\ns_cmp_eq_u32 s16, 1\ns_cbranch_scc1 L_top\ns_cmp_eq_u32 s16, 2\ns_cbranch_scc1 L_q1\ns_branch L_q3")
        e("L_drydone:\ns_mov_b64 exec, -1")
        if diag=='c1': e("s_memrealtime s[60:61]")
        if stamps: e("s_memtime s[92:93]")
    e(f"s_mov_b32 {sC}, {f2u(C_SCALE):#x}\ns_mov_b32 {sTHR}, {f2u(lthr):#x}")
    e(f"s_lshr_b32 s46, s16, 1\ns_mov_b32 s45, {QOFF[0]}\ns_cmp_eq_u32 s46, 0\ns_cselect_b32 s45, s45, {QOFF[1]}\ns_and_b32 s19, s16, 1\ns_lshl_b32 s19, s19, 9\ns_add_u32 s45, s45, s19\ns_add_u32 s46, s46, 1")
    e(f"v_add_u32 v{vT1}, s45, v{vKA}")
    e(f"s_mov_b32 s45, 4096")
    e("s_waitcnt lgkmcnt(0)\ns_barrier")
    e("s_add_u32 s32, s10, s18\ns_addc_u32 s33, s11, 0\ns_mov_b32 s34, 32768\ns_mov_b32 s35, 0x20000")
    e("s_add_u32 s20, s6, s17\ns_addc_u32 s21, s7, 0\ns_mov_b32 s22, 131072\ns_mov_b32 s23, 0x20000")
    e("s_add_u32 s24, s8, s17\ns_addc_u32 s25, s9, 0\ns_mov_b32 s26, 131072\ns_mov_b32 s27, 0x20000")
    for i in range(64): e(f"v_mov_b32 v{vO+i}, 0")
    if touch:
        e("v_mov_b32 v3, 0\ns_cmp_lg_u32 s16, 0\ns_cbranch_scc1 L_notouch")
        if touch&1: e("buffer_load_dword v4, v3, s[24:27], 0 offen nt")
        if touch&2: e("buffer_load_dword v5, v3, s[32:35], 0 offen nt")
        e("L_notouch:")
    e(".p2align 3\nL_main:")
    e(text(PROf))
    e(".p2align 3\nL_top:")
    e(text(HIf))
    e("L_slot0:")
    e(text(LOf))
    if dry: e("    s_cbranch_execz L_drydone")
    e("    s_cbranch_scc1 L_top")
    e("L_q2:")
    e(text(HFf))
    if dry:
        k=[i for i,x in enumerate(FINf) if x.kind=='mfma'][6]
        e(text(FINf[:k])); e("    s_cbranch_execz L_drydone\nL_q3:"); e(text(FINf[k:]))
        e("    s_cbranch_execz L_stubs")
    else: e(text(FINf))
    if stamps:
        ns=scnt[0]
        e("s_waitcnt vmcnt(0)")
        e(f"s_memtime s[{50+2*ns}:{51+2*ns}]\ns_memrealtime s[{52+2*ns}:{53+2*ns}]\ns_waitcnt lgkmcnt(0)")
        e("s_mov_b32 s36, s12\ns_mov_b32 s37, s13\ns_mov_b32 s38, 0x1000000\ns_mov_b32 s39, 0x20000")
        e("s_cmp_lg_u32 s16, 3\ns_cbranch_scc1 L_end2")
        e("s_lshl_b32 s45, s2, 8\nv_mov_b32 v7, s45")
        regs=[96,98,92 if dry else 98]+[50+2*i for i in range(ns+2)]
        for i,r in enumerate(regs):
            e(f"v_mov_b32 v8, s{r}\nbuffer_store_dword v8, v7, s[36:39], 0 offen offset:{4*i}\ns_nop 1")
        sys.stderr.write(f"nstamps={len(regs)}\n")
        e("L_end2:")
    if diag is not None and not ldiag:
        e("s_waitcnt vmcnt(0)")
        if diag=='end': e("s_memrealtime s[60:61]")
        e(f"s_memrealtime s[62:63]\ns_waitcnt lgkmcnt(0)\ns_sub_u32 s67, s60, s96\ns_mul_i32 s67, s67, {dk}\ns_min_u32 s67, s67, 100000\nL_spin:\ns_memrealtime s[64:65]\ns_waitcnt lgkmcnt(0)\ns_sub_u32 s66, s64, s62\ns_cmp_lt_u32 s66, s67\ns_cbranch_scc1 L_spin")
    e("s_endpgm")
    e("L_stubs:")
    e(text(rare))
    if dry: e("    s_branch L_drydone")
    e("L_codeend:")
    e(text(S))
    e(f'.section .rodata,"a"\n.p2align 6\n.amdhsa_kernel {KN}')
    e(f"  .amdhsa_next_free_vgpr {nvgpr}\n  .amdhsa_next_free_sgpr 102\n  .amdhsa_accum_offset {nvgpr}\n  .amdhsa_group_segment_fixed_size 0\n  .amdhsa_kernarg_size 48\n  .amdhsa_user_sgpr_count 2\n  .amdhsa_user_sgpr_kernarg_segment_ptr 1\n  .amdhsa_system_sgpr_workgroup_id_x 1\n.end_amdhsa_kernel")
    return "\n".join(H)+"\n"

if __name__=="__main__":
    name=sys.argv[1]; kw={}
    for a in sys.argv[2:]:
        k,v=a.split("=",1)
        try: v=int(v)
        except:
            try: v=float(v)
            except: pass
        kw[k]=v
    open(name,"w").write(gen(**kw))
```

```python
import sys, math, struct
from asmlib import *

KN="standalone__gqa_softmax__near_ridge_kernel"
C_SCALE = math.log2(math.e)/math.sqrt(128.0)
def f2u(x): return struct.unpack("<I",struct.pack("<f",x))[0]

KSL=16640; VSL=17408; SS=KSL+VSL
FB=4*SS; SB=FB+2048; STG=4608
def VOFF(j): return ((j+1)%4)*SS+KSL
QOFF=[VOFF(2),VOFF(3)]

def pkmul(d,a,b):
    return I(f"v_pk_mul_f32 {vr(d,2)}, {vr(a,2)}, {vr(b,2)}",'valu',rd=R(a,2)+R(b,2),wr=R(d,2),cost=6)

def gen(depth=3, ldflags="nt", stflags="", stamps=0, pf=6, G=2, lthr=2.0**24, budget=24, fl=4, lprio=0, cprio=0,
        verbose=0, diag=None, dk=1, nomem=0, lds=163840, xmap=0, NFR=8, lsleep=2,
        cinit=1, forceslow=0, dry=1, touch=0, HZ=2, nvgpr=256, xtra=0, xk='s_nop 0', nosig=0, noflag=0, tst=0, flagk=0):
    vKA,vVA,vKC,vVC,vVH,vFA,vSA=10,11,12,13,14,15,16
    vNM,vLa,vLb,vMX,vT1,vOA=17,18,19,20,21,24
    vRL=22
    vFK,vFV=25,26; vSG=27; vWA=28; vRA=29; vGK=30; vGV=31; vT2=9
    vQ=32; vFR=64
    vNB=vFR+4*NFR
    vSa=vNB+16; vSb=vSa+16; vP=vSb+16; vO=vP+16; vE=vO+64
    assert vE+32<=256
    sC="s40"; sTHR="s41"; sKo="s42"; sVo="s43"; sNK="s44"; sNV="s49"; sIT="s48"
    rare=[]
    scnt=[0]
    def stamp(name):
        o=[]
        if diag==name: o.append(raw("s_memrealtime s[60:61]"))
        if stamps and not name.startswith('L'):
            i=scnt[0]; scnt[0]+=1; o.append(raw(f"s_memtime s[{50+2*i}:{51+2*i}]"))
        return o
    def flag_read(r): return I(f"ds_read_b32 v{r}, v{vFA}",'dsr',rd=[vFA],wr=[r])
    stubs={}
    def flag_check(r,val,name,op="gt"):
        if nomem: return []
        if name not in stubs:
            stubs[name]=1
            rare.extend([label(f"L_spin{name}"), raw(f"ds_read_b32 v{r}, v{vFA}"), raw("s_waitcnt lgkmcnt(0)"),
                     raw(f"v_cmp_{op}_u32 vcc, {val}, v{r}"), raw(f"s_cbranch_vccnz L_spin{name}"), raw(f"s_cbranch_execnz L_back{name}" if dry else f"s_branch L_back{name}")])
        return [I(f"v_cmp_{op}_u32 vcc, {val}, v{r}\n    s_cbranch_vccnz L_spin{name}\nL_back{name}:",'valu',rd=[r],sw=['vcc'],cost=8)]
    def signal(val): return [] if nosig else [valu("v_mov_b32",vSG,val), I(f"ds_write_b32 v{vSA}, v{vSG}",'dsw',rd=[vSA,vSG])]
    def FR(slot): return vFR+4*(slot%NFR)
    def kind(g):
        blk,o=divmod(g,8)
        return ('K',o+8*(blk//2)) if blk%2==0 else ('V',o+8*(blk//2))
    def qk(n,f,first=False):
        u,s=divmod(n,8); d=vSa if u==0 else vSb
        c0=vNB if (cinit and not first) else "0"
        return mfma32(d,f,vQ+4*s,c0 if s==0 else d)
    def qk_rd(n,f):
        u,s=divmod(n,8); return [dsr128(f,vKC,u*512+s*32)]
    def pv(n,f):
        t,dt=divmod(n,4); return mfma32(vO+16*dt,f,vP+4*t,vO+16*dt)
    def pv_rd(n,f):
        t,dt=divmod(n,4); return [dsrtr(f+2*u,vVC,t*4352+u*512+64*dt) for u in range(2)]
    def s_mf(g):
        k,n=kind(g); return qk(n,FR(g)) if k=='K' else pv(n,FR(g))
    def s_rd(g):
        k,n=kind(g); return qk_rd(n,FR(g)) if k=='K' else pv_rd(n,FR(g))
    hseq=[(0,t,dl) for t in range(4) for dl in range(2)]+[(1,t,dl) for t in range(4) for dl in range(2)]
    def hv(n):
        half,t,dl=hseq[n]; dt=2*half+dl; return mfma32(vO+16*dt,FR(n),vP+4*t,vO+16*dt)
    def hv_rd(n):
        half,t,dl=hseq[n]; return [dsrtr(FR(n)+2*u,vVH,half*8704+t*2176+u*512+64*dl) for u in range(2)]
    def crosshalf(o,reg,tmp,op):
        o.append(valu("v_mov_b32",tmp,reg)); o.append(perm32(reg,tmp)); o.append(valu(op,reg,reg,tmp))
    def max_blk(src,dst,first):
        o=[valu("v_max3_f32",dst,src,src+1,src+2) if first else valu("v_max3_f32",dst,dst,src,src+1)]
        k=3 if first else 2
        while k+1<16: o.append(valu("v_max3_f32",dst,dst,src+k,src+k+1)); k+=2
        if k<16: o.append(valu("v_max_f32",dst,dst,src+k))
        return o
    def exp_stream(src,pre):
        seq=[]; n=16
        for i in range(n+2):
            if i<n and pre=='fma': seq.append((valu("v_fma_f32",src+i,src+i,sC,vNM),max(0,i-2)))
            if i<n and pre=='add': seq.append((valu("v_add_f32",src+i,src+i,vNM),max(0,i-2)))
            if 0<=i-1<n: seq.append((trans("v_exp_f32",src+i-1,src+i-1),max(0,i-2)))
            if 0<=i-2<n:
                l=vLa if (i-2)%2==0 else vLb; seq.append((valu("v_add_f32",l,l,src+i-2),i-1))
        return seq
    def cvt(half,k):
        src=vSa if half==0 else vSb
        return valu("v_cvt_pk_bf16_f32",vP+8*half+k,src+2*k,src+2*k+1)

    assert pf<=7
    fixed={g:[] for g in range(32)}
    gK=32-pf; gV=8-pf
    rot=gK-fl
    def nxt(g,kd):
        o=[]; n=g+pf-32
        if kd=='K':
            if g==rot: o+=[flag_read(vFK), salu(f"s_add_u32 {sKo}, {sKo}, {SS}")]
            if g==rot+1: o+=[salu(f"s_cmp_eq_u32 {sKo}, {4*SS}"), salu(f"s_cselect_b32 {sKo}, 0, {sKo}")]
            if g==gK-1: o+=[valu("v_add_u32",vKC,sKo,vKA)]
            if g==gK: o+=flag_check(vFK,sNK,"K")+stamp('LK')
            if n>=0: o+=s_rd(n)
            if g==(gV-fl)%32: o+=[flag_read(vFV), valu("v_add_u32",vVC,sKo,vVA)]
        else:
            if g==rot: o+=[flag_read(vFK)]
            if g==gK: o+=flag_check(vFK,"18","H0")+stamp('h0')
            if n>=0: o+=hv_rd(n)
        return o
    assert (gV-fl)%32>31-pf and (gV-fl)%32>=rot
    for g in range(32):
        n=g+pf
        if g==gV: fixed[g]+=flag_check(vFV,sNK,"V",op="ge")+stamp('LV')
        if n<32: fixed[g]+=s_rd(n)
        if n==31: fixed[g]+=signal(sNK)
        if g==rot-2: fixed[g]+=[salu(f"s_add_u32 {sNK}, {sNK}, 2")]
        if g==rot-1: fixed[g]+=[salu(f"s_cmp_lt_u32 {sNK}, 18")]
    def fixed_cost(g):
        c=sum(x.cost for x in fixed[g])+sum(x.cost for x in nxt(g,'K'))
        if (g+1)%G==0: c+=4
        if g==rot: c+=8
        return c
    pre=None if cinit else 'fma'
    a0=7+HZ; b0=23+HZ
    sm={g:[] for g in range(a0,a0+32)}
    A=exp_stream(vSa,pre); B=exp_stream(vSb,pre); ai=0; bi=0; adone=0; bdone=0; ca=0; cb=0; carry=0
    for g in range(a0,a0+32):
        room=budget+carry-fixed_cost(g%32); used=0
        while True:
            cand=None
            if ca<8 and adone>=2*ca+2 and g>=(11 if ca<4 else 15): cand=('ca',cvt(0,ca))
            elif ai<len(A): cand=('a',A[ai][0])
            elif cb<8 and bdone>=2*cb+2 and g>=(27 if cb<4 else 31): cand=('cb',cvt(1,cb))
            elif bi<len(B) and g>=b0: cand=('b',B[bi][0])
            if cand is None: break
            force = (g==31 and ca<8) or (g==a0+31)
            if used+cand[1].cost>room and not force: break
            sm[g].append(cand[1]); used+=cand[1].cost
            if cand[0]=='ca': ca+=1
            elif cand[0]=='cb': cb+=1
            elif cand[0]=='a': adone=A[ai][1]; ai+=1
            else: bdone=B[bi][1]; bi+=1
        carry=max(-8,min(4,room-used))
    assert ca==8 and cb==8 and ai==len(A) and bi==len(B),(ca,cb,ai,bi)
    lastsm=max(g for g in sm if sm[g])
    def smgap(g): return (sm.get(g,[]) if g>=a0 else sm.get(g+32,[]))
    def touch_for(mf_reads):
        ex=set()
        for r in mf_reads: ex|=r.wr
        return I("",'touch',rd=ex,cost=0)
    def slot_mfma(g):
        o=[]
        if G>1 and g%G==0:
            nx=[]
            for k in range(1,G): nx+=s_rd(g+k)
            o.append(touch_for(nx))
        o.append(s_mf(g))
        return o
    PRO=[]
    PRO+=[flag_read(vFV)]+flag_check(vFV,"s46","Q")+stamp('q')
    for s in range(8): PRO.append(dsr128(vQ+4*s,vT1,32*s))
    PRO+=[valu("v_mov_b32",vLa,"0"),valu("v_mov_b32",vLb,"0"),valu("v_mov_b32",vKC,vKA)]
    if cinit:
        PRO+=[valu("v_mov_b32",vRL,sC),valu("v_mov_b32",vRL+1,sC)]
        t=vE
        for r in range(34):
            if r<32:
                a=t+2*(r%8); PRO+=[valu("v_lshlrev_b32",a,"16",vQ+r),valu("v_and_b32",a+1,"0xffff0000",vQ+r)]
            if 1<=r<33:
                b=t+2*((r-1)%8); PRO.append(pkmul(b,b,vRL))
            if r>=2:
                b=t+2*((r-2)%8); PRO.append(valu("v_cvt_pk_bf16_f32",vQ+r-2,b,b+1))
    if dry: PRO+=[raw("s_cbranch_execz L_q2"),label("L_q1")]
    PRO+=[flag_read(vFK)]+flag_check(vFK,"3","K0")+stamp('k0')
    for n in range(pf): PRO+=qk_rd(n,FR(n))
    st=max_blk(vSa,vMX,True); crosshalf(st,vMX,vT1,"v_max_f32")
    if cinit:
        st.append(valu("v_sub_f32",vNM,"0",vMX))
        st+=[valu("v_add_f32",vSa+i,vSa+i,vNM) for i in range(16)]
        st+=[valu("v_sub_f32",vNB+i,"0",vMX) for i in range(16)]
    else: st+=[valu("v_mul_f32",vNM,sC,vMX),valu("v_sub_f32",vNM,"0",vNM)]
    subB=[valu("v_add_f32",vSb+i,vSb+i,vNM) for i in range(16)] if cinit else []
    for g in range(a0,32):
        if g==b0: st+=subB
        st+=sm[g]
    si=0
    for g in range(16):
        PRO.append(qk(g,FR(g),True))
        if g+pf<16: PRO+=qk_rd(g+pf,FR(g+pf))
        if g+pf==15: PRO+=signal("1")
        if g>=a0:
            c=0
            while si<len(st) and c<24: PRO.append(st[si]); c+=st[si].cost; si+=1
    rem=st[si:]; cut=max(0,len(rem)-24)
    PRO+=rem[:cut]
    PRO+=[salu(f"s_mov_b32 {sKo}, {SS}"),salu(f"s_mov_b32 {sNK}, 4"),valu("v_add_u32",vKC,str(SS),vKA),valu("v_add_u32",vVC,str(SS),vVA),flag_read(vFK)]+flag_check(vFK,"4","K1")+stamp('k1')
    for g in range(gK,32):
        PRO+=[x for x in nxt(g,'K') if x.kind=='dsr']
    PRO+=rem[cut:]
    PRO+=[raw("s_cbranch_execz L_drydone")] if dry else []
    PRO+=[raw("s_branch L_slot0")]
    def body_hi(kd):
        o=[]
        for g in range(rot,32):
            if g>rot: o+=slot_mfma(g)
            o+=fixed[g]+nxt(g,kd)+smgap(g)
        return o
    def body_lo():
        o=[]
        for g in range(0,rot+1):
            o+=slot_mfma(g)
            if g<rot: o+=fixed[g]+smgap(g)
        return o
    HI=body_hi('K'); LO=body_lo(); HF=body_hi('H')
    def ep_scale(dt,pk=False):
        o=vO+16*dt
        if pk: return [pkmul(o+2*k,o+2*k,vRL) for k in range(8)]
        return [valu("v_mul_f32",o+k,o+k,vRL) for k in range(16)]
    def ep_cvt(dt):
        o=vO+16*dt; return [valu("v_cvt_pk_bf16_f32",o+k,o+2*k,o+2*k+1) for k in range(8)]
    def ep_wr(dt):
        o=vO+16*dt; return [dsw64(vWA,o+2*k,(dt%2)*64+16*k) for k in range(4)]
    def ep_rd(half): return [dsr128(vE+16*half+4*i,vRA,i*8*144) for i in range(4)]
    skn=[0]
    def ep_st(half,i,guard=True):
        so="0" if i<2 else "s45"; r=vE+16*half+4*i
        t=f"buffer_store_dwordx4 {vr(r,4)}, v{vOA}, s[32:35], {so} offen offset:{(i%2)*2048+half*128} {stflags}".rstrip()
        return I(t,'st4',rd=[vOA]+R(r,4),cost=16)
    def guarded(lst):
        if not dry: return lst
        n=skn[0]; skn[0]+=1
        return [raw(f"s_cbranch_execz L_sk{n}")]+lst+[label(f"L_sk{n}")]
    rest=[]
    for g in range(32,a0+32): rest+=sm[g]
    fin=[valu("v_add_f32",vLa,vLa,vLb)]
    crosshalf(fin,vLa,vT1,"v_add_f32")
    fin.append(trans("v_rcp_f32",vRL,vLa))
    br="" if nomem else ("\n    s_cbranch_vccnz L_slow" if not forceslow else "\n    s_cbranch_execnz L_slow")
    fin.append(I(f"v_cmp_nge_f32 vcc, {sTHR}, v{vLa}"+br,'valu',rd=[vLa],sw=['vcc'],sr=[sTHR],cost=8))
    fin.append(valu("v_mov_b32",vRL+1,vRL))
    FIN=[]
    q=list(rest);
    def take(q,c):
        o=[]
        while q and c>0: x=q.pop(0); o.append(x); c-=x.cost
        return o
    per=sum(x.cost for x in rest)/4.0
    for n in range(8):
        if n==4: FIN+=q; q=list(fin)
        FIN.append(hv(n))
        if n+pf<8: FIN+=hv_rd(n+pf)
        if n==3: FIN+=[flag_read(vFV)]
        if n==5: FIN+=flag_check(vFV,"19","H1")+stamp('h1')+hv_rd(8)+hv_rd(9)
        if n==6: FIN+=hv_rd(10)+hv_rd(11)+[flag_read(vFK)]
        FIN+=take(q,per if n<4 else 12)
    FIN+=q
    lo=ep_scale(0)+ep_cvt(0)+ep_wr(0)+ep_scale(1)+ep_cvt(1)+ep_wr(1)+ep_rd(0)
    FIN.append(hv(8)); FIN.append(hv(9))
    FIN+=flag_check(vFK,"20","H2")+stamp('h2')+hv_rd(12)+hv_rd(13)+hv_rd(14)+hv_rd(15)
    q=lo
    for n in range(10,16):
        FIN+=take(q,40)
        FIN.append(hv(n))
    FIN+=q
    T=(lambda n: stamp(n)) if tst else (lambda n: [])
    FIN+=T('t0')
    FIN+=guarded([ep_st(0,0),ep_st(0,1)])+T('t1')
    FIN+=ep_scale(2,True)+T('t2')+ep_cvt(2)+T('t3')+ep_wr(2)+T('t4')
    FIN+=guarded([ep_st(0,2),ep_st(0,3)])+T('t5')
    FIN+=ep_scale(3,True)+ep_cvt(3)+T('t6')+ep_wr(3)+T('t7')+ep_rd(1)+T('t8')
    FIN+=guarded([ep_st(1,0)]+T('t9')+[ep_st(1,i) for i in range(1,4)])
    FIN+=stamp('st')

    MK=lambda n: I(n,'mark',cost=0)
    def process(trace):
        p=insert_lgkm(trace); p=[x for x in p if x.kind!='touch']
        return p
    def ws0(x): return x
    trace=PRO+[MK('a')]+LO+[MK('b')]+HI+[MK('c')]+LO+[MK('d')]+HI+[MK('e')]+LO+[MK('f')]+HF+[MK('g')]+FIN
    for x in trace:
        if x.kind=='mark': x.kind='label'; x.tag='mark'
    p=process(trace); p,added=pad_hazards(p,verbose)
    def seg(a,b):
        ia=0 if a is None else [i for i,x in enumerate(p) if x.tag=='mark' and x.text==a][0]+1
        ib=len(p) if b is None else [i for i,x in enumerate(p) if x.tag=='mark' and x.text==b][0]
        return p[ia:ib]
    PROf=seg(None,'a'); LOf=seg('e','f'); HIf=seg('d','e'); HFf=seg('f','g'); FINf=seg('g',None)
    assert [x.text for x in seg('c','d')]==[x.text for x in LOf]
    assert [x.text for x in seg('b','c')]==[x.text for x in HIf]
    br=raw("s_cbranch_scc1 L_top")
    chk=PROf+LOf+[br]+HIf+LOf+[br]+HIf+LOf+[br]+HFf+FINf
    c2=insert_lgkm(chk); assert len(c2)==len(chk),"lgkm fold problem"
    c3,ad=pad_hazards(chk); assert ad==0,"hazard fold problem"
    full=PROf+(LOf+[br]+HIf)*6+LOf+[br]+HFf+FINf
    sys.stderr.write(f"consumer: pro {len(PROf)} loop {len(HIf)+len(LOf)} fin {len(HFf)+len(FINf)} nops {added}; est loop {(est_cycles((HIf+LOf+[br])*3)-est_cycles(HIf+LOf+[br]))/2} pro {est_cycles(PROf)} fin {est_cycles(HFf+FINf)} total {est_cycles(full)} lastsm {lastsm}\n")

    S=[]; sa=vSa; kf=vE
    S+=[label("L_slow"), raw("s_waitcnt vmcnt(0) lgkmcnt(0)"), nop(15), nop(15)]
    S+=[valu("v_mov_b32",vMX,"0xff800000"), raw("s_mov_b32 s46, 0"), label("L_s1")]
    def kload():
        return [raw(f"buffer_load_dwordx4 {vr(kf+4*s,4)}, v{vGK}, s[20:23], s46 offen offset:{32*s}") for s in range(8)]+[raw("s_waitcnt vmcnt(0)")]
    S+=kload()+[mfma32(sa,kf+4*s,vQ+4*s,"0" if s==0 else sa) for s in range(8)]+max_blk(sa,vMX,False)
    S+=[raw("s_add_u32 s46, s46, 8192"),raw("s_cmp_lt_u32 s46, 131072"),raw("s_cbranch_scc1 L_s1")]
    crosshalf(S,vMX,vT1,"v_max_f32")
    S+=[valu("v_sub_f32",vNM,"0",vMX)] if cinit else [valu("v_mul_f32",vNM,sC,vMX),valu("v_sub_f32",vNM,"0",vNM)]
    S+=[valu("v_mov_b32",vLa,"0"),valu("v_mov_b32",vLb,"0")]+[valu("v_mov_b32",vO+i,"0") for i in range(64)]
    S+=[raw("s_mov_b32 s46, 0"), label("L_s2")]
    S+=kload()+[mfma32(sa,kf+4*s,vQ+4*s,"0" if s==0 else sa) for s in range(8)]
    S+=[x for x,_ in exp_stream(sa,'add' if cinit else 'fma')]+[cvt(0,k) for k in range(8)]
    for t in range(2):
        for r in range(4):
            S+=[raw(f"s_add_u32 m0, s47, {r*1088}"),raw(f"s_add_u32 s19, s46, {t*4096+r*256}"),raw(f"buffer_load_dwordx4 v{vGV}, s[24:27], s19 offen lds")]
        S.append(raw("s_waitcnt vmcnt(0)"))
        for dt in range(4): S+=[raw(f"ds_read_b64_tr_b16 {vr(kf+4*dt+2*u,2)}, v{vT2} offset:{u*512+64*dt}") for u in range(2)]
        S.append(raw("s_waitcnt lgkmcnt(0)"))
        S+=[mfma32(vO+16*dt,kf+4*dt,vP+4*t,vO+16*dt) for dt in range(4)]
    S+=[nop(15),raw("s_add_u32 s46, s46, 8192"),raw("s_cmp_lt_u32 s46, 131072"),raw("s_cbranch_scc1 L_s2")]
    S.append(valu("v_add_f32",vLa,vLa,vLb)); crosshalf(S,vLa,vT1,"v_add_f32")
    S+=[trans("v_rcp_f32",vRL,vLa),nop(1)]
    for half in range(2):
        for dt in (2*half,2*half+1): S+=ep_scale(dt)+ep_cvt(dt)+ep_wr(dt)
        S+=ep_rd(half)+[raw("s_waitcnt lgkmcnt(0)")]+[ep_st(half,i) for i in range(4)]
    S.append(raw("s_endpgm"))
    S,_=pad_hazards(S)

    H=[]; e=H.append
    e(f"; @launch grid=(256,1,1) block=(512,1,1) lds={lds}")
    e('.amdgcn_target "amdgcn-amd-amdhsa--gfx950"')
    e(f".text\n.globl {KN}\n.p2align 8\n.type {KN},@function\n{KN}:")
    e("s_load_dwordx4 s[4:7], s[0:1], 0")
    e("s_load_dwordx4 s[8:11], s[0:1], 16")
    if stamps:
        e("s_load_dwordx2 s[12:13], s[0:1], 40")
        e("s_memrealtime s[96:97]\ns_memtime s[98:99]")
    if diag is not None: e("s_memrealtime s[96:97]")
    if diag=='skew': e("s_load_dwordx2 s[12:13], s[0:1], 32")
    e("s_cmp_ge_u32 s2, 256\ns_cbranch_scc1 L_end")
    e("v_lshrrev_b32 v1, 6, v0\nv_and_b32 v2, 63, v0")
    if xmap==0: e("s_and_b32 s14, s2, 7\ns_lshr_b32 s15, s2, 4\ns_lshl_b32 s15, s15, 3\ns_add_u32 s14, s14, s15")
    else: e("s_and_b32 s14, s2, 7\ns_lshr_b32 s15, s2, 4\ns_lshl_b32 s14, s14, 4\ns_add_u32 s14, s14, s15")
    e("v_readfirstlane_b32 s16, v1")
    e("s_bfe_u32 s15, s2, 0x10003")
    e("s_lshl_b32 s17, s14, 17")
    e("s_lshl_b32 s18, s14, 16\ns_lshl_b32 s19, s15, 15\ns_add_u32 s18, s18, s19")
    e(f"v_lshlrev_b32 v{vSA}, 2, v0\nv_add_u32 v{vSA}, {FB}, v{vSA}\nv_mov_b32 v{vSG}, 0\nds_write_b32 v{vSA}, v{vSG}")
    e(f"v_and_b32 v3, 3, v2\nv_lshlrev_b32 v3, 8, v3\nv_lshl_add_u32 v{vFA}, v2, 2, v3")
    e("s_cmp_ge_u32 s16, 4\ns_cbranch_scc1 L_consumer")
    if nomem==1: e("s_waitcnt lgkmcnt(0)\ns_barrier\ns_endpgm")
    if lprio: e(f"s_setprio {lprio}")
    e("s_getpc_b64 s[36:37]\nL_pc:")
    e("s_add_u32 s36, s36, L_table-L_pc\ns_addc_u32 s37, s37, 0\ns_mov_b32 s38, 128\ns_mov_b32 s39, 0x20000")
    e("v_lshrrev_b32 v3, 4, v2\nv_and_b32 v4, 15, v2\nv_lshlrev_b32 v4, 4, v4")
    e("s_lshl_b32 s44, s16, 8")
    e("v_add_u32 v4, s44, v4")
    e("v_lshl_add_u32 v6, v3, 12, v4\nv_lshl_add_u32 v7, v3, 10, v4")
    e("s_mul_i32 s42, s16, 1040\ns_mul_i32 s43, s16, 1088")
    e(f"s_add_u32 s44, s44, {FB}")
    e(f"s_add_u32 s46, s42, {QOFF[0]}")
    e("s_mov_b32 s30, 32768\ns_mov_b32 s31, 0x20000\ns_mov_b32 s22, 131072\ns_mov_b32 s23, 0x20000\ns_mov_b32 s26, 131072\ns_mov_b32 s27, 0x20000")
    e("s_movk_i32 s40, 3136")
    e("s_waitcnt lgkmcnt(0)")
    ldiag = diag if isinstance(diag,str) and diag.startswith('l') else None
    lst=[0]
    def lstamp(name):
        if ldiag==name: e("s_memrealtime s[60:61]")
        if stamps:
            i=lst[0]; lst[0]+=1; e(f"s_memtime s[{50+2*i}:{51+2*i}]")
    lstamp('l0')
    e("s_add_u32 s28, s4, s18\ns_addc_u32 s29, s5, 0")
    def kq_stage(srd,m0base,soff):
        e(f"s_mov_b32 m0, {m0base}")
        for g in range(4):
            if g==0: e("s_nop 0")
            e(f"buffer_load_dwordx4 v6, {srd}, {soff} offen offset:{g*1024} {ldflags} lds")
            if g<3: e("s_add_u32 m0, m0, s40\ns_nop 0")
    def lflag(soff):
        if noflag: e("s_nop 0"); return
        if flagk==0: e(f"s_mov_b32 m0, s44\ns_nop 0\nbuffer_load_dword v{vSG}, s[36:39], {soff} offen lds")
        if flagk==1: e(f"s_mov_b32 m0, s44\ns_nop 0\nbuffer_load_dword v{vSG}, s[36:39], {soff} offen nt lds")
        if flagk==2: e(f"s_mov_b32 m0, s44\ns_mov_b64 exec, 1\nbuffer_load_dwordx4 v{vSG}, s[36:39], {soff} offen nt lds\ns_mov_b64 exec, -1")
        if flagk==3: e(f"s_mov_b32 m0, s44\ns_mov_b64 exec, 1\nbuffer_load_dword v{vSG}, s[36:39], {soff} offen lds\ns_mov_b64 exec, -1")
        if flagk==4: e(f"s_mov_b32 m0, s44\ns_nop 0\nbuffer_load_dword v{vSG}, s[28:31], 0 offen nt lds")
    kq_stage("s[28:31]","s46","0")
    lflag("4")
    lstamp('l1')
    e(f"s_add_u32 s46, s42, {QOFF[1]}\ns_movk_i32 s45, 16384")
    kq_stage("s[28:31]","s46","s45"); lflag("8")
    e("s_add_u32 s20, s6, s17\ns_addc_u32 s21, s7, 0")
    kq_stage("s[20:23]","s42","0"); lflag("12")
    lstamp('l2')
    e("s_add_u32 s24, s8, s17\ns_addc_u32 s25, s9, 0")
    e(f"v_add_u32 v{vFA}, {FB+1024}, v{vFA}")
    e("s_lshr_b32 s46, s16, 1\ns_lshl_b32 s46, s46, 12\ns_and_b32 s47, s16, 1\ns_lshl_b32 s47, s47, 9\ns_add_u32 s46, s46, s47")
    e("v_and_b32 v9, 7, v2\nv_lshlrev_b32 v9, 4, v9\nv_lshl_add_u32 v9, v3, 10, v9\nv_bfe_u32 v5, v2, 3, 1\nv_lshl_add_u32 v9, v5, 8, v9\nv_add_u32 v9, s46, v9")
    e(f"s_mov_b32 s46, {SS}\ns_mov_b32 s49, 16\ns_add_u32 s43, s43, {KSL}")
    e("s_barrier")
    W=(4 if noflag else 5)*(depth-1)
    e("L_lloop:")
    if not nomem:
        e("s_cmp_lt_u32 s49, 32\ns_cbranch_scc1 L_lgo\ns_lshr_b32 s14, s49, 2\ns_sub_u32 s14, s14, 6\ns_cmp_lt_u32 s49, 48\ns_cselect_b32 s14, 1, s14")
        e(f"s_branch L_lx\nL_lw:\ns_sleep {lsleep}\nL_lx:\nds_read_b32 v8, v{vFA}\ns_waitcnt lgkmcnt(0)\nv_cmp_gt_u32 vcc, s14, v8\ns_cbranch_vccnz L_lw\nL_lgo:")
    e("s_add_u32 s47, s46, s42")
    for _ in range(xtra): e(xk)
    e(f"s_waitcnt vmcnt({W})")
    kq_stage("s[20:23]","s47","s45"); lflag("s49")
    e("s_sub_u32 s15, s45, 16384\ns_add_u32 s49, s49, 4")
    e(f"s_waitcnt vmcnt({W})")
    e("s_add_u32 m0, s46, s43")
    for g in range(4):
        if g==0: e("s_nop 0")
        e(f"buffer_load_dwordx4 v7, s[24:27], s15 offen {ldflags} lds")
        if g<3: e("s_add_u32 m0, m0, 4352\ns_add_u32 s15, s15, 4096")
    lflag("s49")
    e(f"s_add_u32 s49, s49, 4\ns_add_u32 s45, s45, 16384\ns_add_u32 s46, s46, {SS}\ns_cmp_eq_u32 s46, {4*SS}\ns_cselect_b32 s46, 0, s46")
    e("s_cmp_lt_u32 s49, 72\ns_cbranch_scc1 L_lloop")
    lstamp('l3')
    if not nomem: e(f"s_branch L_lx2\nL_lw2:\ns_sleep {lsleep}\nL_lx2:\nds_read_b32 v8, v{vFA}\ns_waitcnt lgkmcnt(0)\nv_cmp_gt_u32 vcc, 12, v8\ns_cbranch_vccnz L_lw2")
    e(f"s_waitcnt vmcnt({W})")
    for half in range(2):
        for g in range(2):
            e(f"s_add_u32 m0, s43, {half*8704+g*4352}\ns_mov_b32 s45, {7*16384+g*8192+half*128}")
            e(f"buffer_load_dwordx4 v9, s[24:27], s45 offen {ldflags} lds")
            v={(0,1):18,(1,0):19,(1,1):20}.get((half,g))
            if v: e(f"s_movk_i32 s45, {4*v}"); lflag("s45")
    e("s_waitcnt vmcnt(0)")
    lstamp('l4')
    if stamps:
        e("s_memrealtime s[94:95]\ns_waitcnt lgkmcnt(0)")
        e("s_mov_b32 s36, s12\ns_mov_b32 s37, s13\ns_mov_b32 s38, 0x1000000\ns_mov_b32 s39, 0x20000")
        e("s_cmp_lg_u32 s16, 0\ns_cbranch_scc1 L_end")
        e("s_lshl_b32 s45, s2, 8\ns_add_u32 s45, s45, 65536\nv_mov_b32 v7, s45")
        for i,r in enumerate([96,98]+[50+2*min(i,lst[0]-1) for i in range(scnt[0]+2)]+[94]):
            e(f"v_mov_b32 v8, s{r}\nbuffer_store_dword v8, v7, s[36:39], 0 offen offset:{4*i}\ns_nop 1")
    if ldiag:
        e(f"s_memrealtime s[62:63]\ns_waitcnt lgkmcnt(0)\ns_sub_u32 s67, s60, s96\ns_mul_i32 s67, s67, {dk}\ns_add_u32 s67, s67, 500\ns_min_u32 s67, s67, 100000\nL_lspin:\ns_memrealtime s[64:65]\ns_waitcnt lgkmcnt(0)\ns_sub_u32 s66, s64, s62\ns_cmp_lt_u32 s66, s67\ns_cbranch_scc1 L_lspin")
    e("L_end:\ns_endpgm")
    e(".p2align 7\nL_table:\n"+"\n".join(f".long {i}" for i in range(32)))
    e("L_consumer:")
    if cprio: e(f"s_setprio {cprio}")
    e("s_sub_u32 s16, s16, 4")
    e(f"v_add_u32 v{vFA}, {FB}, v{vFA}")
    e("v_lshrrev_b32 v4, 5, v2\nv_and_b32 v5, 15, v2\nv_bfe_u32 v6, v2, 4, 1")
    e(f"v_mul_u32_u24 v{vKA}, 1040, v5\nv_lshl_add_u32 v{vKA}, v6, 8, v{vKA}\nv_lshl_add_u32 v{vKA}, v4, 4, v{vKA}")
    e("v_lshrrev_b32 v7, 2, v5\nv_and_b32 v8, 3, v5")
    e("v_lshlrev_b32 v3, 8, v4\nv_lshl_add_u32 v3, v6, 5, v3\nv_lshl_add_u32 v3, v8, 3, v3")
    e(f"v_mul_u32_u24 v{vT2}, 1088, v7\nv_add_u32 v{vT2}, v{vT2}, v3")
    e(f"v_add_u32 v{vVA}, {KSL}, v{vT2}\nv_mov_b32 v{vVC}, v{vVA}\nv_mov_b32 v{vKC}, v{vKA}")
    e(f"v_lshrrev_b32 v8, 1, v7\nv_mul_u32_u24 v{vVH}, 1088, v8\nv_and_b32 v8, 1, v7\nv_lshl_add_u32 v{vVH}, v8, 7, v{vVH}\nv_add_u32 v{vVH}, v{vVH}, v3\nv_add_u32 v{vVH}, {VOFF(7)}, v{vVH}")
    e(f"s_mul_i32 s47, s16, {STG}\ns_add_u32 s47, s47, {SB}")
    e(f"v_add_u32 v{vT2}, s47, v{vT2}")
    e(f"v_and_b32 v3, 31, v2\nv_mul_u32_u24 v{vWA}, 144, v3\nv_lshl_add_u32 v{vWA}, v4, 3, v{vWA}\nv_add_u32 v{vWA}, s47, v{vWA}")
    e(f"v_lshlrev_b32 v{vGK}, 8, v3\nv_lshl_add_u32 v{vGK}, v4, 4, v{vGK}")
    e(f"v_lshrrev_b32 v3, 4, v2\nv_lshlrev_b32 v{vGV}, 10, v3\nv_lshl_add_u32 v{vGV}, v5, 4, v{vGV}")
    e(f"v_lshrrev_b32 v3, 3, v2\nv_and_b32 v8, 7, v2\nv_mul_u32_u24 v{vRA}, 144, v3\nv_lshl_add_u32 v{vRA}, v8, 4, v{vRA}\nv_add_u32 v{vRA}, s47, v{vRA}")
    e(f"s_lshl_b32 s45, s16, 13\nv_lshlrev_b32 v{vOA}, 8, v3\nv_lshl_add_u32 v{vOA}, v8, 4, v{vOA}\nv_add_u32 v{vOA}, s45, v{vOA}")
    e(f"v_mov_b32 v{vT1}, v{vKA}")
    if dry:
        e("s_mov_b64 exec, 0")
        e("s_cmp_eq_u32 s16, 0\ns_cbranch_scc1 L_main\ns_cmp_eq_u32 s16, 1\ns_cbranch_scc1 L_top\ns_cmp_eq_u32 s16, 2\ns_cbranch_scc1 L_q1\ns_branch L_q3")
        e("L_drydone:\ns_mov_b64 exec, -1")
        if diag=='c1': e("s_memrealtime s[60:61]")
        if stamps: e("s_memtime s[92:93]")
    e(f"s_mov_b32 {sC}, {f2u(C_SCALE):#x}\ns_mov_b32 {sTHR}, {f2u(lthr):#x}")
    e(f"s_lshr_b32 s46, s16, 1\ns_mov_b32 s45, {QOFF[0]}\ns_cmp_eq_u32 s46, 0\ns_cselect_b32 s45, s45, {QOFF[1]}\ns_and_b32 s19, s16, 1\ns_lshl_b32 s19, s19, 9\ns_add_u32 s45, s45, s19\ns_add_u32 s46, s46, 1")
    e(f"v_add_u32 v{vT1}, s45, v{vKA}")
    e(f"s_mov_b32 s45, 4096")
    e("s_waitcnt lgkmcnt(0)\ns_barrier")
    e("s_add_u32 s32, s10, s18\ns_addc_u32 s33, s11, 0\ns_mov_b32 s34, 32768\ns_mov_b32 s35, 0x20000")
    e("s_add_u32 s20, s6, s17\ns_addc_u32 s21, s7, 0\ns_mov_b32 s22, 131072\ns_mov_b32 s23, 0x20000")
    e("s_add_u32 s24, s8, s17\ns_addc_u32 s25, s9, 0\ns_mov_b32 s26, 131072\ns_mov_b32 s27, 0x20000")
    if diag=='skew':
        e("s_mov_b32 s36, s12\ns_mov_b32 s37, s13\ns_mov_b32 s38, 256\ns_mov_b32 s39, 0x20000")
        e("s_not_b32 s61, s96\nv_mov_b32 v3, 0\nv_mov_b32 v4, s61\ns_mov_b64 exec, 1\nbuffer_atomic_umax v4, v3, s[36:39], 0 offen\ns_mov_b64 exec, -1")
    for i in range(64): e(f"v_mov_b32 v{vO+i}, 0")
    if touch:
        e("v_mov_b32 v3, 0\ns_cmp_lg_u32 s16, 0\ns_cbranch_scc1 L_notouch")
        if touch&1: e("buffer_load_dword v4, v3, s[24:27], 0 offen nt")
        if touch&2: e("buffer_load_dword v5, v3, s[32:35], 0 offen nt")
        e("L_notouch:")
    e(".p2align 3\nL_main:")
    e(text(PROf))
    e(".p2align 3\nL_top:")
    e(text(HIf))
    e("L_slot0:")
    e(text(LOf))
    if dry: e("    s_cbranch_execz L_drydone")
    e("    s_cbranch_scc1 L_top")
    e("L_q2:")
    e(text(HFf))
    if dry:
        k=[i for i,x in enumerate(FINf) if x.kind=='mfma'][6]
        e(text(FINf[:k])); e("    s_cbranch_execz L_drydone\nL_q3:"); e(text(FINf[k:]))
        e("    s_cbranch_execz L_stubs")
    else: e(text(FINf))
    if stamps:
        ns=scnt[0]
        e("s_waitcnt vmcnt(0)")
        e(f"s_memtime s[{50+2*ns}:{51+2*ns}]\ns_memrealtime s[{52+2*ns}:{53+2*ns}]\ns_waitcnt lgkmcnt(0)")
        e("s_mov_b32 s36, s12\ns_mov_b32 s37, s13\ns_mov_b32 s38, 0x1000000\ns_mov_b32 s39, 0x20000")
        e("s_cmp_lg_u32 s16, 3\ns_cbranch_scc1 L_end2")
        e("s_lshl_b32 s45, s2, 8\nv_mov_b32 v7, s45")
        regs=[96,98,92 if dry else 98]+[50+2*i for i in range(ns+2)]
        for i,r in enumerate(regs):
            e(f"v_mov_b32 v8, s{r}\nbuffer_store_dword v8, v7, s[36:39], 0 offen offset:{4*i}\ns_nop 1")
        sys.stderr.write(f"nstamps={len(regs)}\n")
        e("L_end2:")
    if diag is not None and not ldiag:
        e("s_waitcnt vmcnt(0)")
        if diag=='end': e("s_memrealtime s[60:61]")
        if diag=='skew':
            e("v_mov_b32 v3, 0\nv_mov_b32 v4, 0\ns_mov_b64 exec, 1\nbuffer_atomic_umax v4, v3, s[36:39], 0 offen sc0\ns_mov_b64 exec, -1\ns_waitcnt vmcnt(0)\nv_readfirstlane_b32 s61, v4\ns_nop 3\ns_not_b32 s61, s61\ns_mov_b32 s60, s96\ns_mov_b32 s96, s61")
        e(f"s_memrealtime s[62:63]\ns_waitcnt lgkmcnt(0)\ns_sub_u32 s67, s60, s96\ns_mul_i32 s67, s67, {dk}\ns_min_u32 s67, s67, 100000\nL_spin:\ns_memrealtime s[64:65]\ns_waitcnt lgkmcnt(0)\ns_sub_u32 s66, s64, s62\ns_cmp_lt_u32 s66, s67\ns_cbranch_scc1 L_spin")
    e("s_endpgm")
    e("L_stubs:")
    e(text(rare))
    if dry: e("    s_branch L_drydone")
    e("L_codeend:")
    e(text(S))
    e(f'.section .rodata,"a"\n.p2align 6\n.amdhsa_kernel {KN}')
    e(f"  .amdhsa_next_free_vgpr {nvgpr}\n  .amdhsa_next_free_sgpr 102\n  .amdhsa_accum_offset {nvgpr}\n  .amdhsa_group_segment_fixed_size 0\n  .amdhsa_kernarg_size 48\n  .amdhsa_user_sgpr_count 2\n  .amdhsa_user_sgpr_kernarg_segment_ptr 1\n  .amdhsa_system_sgpr_workgroup_id_x 1\n.end_amdhsa_kernel")
    return "\n".join(H)+"\n"

if __name__=="__main__":
    name=sys.argv[1]; kw={}
    for a in sys.argv[2:]:
        k,v=a.split("=",1)
        try: v=int(v)
        except:
            try: v=float(v)
            except: pass
        kw[k]=v
    open(name,"w").write(gen(**kw))
```

```python
import sys, math, struct
from asmlib import *

KN="standalone__gqa_softmax__near_ridge_kernel"
C_SCALE = math.log2(math.e)/math.sqrt(128.0)
def f2u(x): return struct.unpack("<I",struct.pack("<f",x))[0]

KSL=16640; VSL=17408; SS=KSL+VSL
XB=4*SS; FB=XB+VSL; SB=FB+2048; STG=2048
assert SB+4*STG<=163840
def KOFF(j): return (j%4)*SS
def VOFF(j): return XB if j==7 else ((j+1)%4)*SS+KSL
QOFF=[VOFF(3),XB]

def pkmul(d,a,b):
    return I(f"v_pk_mul_f32 {vr(d,2)}, {vr(a,2)}, {vr(b,2)}",'valu',rd=R(a,2)+R(b,2),wr=R(d,2),cost=6)
def cnd_dpp(d,s0,s1,qp):
    return I(f"v_cndmask_b32_dpp v{d}, v{s0}, v{s1}, vcc quad_perm:{qp} row_mask:0xf bank_mask:0xf",'dpp',rd=[s0,s1],wr=[d])

def gen(depth=3, ldflags="nt", stflags="nt", stamps=0, pf=6, G=2, lthr=2.0**24, budget=24, fl=4, lprio=0, cprio=0,
        verbose=0, diag=None, dk=1, nomem=0, lds=163840, xmap=0, NFR=8, lsleep=4,
        cinit=1, forceslow=0, HZ=2, d0=3, tailb=40, order=1, stc=24, sigs="1,3", bar=0, hop=0, codepf=1, stset='q,K0,K1,K3,K5,K7,V7,e0,e3,st', nosig=0, pair=1):
    vKA=[10,11]; vVA=[12,13,30]
    vFA,vSA=14,15
    vNM,vLa,vLb,vMX,vT1,vOA=16,17,18,19,20,21
    vRL=22
    vF=[24,25]; vSG=26; vGK=27; vGV=28; vT2=29
    vQ=32; vFR=64
    vNB=vFR+4*NFR
    vS=[vNB+16+16*i for i in range(3)]
    vP=[vS[2]+16+8*i for i in range(4)]
    vO=vP[3]+8
    assert vO+64<=256
    sC="s40"; sTHR="s41"
    sEV,sOD,sLO,sHI="s[76:77]","s[78:79]","s[80:81]","s[82:83]"
    LK=lambda j: 3 if j==0 else 2*j+2
    LV=lambda j: 2*j+5 if j<7 else 18
    sig_iters=[int(x) for x in str(sigs).split(",")]
    rare=[]; scnt=[0]
    def stamp(name):
        o=[]
        if diag==name: o.append(raw("s_memrealtime s[60:61]"))
        if stamps and name in stset.split(','):
            i=scnt[0]; scnt[0]+=1; o.append(raw(f"s_memtime s[{50+2*i}:{51+2*i}]"))
        return o
    cn=[0]
    def flag_read():
        r=vF[cn[0]%2]; return I(f"ds_read_b32 v{r}, v{vFA}",'dsr',rd=[vFA],wr=[r])
    def flag_check(val,name):
        r=vF[cn[0]%2]; cn[0]+=1
        if nomem: return stamp(name)
        if stamps: rare.extend([label(f"L_spin{name}"), raw(f"s_bitset1_b32 s75, {cn[0]-1}"), raw("s_add_u32 s74, s74, 1")])
        rare.extend(([] if stamps else [label(f"L_spin{name}")])+[ raw(f"ds_read_b32 v{r}, v{vFA}"), raw("s_waitcnt lgkmcnt(0)"),
                     raw(f"v_cmp_gt_u32 vcc, {val}, v{r}"), raw(f"s_cbranch_vccnz L_spin{name}"), raw(f"s_branch L_back{name}")])
        return [I(f"v_cmp_gt_u32 vcc, {val}, v{r}\n    s_cbranch_vccnz L_spin{name}\nL_back{name}:",'valu',rd=[r],sw=['vcc'],cost=8,tag='vcc')]+stamp(name)
    def signal(val): return [] if nosig else [valu("v_mov_b32",vSG,str(val)), I(f"ds_write_b32 v{vSA}, v{vSG}",'dsw',rd=[vSA,vSG])]

    M=[]
    def addr(base,off):
        ss=off//SS; return (base[ss//2], off-(ss//2)*2*SS)
    def add_qk(h):
        j,u=divmod(h,2); d=vS[h%3]
        for s in range(8):
            f=vFR+4*(len(M)%NFR)
            c0=vNB if (cinit and h>=2) else "0"
            a,o=addr(vKA,KOFF(j)+u*512+s*32)
            M.append(dict(mfma=mfma32(d,f,vQ+4*s,c0 if s==0 else d),reads=[dsr128(f,a,o)],st=('K',j),id=('K',h,s)))
    def add_pv(h,dts,first=False):
        j,u=divmod(h,2)
        for tl in range(2):
            for dt in dts:
                one_pv(h,tl,dt)
    def one_pv(h,tl,dt):
        j,u=divmod(h,2); t=2*u+tl
        f=vFR+4*(len(M)%NFR)
        rds=[]
        for x in range(2):
            a,o=addr(vVA,VOFF(j)-KSL+t*4352+x*512+64*dt) if j<7 else (vVA[2],t*4352+x*512+64*dt); rds.append(dsrtr(f+2*x,a,o))
        c="0" if (h==0 and tl==0) else vO+16*dt
        M.append(dict(mfma=mfma32(vO+16*dt,f,vP[h%4]+4*tl,c),reads=rds,st=('V',j),id=('V',h,tl,dt)))
    add_qk(0); add_qk(1)
    for i in range(1,7):
        add_qk(2*i); add_pv(2*i-2,range(4)); add_qk(2*i+1); add_pv(2*i-1,range(4))
    def pvt(j,dt):
        for h in (2*j,2*j+1):
            for tl in range(2): one_pv(h,tl,dt)
    if order==1:
        add_qk(14); add_qk(15)
        pvt(6,3); pvt(6,2); pvt(6,0); pvt(7,0); pvt(6,1); pvt(7,1); pvt(7,2); pvt(7,3)
    elif order==2:
        add_qk(14); add_pv(12,(3,2)); add_qk(15); add_pv(13,(3,2))
        pvt(6,0); pvt(6,1); pvt(7,0); pvt(7,1); pvt(7,2); pvt(7,3)
    elif order==3:
        add_qk(14); add_qk(15)
        pvt(6,3); pvt(6,0); pvt(6,2); pvt(7,0); pvt(6,1); pvt(7,1); pvt(7,2); pvt(7,3)
    NM=len(M); assert NM==256
    pos={m['id']:i for i,m in enumerate(M)}
    first_use={}; last_use={}
    for i,m in enumerate(M):
        first_use.setdefault(m['st'],i); last_use[m['st']]=i
    for st,i in first_use.items(): M[i]['need']=(LK(st[1]) if st[0]=='K' else LV(st[1]), f"{st[0]}{st[1]}")
    for it in sig_iters:
        i0=max(last_use[('K',it)],last_use[('V',it-1)])
        if bar: M[i0+pf+1]['bar']=1
        else: M[i0]['sig']=2*it+4
    F=[]
    def addF(lst,avail,due):
        for x in lst: F.append([x,avail,due])
    def crosshalf(o,reg,tmp,op):
        o.append(valu("v_mov_b32",tmp,reg)); o.append(perm32(reg,tmp)); o.append(valu(op,reg,reg,tmp))
    def max_blk(src,dst,first):
        o=[valu("v_max3_f32",dst,src,src+1,src+2) if first else valu("v_max3_f32",dst,dst,src,src+1)]
        k=3 if first else 2
        while k+1<16: o.append(valu("v_max3_f32",dst,dst,src+k,src+k+1)); k+=2
        if k<16: o.append(valu("v_max_f32",dst,dst,src+k))
        return o
    def exp_blk(src,dstp,pre):
        seq=[]; n=16
        for i in range(n+3):
            if i<n and pre=='fma': seq.append(valu("v_fma_f32",src+i,src+i,sC,vNM))
            if i<n and pre=='add': seq.append(valu("v_add_f32",src+i,src+i,vNM))
            if 0<=i-1<n: seq.append(trans("v_exp_f32",src+i-1,src+i-1))
            if 0<=i-2<n:
                l=vLa if (i-2)%2==0 else vLb; seq.append(valu("v_add_f32",l,l,src+i-2))
            if i-3>=0 and (i-3)%2==1:
                k=(i-3)//2; seq.append(valu("v_cvt_pk_bf16_f32",dstp+k,src+2*k,src+2*k+1))
        return seq
    st=max_blk(vS[0],vMX,True); crosshalf(st,vMX,vT1,"v_max_f32")
    if cinit:
        st.append(valu("v_sub_f32",vNM,"0",vMX)); st+=[valu("v_sub_f32",vNB+i,"0",vMX) for i in range(16)]
        addF(st,8+HZ,16)
    else:
        st+=[valu("v_mul_f32",vNM,sC,vMX),valu("v_sub_f32",vNM,"0",vNM)]; addF(st,8+HZ,24)
    for h in range(16):
        pre=('add' if h<2 else None) if cinit else 'fma'
        av=pos[('K',h,7)]+1+HZ
        dueS=pos[('K',h+3,0)] if h+3<16 else NM
        for x in exp_blk(vS[h%3],vP[h%4],pre):
            a=av; d=dueS
            if x.text.startswith("v_cvt"):
                k=list(x.wr)[0]-vP[h%4]; tl=k//4
                d=min(d,min(pos[('V',h,tl,dt)] for dt in range(4)))
                if h>=4: a=max(a,max(pos[('V',h-4,tl,dt)] for dt in range(4))+1)
            F.append([x,a,d])
    fin=[valu("v_add_f32",vLa,vLa,vLb)]; crosshalf(fin,vLa,vT1,"v_add_f32")
    fin.append(trans("v_rcp_f32",vRL,vLa))
    br="" if nomem else ("\n    s_cbranch_vccnz L_slow" if not forceslow else "\n    s_branch L_slow")
    fin.append(I(f"v_cmp_nge_f32 vcc, {sTHR}, v{vLa}"+br,'valu',rd=[vLa],sw=['vcc'],sr=[sTHR],cost=8))
    fin.append(valu("v_mov_b32",vRL+1,vRL))
    addF(fin,0,NM)
    def setvcc(s): return I(f"s_mov_b64 vcc, {s}",'salu')
    def epi(dt,pk=False,tmp=None):
        o=vO+16*dt; r=[]
        r+=[pkmul(o+2*k,o+2*k,vRL) for k in range(8)] if pk else [valu("v_mul_f32",o+k,o+k,vRL) for k in range(16)]
        r+=[valu("v_cvt_pk_bf16_f32",o+k,o+2*k,o+2*k+1) for k in range(8)]
        W=lambda k,e:o+2*k+e; X=lambda k,e:o+8+2*k+e
        g=[]
        g.append([setvcc(sEV)]+[cnd_dpp(X(k,e),W(k+1,e),W(k,e),"[1,0,3,2]") for k in (0,2) for e in range(2)])
        g.append([setvcc(sOD)]+[cnd_dpp(X(k+1,e),W(k,e),W(k+1,e),"[1,0,3,2]") for k in (0,2) for e in range(2)])
        g.append([setvcc(sLO)]+[cnd_dpp(W(k,e),X(k+2,e),X(k,e),"[2,3,0,1]") for k in (0,1) for e in range(2)])
        g.append([setvcc(sHI)]+[cnd_dpp(W(k+2,e),X(k,e),X(k+2,e),"[2,3,0,1]") for k in (0,1) for e in range(2)])
        for x in g: r+=x
        for j in range(2): r+=[perm32(o+4*j,o+4*j+2),perm32(o+4*j+1,o+4*j+3)]
        sts=[I(f"buffer_store_dwordx4 {vr(o+4*j,4)}, v{vOA}, s[32:35], 0 offen offset:{512*j+64*dt} {stflags}".rstrip(),'st4',rd=[vOA]+R(o+4*j,4),cost=stc) for j in range(2)]
        return r,sts
    lastdt={dt:max(i for i,m in enumerate(M) if m['id'][0]=='V' and m['id'][3]==dt) for dt in range(4)}
    dorder=sorted(range(4),key=lambda d:lastdt[d])
    held=[]
    for n,dt in enumerate(dorder[:3]):
        r,sts=epi(dt)
        if pair:
            if n%2==0: held=sts; sts=[]
            else:
                assert dt//2==dorder[n-1]//2
                sts=[held[0],sts[0],held[1],sts[1]]; held=[]
        for x in sts[1:]: x.cost=0
        addF((stamp('e0') if dt==dorder[0] else [])+r+sts,lastdt[dt]+1+HZ,NM+1)
    lastflag=max(i for i,m in enumerate(M) if 'need' in m)-pf
    assert lastflag<lastdt[dorder[0]]
    P=[]
    P+=[flag_read()]+flag_check("s46","q")
    for s in range(8): P.append(dsr128(vQ+4*s,vT1,32*s))
    P+=[valu("v_mov_b32",vLa,"0"),valu("v_mov_b32",vLb,"0")]
    if cinit:
        P+=[valu("v_mov_b32",vRL,sC),valu("v_mov_b32",vRL+1,sC)]
        t=vS[2]
        for r in range(34):
            if r<32:
                a=t+2*(r%8); P+=[valu("v_lshlrev_b32",a,"16",vQ+r),valu("v_and_b32",a+1,"0xffff0000",vQ+r)]
            if 1<=r<33:
                b=t+2*((r-1)%8); P.append(pkmul(b,b,vRL))
            if r>=2:
                b=t+2*((r-2)%8); P.append(valu("v_cvt_pk_bf16_f32",vQ+r-2,b,b+1))
    fi=0; cost=0
    def issue_reads(i):
        nonlocal cost
        m=M[i]
        if 'need' in m:
            if not m.get('fr'): P.append(flag_read()); cost+=4
            P.extend(flag_check(*m['need'])); cost+=12
        P.extend(m['reads']); cost+=4*len(m['reads'])
        if 'sig' in m: P.extend(signal(m['sig'])); cost+=8
        if 'bar' in m and not nomem: P.append(raw("s_barrier")); cost+=4
    needs=[i for i in range(NM) if 'need' in M[i]]
    fr_gap={}
    for a,b in zip([None]+needs[:-1],needs):
        g=b-pf-fl
        if a is not None: g=max(g,a-pf)
        if 0<=g<b-pf: fr_gap[g]=b
    for i in range(pf): issue_reads(i)
    carry=0
    for g in range(NM):
        while fi<len(F) and any(F[k][2]<=g for k in range(fi,min(fi+150,len(F)))):
            assert F[fi][1]<=g+HZ, ("forced before avail",F[fi][0].text,F[fi][1],g)
            P.append(F[fi][0]); fi+=1
        cost=0
        if G>1 and g%G==0:
            ex=set()
            for k in range(1,G):
                if g+k<NM:
                    for r in M[g+k]['reads']: ex|=r.wr
            P.append(I("",'touch',rd=ex,cost=0))
        P.append(M[g]['mfma'])
        if (g+1)%G==0: cost+=4
        if g+pf<NM: issue_reads(g+pf)
        if g in fr_gap:
            P.append(flag_read()); M[fr_gap[g]]['fr']=True; cost+=4
        b=budget if g<pos[('K',15,7)] else tailb
        lim=b+carry
        while fi<len(F) and F[fi][1]<=g+1 and cost+F[fi][0].cost<=lim:
            P.append(F[fi][0]); cost+=F[fi][0].cost; fi+=1
        carry=max(-8,min(4,lim-cost))
    while fi<len(F): P.append(F[fi][0]); fi+=1
    r,sts=epi(dorder[3],pk=True)
    if pair: sts=[held[0],sts[0],held[1],sts[1]]
    P+=stamp('e3')+r+sts+stamp('st')
    prog=insert_lgkm(P); prog=[x for x in prog if x.kind!='touch']
    prog,added=pad_hazards(prog,verbose)
    nh=0
    if hop:
        out=[]; cnt=0
        step=len(prog)//hop+1
        nxt=step//2
        pts=[]
        for i,x in enumerate(prog):
            if i>=nxt and x.kind in ('mfma','valu') and nh<hop:
                tgt=f"L_hop{nh+4}" if nh+4<hop else "L_hopdone"
                out.append(label(f"L_hop{nh}")); out.append(raw(f"s_cbranch_execz {tgt}")); nh+=1; nxt+=step
            out.append(x)
        assert nh==hop,(nh,hop)
        prog=out
    k0=[i for i,x in enumerate(prog) if x.kind=='mfma'][0]
    sys.stderr.write(f"consumer: {len(prog)} instrs, nops {added}, est total {est_cycles(prog)} from-first-mfma {est_cycles(prog[k0:])}\n")

    S=[]; sa=vS[0]; kf=vS[1]; sp=vP[0]
    S+=[label("L_slow"), raw("s_waitcnt vmcnt(0) lgkmcnt(0)"), nop(15), nop(15)]
    S+=[valu("v_mov_b32",vMX,"0xff800000"), raw("s_mov_b32 s46, 0"), label("L_s1")]
    def kload():
        return [raw(f"buffer_load_dwordx4 {vr(kf+4*s,4)}, v{vGK}, s[20:23], s46 offen offset:{32*s}") for s in range(8)]+[raw("s_waitcnt vmcnt(0)")]
    S+=kload()+[mfma32(sa,kf+4*s,vQ+4*s,"0" if s==0 else sa) for s in range(8)]+max_blk(sa,vMX,False)
    S+=[raw("s_add_u32 s46, s46, 8192"),raw("s_cmp_lt_u32 s46, 131072"),raw("s_cbranch_scc1 L_s1")]
    crosshalf(S,vMX,vT1,"v_max_f32")
    S+=[valu("v_sub_f32",vNM,"0",vMX)] if cinit else [valu("v_mul_f32",vNM,sC,vMX),valu("v_sub_f32",vNM,"0",vNM)]
    S+=[valu("v_mov_b32",vLa,"0"),valu("v_mov_b32",vLb,"0")]+[valu("v_mov_b32",vO+i,"0") for i in range(64)]
    S+=[raw("s_mov_b32 s46, 0"), label("L_s2")]
    S+=kload()+[mfma32(sa,kf+4*s,vQ+4*s,"0" if s==0 else sa) for s in range(8)]
    S+=exp_blk(sa,sp,'add' if cinit else 'fma')
    for t in range(2):
        for u in range(2):
            S+=[raw("s_mov_b32 m0, s47"),raw(f"s_add_u32 s19, s46, {t*4096+u*2048}"),raw(f"buffer_load_dwordx4 v{vGV}, s[24:27], s19 offen lds"),
                raw(f"buffer_load_dwordx4 v{vGV}, s[24:27], s19 offen offset:1024 lds"),raw("s_waitcnt vmcnt(0)")]
            S+=[raw(f"ds_read_b64_tr_b16 {vr(kf+4*dt+2*u,2)}, v{vT2} offset:{64*dt}") for dt in range(4)]
            S.append(raw("s_waitcnt lgkmcnt(0)"))
        S+=[mfma32(vO+16*dt,kf+4*dt,sp+4*t,vO+16*dt) for dt in range(4)]
    S+=[nop(15),raw("s_add_u32 s46, s46, 8192"),raw("s_cmp_lt_u32 s46, 131072"),raw("s_cbranch_scc1 L_s2")]
    S.append(valu("v_add_f32",vLa,vLa,vLb)); crosshalf(S,vLa,vT1,"v_add_f32")
    S+=[trans("v_rcp_f32",vRL,vLa),nop(1)]
    for dt in range(4):
        r,sts=epi(dt); S+=r+sts
    S.append(raw("s_endpgm"))
    S,_=pad_hazards(S)

    H=[]; e=H.append
    e(f"; @launch grid=(256,1,1) block=(512,1,1) lds={lds}")
    e('.amdgcn_target "amdgcn-amd-amdhsa--gfx950"')
    e(f".text\n.globl {KN}\n.p2align 8\n.type {KN},@function\n{KN}:")
    e("s_load_dwordx4 s[4:7], s[0:1], 0")
    e("s_load_dwordx4 s[8:11], s[0:1], 16")
    if stamps:
        e("s_load_dwordx2 s[12:13], s[0:1], 40")
        e("s_memrealtime s[96:97]\ns_memtime s[98:99]")
    if diag is not None: e("s_memrealtime s[96:97]")
    e("s_cmp_ge_u32 s2, 256\ns_cbranch_scc1 L_end")
    e("v_lshrrev_b32 v1, 6, v0\nv_and_b32 v2, 63, v0")
    if xmap==0: e("s_and_b32 s14, s2, 7\ns_lshr_b32 s15, s2, 4\ns_lshl_b32 s15, s15, 3\ns_add_u32 s14, s14, s15")
    else: e("s_and_b32 s14, s2, 7\ns_lshr_b32 s15, s2, 4\ns_lshl_b32 s14, s14, 4\ns_add_u32 s14, s14, s15")
    e("v_readfirstlane_b32 s16, v1")
    e("s_bfe_u32 s15, s2, 0x10003")
    e("s_lshl_b32 s17, s14, 17")
    e("s_lshl_b32 s18, s14, 16\ns_lshl_b32 s19, s15, 15\ns_add_u32 s18, s18, s19")
    e(f"v_lshlrev_b32 v{vSA}, 2, v0\nv_add_u32 v{vSA}, {FB}, v{vSA}\nv_mov_b32 v{vSG}, 0\nds_write_b32 v{vSA}, v{vSG}")
    e(f"v_and_b32 v3, 3, v2\nv_lshlrev_b32 v3, 8, v3\nv_lshl_add_u32 v{vFA}, v2, 2, v3")
    e("s_cmp_ge_u32 s16, 4\ns_cbranch_scc1 L_consumer")
    if nomem==1: e("s_waitcnt lgkmcnt(0)\ns_barrier\ns_endpgm")
    if lprio: e(f"s_setprio {lprio}")
    e("s_getpc_b64 s[36:37]\nL_pc:")
    e("s_add_u32 s36, s36, L_table-L_pc\ns_addc_u32 s37, s37, 0\ns_mov_b32 s38, 128\ns_mov_b32 s39, 0x20000")
    e("v_lshrrev_b32 v3, 4, v2\nv_and_b32 v4, 15, v2\nv_lshlrev_b32 v4, 4, v4")
    e("s_lshl_b32 s44, s16, 8")
    e("v_add_u32 v4, s44, v4")
    e("v_lshl_add_u32 v6, v3, 12, v4\nv_lshl_add_u32 v7, v3, 10, v4")
    e("s_mul_i32 s42, s16, 1040\ns_mul_i32 s43, s16, 1088")
    e(f"s_add_u32 s44, s44, {FB}")
    e(f"s_add_u32 s46, s42, {QOFF[0]}")
    e("s_mov_b32 s30, 32768\ns_mov_b32 s31, 0x20000\ns_mov_b32 s22, 131072\ns_mov_b32 s23, 0x20000\ns_mov_b32 s26, 131072\ns_mov_b32 s27, 0x20000")
    e("s_movk_i32 s40, 3136")
    e("s_waitcnt lgkmcnt(0)")
    ldiag = diag if isinstance(diag,str) and diag.startswith('l') else None
    lst=[0]
    def lstamp(name):
        if ldiag==name: e("s_memrealtime s[60:61]")
        if stamps:
            i=lst[0]; lst[0]+=1; e(f"s_memtime s[{50+2*i}:{51+2*i}]")
    lstamp('l0')
    e("s_add_u32 s28, s4, s18\ns_addc_u32 s29, s5, 0")
    def kq_stage(srd,m0base,soff):
        e(f"s_mov_b32 m0, {m0base}")
        for g in range(4):
            if g==0: e("s_nop 0")
            e(f"buffer_load_dwordx4 v6, {srd}, {soff} offen offset:{g*1024} {ldflags} lds")
            if g<3: e("s_add_u32 m0, m0, s40\ns_nop 0")
    def v_stage():
        e("s_add_u32 m0, s46, s43")
        for g in range(4):
            if g==0: e("s_nop 0")
            e(f"buffer_load_dwordx4 v7, s[24:27], s15 offen {ldflags} lds")
            if g<3: e("s_add_u32 m0, m0, 4352\ns_add_u32 s15, s15, 4096")
    def lflag(soff): e(f"s_mov_b32 m0, s44\ns_nop 0\nbuffer_load_dword v{vSG}, s[36:39], {soff} offen lds")
    kq_stage("s[28:31]","s46","0"); lflag("4")
    lstamp('l1')
    e(f"s_add_u32 s46, s42, {QOFF[1]}\ns_movk_i32 s45, 16384")
    kq_stage("s[28:31]","s46","s45"); lflag("8")
    e("s_add_u32 s20, s6, s17\ns_addc_u32 s21, s7, 0")
    kq_stage("s[20:23]","s42","0"); lflag("12")
    lstamp('l2')
    e("s_add_u32 s24, s8, s17\ns_addc_u32 s25, s9, 0")
    e(f"v_add_u32 v{vFA}, {FB+1024}, v{vFA}")
    e(f"s_mov_b32 s46, {SS}\ns_mov_b32 s49, 16\ns_add_u32 s43, s43, {KSL}")
    def need_for(i):
        if i<4: return 0
        req=6 if i in (4,8) else 2*(i-4)+4
        return min(2*it+4 for it in sig_iters if 2*it+4>=req)
    packed=0
    seen=0
    for i in range(1,9):
        n=need_for(i)
        if n>seen: packed|=n<<(4*(i-1)); seen=n
    e(f"s_mov_b32 s48, {packed:#x}")
    e("s_barrier")
    if d0<depth: e(f"s_waitcnt vmcnt({5*(d0-1)})")
    W=5*(depth-1)
    e("L_lloop:")
    if not nomem:
        e("s_and_b32 s14, s48, 15\ns_cbranch_scc0 L_lgo")
        if bar: e("s_barrier\nL_lgo:")
        else: e(f"s_branch L_lx\nL_lw:\ns_sleep {lsleep}\nL_lx:\nds_read_b32 v8, v{vFA}\ns_waitcnt lgkmcnt(0)\nv_cmp_gt_u32 vcc, s14, v8\ns_cbranch_vccnz L_lw\nL_lgo:")
    e("s_lshr_b32 s48, s48, 4\ns_sub_u32 s15, s45, 16384")
    e(f"s_cmp_eq_u32 s49, 72\ns_cselect_b32 s46, {XB-KSL}, s46\ns_cbranch_scc1 L_lv")
    e("s_add_u32 s47, s46, s42")
    e(f"s_waitcnt vmcnt({W})")
    kq_stage("s[20:23]","s47","s45"); lflag("s49")
    e("s_add_u32 s49, s49, 4")
    e("L_lv:")
    e(f"s_waitcnt vmcnt({W})")
    v_stage(); lflag("s49")
    e(f"s_add_u32 s49, s49, 4\ns_add_u32 s45, s45, 16384\ns_add_u32 s46, s46, {SS}\ns_cmp_eq_u32 s46, {4*SS}\ns_cselect_b32 s46, 0, s46")
    e("s_cmp_lt_u32 s49, 76\ns_cbranch_scc1 L_lloop")
    lstamp('l3')
    e("s_waitcnt vmcnt(0)")
    lstamp('l4')
    if stamps:
        e("s_memrealtime s[94:95]\ns_waitcnt lgkmcnt(0)")
        e("s_mov_b32 s36, s12\ns_mov_b32 s37, s13\ns_mov_b32 s38, 0x1000000\ns_mov_b32 s39, 0x20000")
        e("s_cmp_lg_u32 s16, 0\ns_cbranch_scc1 L_end")
        e("s_lshl_b32 s45, s2, 8\ns_add_u32 s45, s45, 65536\nv_mov_b32 v7, s45")
        for i,r in enumerate([96,98]+[50+2*min(i,lst[0]-1) for i in range(scnt[0]+1)]+[94]):
            e(f"v_mov_b32 v8, s{r}\nbuffer_store_dword v8, v7, s[36:39], 0 offen offset:{4*i}\ns_nop 1")
    if ldiag:
        e(f"s_memrealtime s[62:63]\ns_waitcnt lgkmcnt(0)\ns_sub_u32 s67, s60, s96\ns_mul_i32 s67, s67, {dk}\ns_add_u32 s67, s67, 500\ns_min_u32 s67, s67, 100000\nL_lspin:\ns_memrealtime s[64:65]\ns_waitcnt lgkmcnt(0)\ns_sub_u32 s66, s64, s62\ns_cmp_lt_u32 s66, s67\ns_cbranch_scc1 L_lspin")
    e("L_end:\ns_endpgm")
    e(".p2align 7\nL_table:\n"+"\n".join(f".long {i}" for i in range(32)))
    e("L_consumer:")
    if cprio: e(f"s_setprio {cprio}")
    e("s_sub_u32 s16, s16, 4")
    if codepf:
        e("s_getpc_b64 s[36:37]\nL_pc2:\ns_add_u32 s36, s36, L_main-L_pc2\ns_addc_u32 s37, s37, 0\ns_mov_b32 s38, L_slow-L_main\ns_mov_b32 s39, 0x20000")
        e("s_lshr_b32 s45, s2, 3\ns_lshl_b32 s45, s45, 2\ns_add_u32 s45, s45, s16\ns_lshl_b32 s45, s45, 7\nv_mov_b32 v9, 0\nbuffer_load_dword v31, v9, s[36:39], s45 offen")
    if hop:
        e("s_mov_b64 exec, 0\ns_cmp_eq_u32 s16, 0\ns_cbranch_scc1 L_hop0\ns_cmp_eq_u32 s16, 1\ns_cbranch_scc1 L_hop1\ns_cmp_eq_u32 s16, 2\ns_cbranch_scc1 L_hop2\ns_branch L_hop3\nL_hopdone:\ns_mov_b64 exec, -1")
    e(f"v_add_u32 v{vFA}, {FB}, v{vFA}")
    e("v_lshrrev_b32 v4, 5, v2\nv_and_b32 v5, 15, v2\nv_bfe_u32 v6, v2, 4, 1")
    e(f"v_mul_u32_u24 v{vKA[0]}, 1040, v5\nv_lshl_add_u32 v{vKA[0]}, v6, 8, v{vKA[0]}\nv_lshl_add_u32 v{vKA[0]}, v4, 4, v{vKA[0]}\nv_add_u32 v{vKA[1]}, {2*SS}, v{vKA[0]}")
    e("v_lshrrev_b32 v7, 2, v5\nv_and_b32 v8, 3, v5")
    e("v_lshlrev_b32 v3, 8, v4\nv_lshl_add_u32 v3, v6, 5, v3\nv_lshl_add_u32 v3, v8, 3, v3")
    e(f"v_mul_u32_u24 v{vT2}, 1088, v7\nv_add_u32 v{vT2}, v{vT2}, v3")
    e(f"v_add_u32 v{vVA[0]}, {KSL}, v{vT2}\nv_add_u32 v{vVA[1]}, {KSL+2*SS}, v{vT2}\nv_add_u32 v{vVA[2]}, {XB}, v{vT2}")
    e(f"s_mul_i32 s47, s16, {STG}\ns_add_u32 s47, s47, {SB}")
    e(f"v_lshlrev_b32 v{vT2}, 10, v4\nv_lshl_add_u32 v{vT2}, v7, 8, v{vT2}\nv_lshl_add_u32 v{vT2}, v6, 5, v{vT2}\nv_lshl_add_u32 v{vT2}, v8, 3, v{vT2}\nv_add_u32 v{vT2}, s47, v{vT2}")
    e(f"v_and_b32 v3, 31, v2\nv_lshlrev_b32 v{vGK}, 8, v3\nv_lshl_add_u32 v{vGK}, v4, 4, v{vGK}")
    e(f"v_lshlrev_b32 v{vGV}, 4, v2")
    e(f"s_lshl_b32 s45, s16, 13\nv_bfe_u32 v3, v2, 2, 3\nv_lshlrev_b32 v{vOA}, 10, v3\nv_lshl_add_u32 v{vOA}, v4, 8, v{vOA}\nv_lshl_add_u32 v{vOA}, v8, 4, v{vOA}\nv_add_u32 v{vOA}, s45, v{vOA}")
    e(f"s_mov_b32 {sC}, {f2u(C_SCALE):#x}\ns_mov_b32 {sTHR}, {f2u(lthr):#x}")
    e("s_mov_b32 s76, 0x55555555\ns_mov_b32 s77, s76\ns_not_b64 s[78:79], s[76:77]\ns_mov_b32 s80, 0x33333333\ns_mov_b32 s81, s80\ns_not_b64 s[82:83], s[80:81]")
    e(f"s_lshr_b32 s46, s16, 1\ns_mov_b32 s45, {QOFF[0]}\ns_cmp_eq_u32 s46, 0\ns_cselect_b32 s45, s45, {QOFF[1]}\ns_and_b32 s19, s16, 1\ns_lshl_b32 s19, s19, 9\ns_add_u32 s45, s45, s19\ns_add_u32 s46, s46, 1")
    e(f"v_add_u32 v{vT1}, s45, v{vKA[0]}")
    e("s_waitcnt lgkmcnt(0)")
    e("s_add_u32 s32, s10, s18\ns_addc_u32 s33, s11, 0\ns_mov_b32 s34, 32768\ns_mov_b32 s35, 0x20000")
    e("s_add_u32 s20, s6, s17\ns_addc_u32 s21, s7, 0\ns_mov_b32 s22, 131072\ns_mov_b32 s23, 0x20000")
    e("s_add_u32 s24, s8, s17\ns_addc_u32 s25, s9, 0\ns_mov_b32 s26, 131072\ns_mov_b32 s27, 0x20000")
    e("s_barrier")
    if stamps: e("s_mov_b32 s74, 0\ns_mov_b32 s75, 0")
    e("s_branch L_main")
    e(text(rare))
    e(".p2align 3\nL_main:")
    e(text(prog))
    if stamps:
        ns=scnt[0]
        e("s_waitcnt vmcnt(0)")
        e(f"s_memtime s[{50+2*ns}:{51+2*ns}]\ns_memrealtime s[{52+2*ns}:{53+2*ns}]\ns_waitcnt lgkmcnt(0)")
        e("s_mov_b32 s36, s12\ns_mov_b32 s37, s13\ns_mov_b32 s38, 0x1000000\ns_mov_b32 s39, 0x20000")
        e("s_cmp_lg_u32 s16, 3\ns_cbranch_scc1 L_end2")
        e("s_lshl_b32 s45, s2, 8\nv_mov_b32 v7, s45")
        regs=[96,98]+[50+2*i for i in range(ns+2)]
        assert regs[-1]<74
        regs+=[74,75]
        for i,r in enumerate(regs):
            e(f"v_mov_b32 v8, s{r}\nbuffer_store_dword v8, v7, s[36:39], 0 offen offset:{4*i}\ns_nop 1")
        sys.stderr.write(f"nstamps={len(regs)}\n")
        e("L_end2:")
    if diag is not None and not ldiag:
        e("s_waitcnt vmcnt(0)")
        if diag=='end': e("s_memrealtime s[60:61]")
        e(f"s_memrealtime s[62:63]\ns_waitcnt lgkmcnt(0)\ns_sub_u32 s67, s60, s96\ns_mul_i32 s67, s67, {dk}\ns_min_u32 s67, s67, 100000\nL_spin:\ns_memrealtime s[64:65]\ns_waitcnt lgkmcnt(0)\ns_sub_u32 s66, s64, s62\ns_cmp_lt_u32 s66, s67\ns_cbranch_scc1 L_spin")
    e("s_endpgm")
    e(text(S))
    e(f'.section .rodata,"a"\n.p2align 6\n.amdhsa_kernel {KN}')
    e(f"  .amdhsa_next_free_vgpr 256\n  .amdhsa_next_free_sgpr 102\n  .amdhsa_accum_offset 256\n  .amdhsa_group_segment_fixed_size 0\n  .amdhsa_kernarg_size 48\n  .amdhsa_user_sgpr_count 2\n  .amdhsa_user_sgpr_kernarg_segment_ptr 1\n  .amdhsa_system_sgpr_workgroup_id_x 1\n.end_amdhsa_kernel")
    return "\n".join(H)+"\n"

if __name__=="__main__":
    name=sys.argv[1]; kw={}
    for a in sys.argv[2:]:
        k,v=a.split("=",1)
        try: v=int(v)
        except:
            try: v=float(v)
            except: pass
        kw[k]=v
    open(name,"w").write(gen(**kw))
```

```python
import sys, math, struct
from asmlib import *

KN="standalone__gqa_softmax__near_ridge_kernel"
C_SCALE = math.log2(math.e)/math.sqrt(128.0)
def f2u(x): return struct.unpack("<I",struct.pack("<f",x))[0]

KSL=16640; VSL=17408; SS=KSL+VSL
XB=4*SS; FB=XB+VSL; SB=FB+2048; STG=2048
assert SB+4*STG<=163840
def KOFF(j): return (j%4)*SS
def VOFF(j): return XB if j==7 else ((j+1)%4)*SS+KSL
QOFF=[VOFF(3),XB]

def pkmul(d,a,b):
    return I(f"v_pk_mul_f32 {vr(d,2)}, {vr(a,2)}, {vr(b,2)}",'valu',rd=R(a,2)+R(b,2),wr=R(d,2),cost=6)
def cnd_dpp(d,s0,s1,qp):
    return I(f"v_cndmask_b32_dpp v{d}, v{s0}, v{s1}, vcc quad_perm:{qp} row_mask:0xf bank_mask:0xf",'dpp',rd=[s0,s1],wr=[d])

def gen(depth=3, ldflags="nt", stflags="nt", stamps=0, pf=6, G=2, lthr=2.0**24, budget=24, fl=4, lprio=0, cprio=0,
        verbose=0, diag=None, dk=1, nomem=0, lds=163840, xmap=0, NFR=8, lsleep=4,
        cinit=1, forceslow=0, HZ=2, d0=3, tailb=40, order=1, stc=24, sigs="1,3", bar=0, hop=0, codepf=1, stset='q,K0,K1,K3,K5,K7,V7,e0,e3,st', nosig=0, pair=1, nload=4):
    vKA=[10,11]; vVA=[12,13,30]
    vFA,vSA=14,15
    vNM,vLa,vLb,vMX,vT1,vOA=16,17,18,19,20,21
    vRL=22
    vF=[24,25]; vSG=26; vGK=27; vGV=28; vT2=29
    vQ=32; vFR=64
    vNB=vFR+4*NFR
    vS=[vNB+16+16*i for i in range(3)]
    vP=[vS[2]+16+8*i for i in range(4)]
    vO=vP[3]+8
    assert vO+64<=256
    sC="s40"; sTHR="s41"
    sEV,sOD,sLO,sHI="s[76:77]","s[78:79]","s[80:81]","s[82:83]"
    LK=lambda j: 3 if j==0 else 2*j+2
    LV=lambda j: 2*j+5 if j<7 else 18
    sig_iters=[int(x) for x in str(sigs).split(",")]
    rare=[]; scnt=[0]
    def stamp(name):
        o=[]
        if diag==name: o.append(raw("s_memrealtime s[60:61]"))
        if stamps and name in stset.split(','):
            i=scnt[0]; scnt[0]+=1; o.append(raw(f"s_memtime s[{50+2*i}:{51+2*i}]"))
        return o
    cn=[0]
    def flag_read():
        r=vF[cn[0]%2]; return I(f"ds_read_b32 v{r}, v{vFA}",'dsr',rd=[vFA],wr=[r])
    def flag_check(val,name):
        r=vF[cn[0]%2]; cn[0]+=1
        if nomem: return stamp(name)
        if stamps: rare.extend([label(f"L_spin{name}"), raw(f"s_bitset1_b32 s75, {cn[0]-1}"), raw("s_add_u32 s74, s74, 1")])
        rare.extend(([] if stamps else [label(f"L_spin{name}")])+[ raw(f"ds_read_b32 v{r}, v{vFA}"), raw("s_waitcnt lgkmcnt(0)"),
                     raw(f"v_cmp_gt_u32 vcc, {val}, v{r}"), raw(f"s_cbranch_vccnz L_spin{name}"), raw(f"s_branch L_back{name}")])
        return [I(f"v_cmp_gt_u32 vcc, {val}, v{r}\n    s_cbranch_vccnz L_spin{name}\nL_back{name}:",'valu',rd=[r],sw=['vcc'],cost=8,tag='vcc')]+stamp(name)
    def signal(val): return [] if nosig else [valu("v_mov_b32",vSG,str(val)), I(f"ds_write_b32 v{vSA}, v{vSG}",'dsw',rd=[vSA,vSG])]

    M=[]
    def addr(base,off):
        ss=off//SS; return (base[ss//2], off-(ss//2)*2*SS)
    def add_qk(h):
        j,u=divmod(h,2); d=vS[h%3]
        for s in range(8):
            f=vFR+4*(len(M)%NFR)
            c0=vNB if (cinit and h>=2) else "0"
            a,o=addr(vKA,KOFF(j)+u*512+s*32)
            M.append(dict(mfma=mfma32(d,f,vQ+4*s,c0 if s==0 else d),reads=[dsr128(f,a,o)],st=('K',j),id=('K',h,s)))
    def add_pv(h,dts,first=False):
        j,u=divmod(h,2)
        for tl in range(2):
            for dt in dts:
                one_pv(h,tl,dt)
    def one_pv(h,tl,dt):
        j,u=divmod(h,2); t=2*u+tl
        f=vFR+4*(len(M)%NFR)
        rds=[]
        for x in range(2):
            a,o=addr(vVA,VOFF(j)-KSL+t*4352+x*512+64*dt) if j<7 else (vVA[2],t*4352+x*512+64*dt); rds.append(dsrtr(f+2*x,a,o))
        c="0" if (h==0 and tl==0) else vO+16*dt
        M.append(dict(mfma=mfma32(vO+16*dt,f,vP[h%4]+4*tl,c),reads=rds,st=('V',j),id=('V',h,tl,dt)))
    add_qk(0); add_qk(1)
    for i in range(1,7):
        add_qk(2*i); add_pv(2*i-2,range(4)); add_qk(2*i+1); add_pv(2*i-1,range(4))
    def pvt(j,dt):
        for h in (2*j,2*j+1):
            for tl in range(2): one_pv(h,tl,dt)
    if order==1:
        add_qk(14); add_qk(15)
        pvt(6,3); pvt(6,2); pvt(6,0); pvt(7,0); pvt(6,1); pvt(7,1); pvt(7,2); pvt(7,3)
    elif order==2:
        add_qk(14); add_pv(12,(3,2)); add_qk(15); add_pv(13,(3,2))
        pvt(6,0); pvt(6,1); pvt(7,0); pvt(7,1); pvt(7,2); pvt(7,3)
    elif order==3:
        add_qk(14); add_qk(15)
        pvt(6,3); pvt(6,0); pvt(6,2); pvt(7,0); pvt(6,1); pvt(7,1); pvt(7,2); pvt(7,3)
    NM=len(M); assert NM==256
    pos={m['id']:i for i,m in enumerate(M)}
    first_use={}; last_use={}
    for i,m in enumerate(M):
        first_use.setdefault(m['st'],i); last_use[m['st']]=i
    for st,i in first_use.items(): M[i]['need']=(LK(st[1]) if st[0]=='K' else LV(st[1]), f"{st[0]}{st[1]}")
    for it in sig_iters:
        i0=max(last_use[('K',it)],last_use[('V',it-1)])
        if bar: M[i0+pf+1]['bar']=1
        else: M[i0]['sig']=2*it+4
    F=[]
    def addF(lst,avail,due):
        for x in lst: F.append([x,avail,due])
    def crosshalf(o,reg,tmp,op):
        o.append(valu("v_mov_b32",tmp,reg)); o.append(perm32(reg,tmp)); o.append(valu(op,reg,reg,tmp))
    def max_blk(src,dst,first):
        o=[valu("v_max3_f32",dst,src,src+1,src+2) if first else valu("v_max3_f32",dst,dst,src,src+1)]
        k=3 if first else 2
        while k+1<16: o.append(valu("v_max3_f32",dst,dst,src+k,src+k+1)); k+=2
        if k<16: o.append(valu("v_max_f32",dst,dst,src+k))
        return o
    def exp_blk(src,dstp,pre):
        seq=[]; n=16
        for i in range(n+3):
            if i<n and pre=='fma': seq.append(valu("v_fma_f32",src+i,src+i,sC,vNM))
            if i<n and pre=='add': seq.append(valu("v_add_f32",src+i,src+i,vNM))
            if 0<=i-1<n: seq.append(trans("v_exp_f32",src+i-1,src+i-1))
            if 0<=i-2<n:
                l=vLa if (i-2)%2==0 else vLb; seq.append(valu("v_add_f32",l,l,src+i-2))
            if i-3>=0 and (i-3)%2==1:
                k=(i-3)//2; seq.append(valu("v_cvt_pk_bf16_f32",dstp+k,src+2*k,src+2*k+1))
        return seq
    st=max_blk(vS[0],vMX,True); crosshalf(st,vMX,vT1,"v_max_f32")
    if cinit:
        st.append(valu("v_sub_f32",vNM,"0",vMX)); st+=[valu("v_sub_f32",vNB+i,"0",vMX) for i in range(16)]
        addF(st,8+HZ,16)
    else:
        st+=[valu("v_mul_f32",vNM,sC,vMX),valu("v_sub_f32",vNM,"0",vNM)]; addF(st,8+HZ,24)
    for h in range(16):
        pre=('add' if h<2 else None) if cinit else 'fma'
        av=pos[('K',h,7)]+1+HZ
        dueS=pos[('K',h+3,0)] if h+3<16 else NM
        for x in exp_blk(vS[h%3],vP[h%4],pre):
            a=av; d=dueS
            if x.text.startswith("v_cvt"):
                k=list(x.wr)[0]-vP[h%4]; tl=k//4
                d=min(d,min(pos[('V',h,tl,dt)] for dt in range(4)))
                if h>=4: a=max(a,max(pos[('V',h-4,tl,dt)] for dt in range(4))+1)
            F.append([x,a,d])
    fin=[valu("v_add_f32",vLa,vLa,vLb)]; crosshalf(fin,vLa,vT1,"v_add_f32")
    fin.append(trans("v_rcp_f32",vRL,vLa))
    br="" if nomem else ("\n    s_cbranch_vccnz L_slow" if not forceslow else "\n    s_branch L_slow")
    fin.append(I(f"v_cmp_nge_f32 vcc, {sTHR}, v{vLa}"+br,'valu',rd=[vLa],sw=['vcc'],sr=[sTHR],cost=8))
    fin.append(valu("v_mov_b32",vRL+1,vRL))
    addF(fin,0,NM)
    def setvcc(s): return I(f"s_mov_b64 vcc, {s}",'salu')
    def epi(dt,pk=False,tmp=None):
        o=vO+16*dt; r=[]
        r+=[pkmul(o+2*k,o+2*k,vRL) for k in range(8)] if pk else [valu("v_mul_f32",o+k,o+k,vRL) for k in range(16)]
        r+=[valu("v_cvt_pk_bf16_f32",o+k,o+2*k,o+2*k+1) for k in range(8)]
        W=lambda k,e:o+2*k+e; X=lambda k,e:o+8+2*k+e
        g=[]
        g.append([setvcc(sEV)]+[cnd_dpp(X(k,e),W(k+1,e),W(k,e),"[1,0,3,2]") for k in (0,2) for e in range(2)])
        g.append([setvcc(sOD)]+[cnd_dpp(X(k+1,e),W(k,e),W(k+1,e),"[1,0,3,2]") for k in (0,2) for e in range(2)])
        g.append([setvcc(sLO)]+[cnd_dpp(W(k,e),X(k+2,e),X(k,e),"[2,3,0,1]") for k in (0,1) for e in range(2)])
        g.append([setvcc(sHI)]+[cnd_dpp(W(k+2,e),X(k,e),X(k+2,e),"[2,3,0,1]") for k in (0,1) for e in range(2)])
        for x in g: r+=x
        for j in range(2): r+=[perm32(o+4*j,o+4*j+2),perm32(o+4*j+1,o+4*j+3)]
        sts=[I(f"buffer_store_dwordx4 {vr(o+4*j,4)}, v{vOA}, s[32:35], 0 offen offset:{512*j+64*dt} {stflags}".rstrip(),'st4',rd=[vOA]+R(o+4*j,4),cost=stc) for j in range(2)]
        return r,sts
    lastdt={dt:max(i for i,m in enumerate(M) if m['id'][0]=='V' and m['id'][3]==dt) for dt in range(4)}
    dorder=sorted(range(4),key=lambda d:lastdt[d])
    held=[]
    for n,dt in enumerate(dorder[:3]):
        r,sts=epi(dt)
        if pair:
            if n%2==0: held=sts; sts=[]
            else:
                assert dt//2==dorder[n-1]//2
                sts=[held[0],sts[0],held[1],sts[1]]; held=[]
        for x in sts[1:]: x.cost=0
        addF((stamp('e0') if dt==dorder[0] else [])+r+sts,lastdt[dt]+1+HZ,NM+1)
    lastflag=max(i for i,m in enumerate(M) if 'need' in m)-pf
    assert lastflag<lastdt[dorder[0]]
    P=[]
    P+=[flag_read()]+flag_check("s46","q")
    for s in range(8): P.append(dsr128(vQ+4*s,vT1,32*s))
    P+=[valu("v_mov_b32",vLa,"0"),valu("v_mov_b32",vLb,"0")]
    if cinit:
        P+=[valu("v_mov_b32",vRL,sC),valu("v_mov_b32",vRL+1,sC)]
        t=vS[2]
        for r in range(34):
            if r<32:
                a=t+2*(r%8); P+=[valu("v_lshlrev_b32",a,"16",vQ+r),valu("v_and_b32",a+1,"0xffff0000",vQ+r)]
            if 1<=r<33:
                b=t+2*((r-1)%8); P.append(pkmul(b,b,vRL))
            if r>=2:
                b=t+2*((r-2)%8); P.append(valu("v_cvt_pk_bf16_f32",vQ+r-2,b,b+1))
    fi=0; cost=0
    def issue_reads(i):
        nonlocal cost
        m=M[i]
        if 'need' in m:
            if not m.get('fr'): P.append(flag_read()); cost+=4
            P.extend(flag_check(*m['need'])); cost+=12
        P.extend(m['reads']); cost+=4*len(m['reads'])
        if 'sig' in m: P.extend(signal(m['sig'])); cost+=8
        if 'bar' in m and not nomem: P.append(raw("s_barrier")); cost+=4
    needs=[i for i in range(NM) if 'need' in M[i]]
    fr_gap={}
    for a,b in zip([None]+needs[:-1],needs):
        g=b-pf-fl
        if a is not None: g=max(g,a-pf)
        if 0<=g<b-pf: fr_gap[g]=b
    for i in range(pf): issue_reads(i)
    carry=0
    for g in range(NM):
        while fi<len(F) and any(F[k][2]<=g for k in range(fi,min(fi+150,len(F)))):
            assert F[fi][1]<=g+HZ, ("forced before avail",F[fi][0].text,F[fi][1],g)
            P.append(F[fi][0]); fi+=1
        cost=0
        if G>1 and g%G==0:
            ex=set()
            for k in range(1,G):
                if g+k<NM:
                    for r in M[g+k]['reads']: ex|=r.wr
            P.append(I("",'touch',rd=ex,cost=0))
        P.append(M[g]['mfma'])
        if (g+1)%G==0: cost+=4
        if g+pf<NM: issue_reads(g+pf)
        if g in fr_gap:
            P.append(flag_read()); M[fr_gap[g]]['fr']=True; cost+=4
        b=budget if g<pos[('K',15,7)] else tailb
        lim=b+carry
        while fi<len(F) and F[fi][1]<=g+1 and cost+F[fi][0].cost<=lim:
            P.append(F[fi][0]); cost+=F[fi][0].cost; fi+=1
        carry=max(-8,min(4,lim-cost))
    while fi<len(F): P.append(F[fi][0]); fi+=1
    r,sts=epi(dorder[3],pk=True)
    if pair: sts=[held[0],sts[0],held[1],sts[1]]
    P+=stamp('e3')+r+sts+stamp('st')
    prog=insert_lgkm(P); prog=[x for x in prog if x.kind!='touch']
    prog,added=pad_hazards(prog,verbose)
    nh=0
    if hop:
        out=[]; cnt=0
        step=len(prog)//hop+1
        nxt=step//2
        pts=[]
        for i,x in enumerate(prog):
            if i>=nxt and x.kind in ('mfma','valu') and nh<hop:
                tgt=f"L_hop{nh+4}" if nh+4<hop else "L_hopdone"
                out.append(label(f"L_hop{nh}")); out.append(raw(f"s_cbranch_execz {tgt}")); nh+=1; nxt+=step
            out.append(x)
        assert nh==hop,(nh,hop)
        prog=out
    k0=[i for i,x in enumerate(prog) if x.kind=='mfma'][0]
    sys.stderr.write(f"consumer: {len(prog)} instrs, nops {added}, est total {est_cycles(prog)} from-first-mfma {est_cycles(prog[k0:])}\n")

    S=[]; sa=vS[0]; kf=vS[1]; sp=vP[0]
    S+=[label("L_slow"), raw("s_waitcnt vmcnt(0) lgkmcnt(0)"), nop(15), nop(15)]
    S+=[valu("v_mov_b32",vMX,"0xff800000"), raw("s_mov_b32 s46, 0"), label("L_s1")]
    def kload():
        return [raw(f"buffer_load_dwordx4 {vr(kf+4*s,4)}, v{vGK}, s[20:23], s46 offen offset:{32*s}") for s in range(8)]+[raw("s_waitcnt vmcnt(0)")]
    S+=kload()+[mfma32(sa,kf+4*s,vQ+4*s,"0" if s==0 else sa) for s in range(8)]+max_blk(sa,vMX,False)
    S+=[raw("s_add_u32 s46, s46, 8192"),raw("s_cmp_lt_u32 s46, 131072"),raw("s_cbranch_scc1 L_s1")]
    crosshalf(S,vMX,vT1,"v_max_f32")
    S+=[valu("v_sub_f32",vNM,"0",vMX)] if cinit else [valu("v_mul_f32",vNM,sC,vMX),valu("v_sub_f32",vNM,"0",vNM)]
    S+=[valu("v_mov_b32",vLa,"0"),valu("v_mov_b32",vLb,"0")]+[valu("v_mov_b32",vO+i,"0") for i in range(64)]
    S+=[raw("s_mov_b32 s46, 0"), label("L_s2")]
    S+=kload()+[mfma32(sa,kf+4*s,vQ+4*s,"0" if s==0 else sa) for s in range(8)]
    S+=exp_blk(sa,sp,'add' if cinit else 'fma')
    for t in range(2):
        for u in range(2):
            S+=[raw("s_mov_b32 m0, s47"),raw(f"s_add_u32 s19, s46, {t*4096+u*2048}"),raw(f"buffer_load_dwordx4 v{vGV}, s[24:27], s19 offen lds"),
                raw(f"buffer_load_dwordx4 v{vGV}, s[24:27], s19 offen offset:1024 lds"),raw("s_waitcnt vmcnt(0)")]
            S+=[raw(f"ds_read_b64_tr_b16 {vr(kf+4*dt+2*u,2)}, v{vT2} offset:{64*dt}") for dt in range(4)]
            S.append(raw("s_waitcnt lgkmcnt(0)"))
        S+=[mfma32(vO+16*dt,kf+4*dt,sp+4*t,vO+16*dt) for dt in range(4)]
    S+=[nop(15),raw("s_add_u32 s46, s46, 8192"),raw("s_cmp_lt_u32 s46, 131072"),raw("s_cbranch_scc1 L_s2")]
    S.append(valu("v_add_f32",vLa,vLa,vLb)); crosshalf(S,vLa,vT1,"v_add_f32")
    S+=[trans("v_rcp_f32",vRL,vLa),nop(1)]
    for dt in range(4):
        r,sts=epi(dt); S+=r+sts
    S.append(raw("s_endpgm"))
    S,_=pad_hazards(S)

    H=[]; e=H.append
    e(f"; @launch grid=(256,1,1) block=({256+64*nload},1,1) lds={lds}")
    e('.amdgcn_target "amdgcn-amd-amdhsa--gfx950"')
    e(f".text\n.globl {KN}\n.p2align 8\n.type {KN},@function\n{KN}:")
    e("s_load_dwordx4 s[4:7], s[0:1], 0")
    e("s_load_dwordx4 s[8:11], s[0:1], 16")
    if stamps:
        e("s_load_dwordx2 s[12:13], s[0:1], 40")
        e("s_memrealtime s[96:97]\ns_memtime s[98:99]")
    if diag is not None: e("s_memrealtime s[96:97]")
    e("s_cmp_ge_u32 s2, 256\ns_cbranch_scc1 L_end")
    e("v_lshrrev_b32 v1, 6, v0\nv_and_b32 v2, 63, v0")
    if xmap==0: e("s_and_b32 s14, s2, 7\ns_lshr_b32 s15, s2, 4\ns_lshl_b32 s15, s15, 3\ns_add_u32 s14, s14, s15")
    else: e("s_and_b32 s14, s2, 7\ns_lshr_b32 s15, s2, 4\ns_lshl_b32 s14, s14, 4\ns_add_u32 s14, s14, s15")
    e("v_readfirstlane_b32 s16, v1")
    e("s_bfe_u32 s15, s2, 0x10003")
    e("s_lshl_b32 s17, s14, 17")
    e("s_lshl_b32 s18, s14, 16\ns_lshl_b32 s19, s15, 15\ns_add_u32 s18, s18, s19")
    e(f"v_lshlrev_b32 v{vSA}, 2, v0\nv_add_u32 v{vSA}, {FB}, v{vSA}\nv_mov_b32 v{vSG}, 0\nds_write_b32 v{vSA}, v{vSG}")
    e(f"s_cmp_ge_u32 s16, {nload}\ns_cbranch_scc1 L_consumer")
    if nomem==1: e("s_waitcnt lgkmcnt(0)\ns_barrier\ns_endpgm")
    if lprio: e(f"s_setprio {lprio}")
    e("s_getpc_b64 s[36:37]\nL_pc:")
    e("s_add_u32 s36, s36, L_table-L_pc\ns_addc_u32 s37, s37, 0\ns_mov_b32 s38, 128\ns_mov_b32 s39, 0x20000")
    e("v_lshrrev_b32 v3, 4, v2\nv_and_b32 v4, 15, v2\nv_lshlrev_b32 v4, 4, v4")
    e("s_lshl_b32 s44, s16, 8")
    e("v_add_u32 v4, s44, v4")
    e("v_lshl_add_u32 v6, v3, 12, v4\nv_lshl_add_u32 v7, v3, 10, v4")
    e("s_mul_i32 s42, s16, 1040\ns_mul_i32 s43, s16, 1088")
    e(f"s_add_u32 s44, s44, {FB}")
    e(f"s_add_u32 s46, s42, {QOFF[0]}")
    e("s_mov_b32 s30, 32768\ns_mov_b32 s31, 0x20000\ns_mov_b32 s22, 131072\ns_mov_b32 s23, 0x20000\ns_mov_b32 s26, 131072\ns_mov_b32 s27, 0x20000")
    e(f"s_movk_i32 s40, {nload*784}\ns_movk_i32 s41, {nload*832}")
    e("s_waitcnt lgkmcnt(0)")
    ldiag = diag if isinstance(diag,str) and diag.startswith('l') else None
    lst=[0]
    def lstamp(name):
        if ldiag==name: e("s_memrealtime s[60:61]")
        if stamps:
            i=lst[0]; lst[0]+=1; e(f"s_memtime s[{50+2*i}:{51+2*i}]")
    lstamp('l0')
    e("s_add_u32 s28, s4, s18\ns_addc_u32 s29, s5, 0")
    NI=16//nload
    def kq_stage(srd,m0base,soff):
        e(f"s_mov_b32 m0, {m0base}")
        for g in range(NI):
            if g==0: e("s_nop 0")
            e(f"buffer_load_dwordx4 v6, {srd}, {soff} offen offset:{g*nload*256} {ldflags} lds")
            if g<NI-1: e("s_add_u32 m0, m0, s40\ns_nop 0")
    def v_stage():
        e("s_add_u32 m0, s46, s43")
        per=4//nload
        for t in range(4):
            for rr in range(per):
                if t==0 and rr==0: e("s_nop 0")
                e(f"buffer_load_dwordx4 v7, s[24:27], s15 offen offset:{rr*nload*256} {ldflags} lds")
                if rr<per-1: e("s_add_u32 m0, m0, s41\ns_nop 0")
            if t<3: e(f"s_add_u32 m0, m0, {4352-(per-1)*nload*832}\ns_add_u32 s15, s15, 4096")
    def lflag(soff): e(f"s_mov_b32 m0, s44\ns_nop 0\nbuffer_load_dword v{vSG}, s[36:39], {soff} offen lds")
    kq_stage("s[28:31]","s46","0"); lflag("4")
    lstamp('l1')
    e(f"s_add_u32 s46, s42, {QOFF[1]}\ns_movk_i32 s45, 16384")
    kq_stage("s[28:31]","s46","s45"); lflag("8")
    e("s_add_u32 s20, s6, s17\ns_addc_u32 s21, s7, 0")
    kq_stage("s[20:23]","s42","0"); lflag("12")
    lstamp('l2')
    e("s_add_u32 s24, s8, s17\ns_addc_u32 s25, s9, 0")
    e(f"v_and_b32 v3, 3, v2\nv_lshlrev_b32 v3, 8, v3\nv_lshl_add_u32 v{vFA}, v2, 2, v3\nv_add_u32 v{vFA}, {FB+256*nload}, v{vFA}")
    e(f"s_mov_b32 s46, {SS}\ns_mov_b32 s49, 16\ns_add_u32 s43, s43, {KSL}")
    def need_for(i):
        if i<4: return 0
        req=6 if i in (4,8) else 2*(i-4)+4
        return min(2*it+4 for it in sig_iters if 2*it+4>=req)
    packed=0
    seen=0
    for i in range(1,9):
        n=need_for(i)
        if n>seen: packed|=n<<(4*(i-1)); seen=n
    e(f"s_mov_b32 s48, {packed:#x}")
    e("s_barrier")
    if d0<depth: e(f"s_waitcnt vmcnt({(NI+1)*(d0-1)})")
    W=(NI+1)*(depth-1)
    e("L_lloop:")
    if not nomem:
        e("s_and_b32 s14, s48, 15\ns_cbranch_scc0 L_lgo")
        if bar: e("s_barrier\nL_lgo:")
        else: e(f"s_branch L_lx\nL_lw:\ns_sleep {lsleep}\nL_lx:\nds_read_b32 v8, v{vFA}\ns_waitcnt lgkmcnt(0)\nv_cmp_gt_u32 vcc, s14, v8\ns_cbranch_vccnz L_lw\nL_lgo:")
    e("s_lshr_b32 s48, s48, 4\ns_sub_u32 s15, s45, 16384")
    e(f"s_cmp_eq_u32 s49, 72\ns_cselect_b32 s46, {XB-KSL}, s46\ns_cbranch_scc1 L_lv")
    e("s_add_u32 s47, s46, s42")
    e(f"s_waitcnt vmcnt({W})")
    kq_stage("s[20:23]","s47","s45"); lflag("s49")
    e("s_add_u32 s49, s49, 4")
    e("L_lv:")
    e(f"s_waitcnt vmcnt({W})")
    v_stage(); lflag("s49")
    e(f"s_add_u32 s49, s49, 4\ns_add_u32 s45, s45, 16384\ns_add_u32 s46, s46, {SS}\ns_cmp_eq_u32 s46, {4*SS}\ns_cselect_b32 s46, 0, s46")
    e("s_cmp_lt_u32 s49, 76\ns_cbranch_scc1 L_lloop")
    lstamp('l3')
    e("s_waitcnt vmcnt(0)")
    lstamp('l4')
    if stamps:
        e("s_memrealtime s[94:95]\ns_waitcnt lgkmcnt(0)")
        e("s_mov_b32 s36, s12\ns_mov_b32 s37, s13\ns_mov_b32 s38, 0x1000000\ns_mov_b32 s39, 0x20000")
        e("s_cmp_lg_u32 s16, 0\ns_cbranch_scc1 L_end")
        e("s_lshl_b32 s45, s2, 8\ns_add_u32 s45, s45, 65536\nv_mov_b32 v7, s45")
        for i,r in enumerate([96,98]+[50+2*min(i,lst[0]-1) for i in range(scnt[0]+1)]+[94]):
            e(f"v_mov_b32 v8, s{r}\nbuffer_store_dword v8, v7, s[36:39], 0 offen offset:{4*i}\ns_nop 1")
    if ldiag:
        e(f"s_memrealtime s[62:63]\ns_waitcnt lgkmcnt(0)\ns_sub_u32 s67, s60, s96\ns_mul_i32 s67, s67, {dk}\ns_add_u32 s67, s67, 500\ns_min_u32 s67, s67, 100000\nL_lspin:\ns_memrealtime s[64:65]\ns_waitcnt lgkmcnt(0)\ns_sub_u32 s66, s64, s62\ns_cmp_lt_u32 s66, s67\ns_cbranch_scc1 L_lspin")
    e("L_end:\ns_endpgm")
    e(".p2align 7\nL_table:\n"+"\n".join(f".long {i}" for i in range(32)))
    e("L_consumer:")
    if cprio: e(f"s_setprio {cprio}")
    e(f"s_sub_u32 s16, s16, {nload}")
    e(f"v_and_b32 v3, {nload-1}, v2\nv_lshlrev_b32 v3, 8, v3\nv_lshl_add_u32 v{vFA}, v2, 2, v3")
    if codepf:
        e("s_getpc_b64 s[36:37]\nL_pc2:\ns_add_u32 s36, s36, L_main-L_pc2\ns_addc_u32 s37, s37, 0\ns_mov_b32 s38, L_slow-L_main\ns_mov_b32 s39, 0x20000")
        e("s_lshr_b32 s45, s2, 3\ns_lshl_b32 s45, s45, 2\ns_add_u32 s45, s45, s16\ns_lshl_b32 s45, s45, 7\nv_mov_b32 v9, 0\nbuffer_load_dword v31, v9, s[36:39], s45 offen")
    if hop:
        e("s_mov_b64 exec, 0\ns_cmp_eq_u32 s16, 0\ns_cbranch_scc1 L_hop0\ns_cmp_eq_u32 s16, 1\ns_cbranch_scc1 L_hop1\ns_cmp_eq_u32 s16, 2\ns_cbranch_scc1 L_hop2\ns_branch L_hop3\nL_hopdone:\ns_mov_b64 exec, -1")
    e(f"v_add_u32 v{vFA}, {FB}, v{vFA}")
    e("v_lshrrev_b32 v4, 5, v2\nv_and_b32 v5, 15, v2\nv_bfe_u32 v6, v2, 4, 1")
    e(f"v_mul_u32_u24 v{vKA[0]}, 1040, v5\nv_lshl_add_u32 v{vKA[0]}, v6, 8, v{vKA[0]}\nv_lshl_add_u32 v{vKA[0]}, v4, 4, v{vKA[0]}\nv_add_u32 v{vKA[1]}, {2*SS}, v{vKA[0]}")
    e("v_lshrrev_b32 v7, 2, v5\nv_and_b32 v8, 3, v5")
    e("v_lshlrev_b32 v3, 8, v4\nv_lshl_add_u32 v3, v6, 5, v3\nv_lshl_add_u32 v3, v8, 3, v3")
    e(f"v_mul_u32_u24 v{vT2}, 1088, v7\nv_add_u32 v{vT2}, v{vT2}, v3")
    e(f"v_add_u32 v{vVA[0]}, {KSL}, v{vT2}\nv_add_u32 v{vVA[1]}, {KSL+2*SS}, v{vT2}\nv_add_u32 v{vVA[2]}, {XB}, v{vT2}")
    e(f"s_mul_i32 s47, s16, {STG}\ns_add_u32 s47, s47, {SB}")
    e(f"v_lshlrev_b32 v{vT2}, 10, v4\nv_lshl_add_u32 v{vT2}, v7, 8, v{vT2}\nv_lshl_add_u32 v{vT2}, v6, 5, v{vT2}\nv_lshl_add_u32 v{vT2}, v8, 3, v{vT2}\nv_add_u32 v{vT2}, s47, v{vT2}")
    e(f"v_and_b32 v3, 31, v2\nv_lshlrev_b32 v{vGK}, 8, v3\nv_lshl_add_u32 v{vGK}, v4, 4, v{vGK}")
    e(f"v_lshlrev_b32 v{vGV}, 4, v2")
    e(f"s_lshl_b32 s45, s16, 13\nv_bfe_u32 v3, v2, 2, 3\nv_lshlrev_b32 v{vOA}, 10, v3\nv_lshl_add_u32 v{vOA}, v4, 8, v{vOA}\nv_lshl_add_u32 v{vOA}, v8, 4, v{vOA}\nv_add_u32 v{vOA}, s45, v{vOA}")
    e(f"s_mov_b32 {sC}, {f2u(C_SCALE):#x}\ns_mov_b32 {sTHR}, {f2u(lthr):#x}")
    e("s_mov_b32 s76, 0x55555555\ns_mov_b32 s77, s76\ns_not_b64 s[78:79], s[76:77]\ns_mov_b32 s80, 0x33333333\ns_mov_b32 s81, s80\ns_not_b64 s[82:83], s[80:81]")
    e(f"s_lshr_b32 s46, s16, 1\ns_mov_b32 s45, {QOFF[0]}\ns_cmp_eq_u32 s46, 0\ns_cselect_b32 s45, s45, {QOFF[1]}\ns_and_b32 s19, s16, 1\ns_lshl_b32 s19, s19, 9\ns_add_u32 s45, s45, s19\ns_add_u32 s46, s46, 1")
    e(f"v_add_u32 v{vT1}, s45, v{vKA[0]}")
    e("s_waitcnt lgkmcnt(0)")
    e("s_add_u32 s32, s10, s18\ns_addc_u32 s33, s11, 0\ns_mov_b32 s34, 32768\ns_mov_b32 s35, 0x20000")
    e("s_add_u32 s20, s6, s17\ns_addc_u32 s21, s7, 0\ns_mov_b32 s22, 131072\ns_mov_b32 s23, 0x20000")
    e("s_add_u32 s24, s8, s17\ns_addc_u32 s25, s9, 0\ns_mov_b32 s26, 131072\ns_mov_b32 s27, 0x20000")
    e("s_barrier")
    if stamps: e("s_mov_b32 s74, 0\ns_mov_b32 s75, 0")
    e("s_branch L_main")
    e(text(rare))
    e(".p2align 3\nL_main:")
    e(text(prog))
    if stamps:
        ns=scnt[0]
        e("s_waitcnt vmcnt(0)")
        e(f"s_memtime s[{50+2*ns}:{51+2*ns}]\ns_memrealtime s[{52+2*ns}:{53+2*ns}]\ns_waitcnt lgkmcnt(0)")
        e("s_mov_b32 s36, s12\ns_mov_b32 s37, s13\ns_mov_b32 s38, 0x1000000\ns_mov_b32 s39, 0x20000")
        e("s_cmp_lg_u32 s16, 3\ns_cbranch_scc1 L_end2")
        e("s_lshl_b32 s45, s2, 8\nv_mov_b32 v7, s45")
        regs=[96,98]+[50+2*i for i in range(ns+2)]
        assert regs[-1]<74
        regs+=[74,75]
        for i,r in enumerate(regs):
            e(f"v_mov_b32 v8, s{r}\nbuffer_store_dword v8, v7, s[36:39], 0 offen offset:{4*i}\ns_nop 1")
        sys.stderr.write(f"nstamps={len(regs)}\n")
        e("L_end2:")
    if diag is not None and not ldiag:
        e("s_waitcnt vmcnt(0)")
        if diag=='end': e("s_memrealtime s[60:61]")
        e(f"s_memrealtime s[62:63]\ns_waitcnt lgkmcnt(0)\ns_sub_u32 s67, s60, s96\ns_mul_i32 s67, s67, {dk}\ns_min_u32 s67, s67, 100000\nL_spin:\ns_memrealtime s[64:65]\ns_waitcnt lgkmcnt(0)\ns_sub_u32 s66, s64, s62\ns_cmp_lt_u32 s66, s67\ns_cbranch_scc1 L_spin")
    e("s_endpgm")
    e(text(S))
    e(f'.section .rodata,"a"\n.p2align 6\n.amdhsa_kernel {KN}')
    e(f"  .amdhsa_next_free_vgpr 256\n  .amdhsa_next_free_sgpr 102\n  .amdhsa_accum_offset 256\n  .amdhsa_group_segment_fixed_size 0\n  .amdhsa_kernarg_size 48\n  .amdhsa_user_sgpr_count 2\n  .amdhsa_user_sgpr_kernarg_segment_ptr 1\n  .amdhsa_system_sgpr_workgroup_id_x 1\n.end_amdhsa_kernel")
    return "\n".join(H)+"\n"

if __name__=="__main__":
    name=sys.argv[1]; kw={}
    for a in sys.argv[2:]:
        k,v=a.split("=",1)
        try: v=int(v)
        except:
            try: v=float(v)
            except: pass
        kw[k]=v
    open(name,"w").write(gen(**kw))
```

```python
import sys, math, struct
from asmlib import *

KN="standalone__gqa_softmax__near_ridge_kernel"
C_SCALE = math.log2(math.e)/math.sqrt(128.0)
def f2u(x): return struct.unpack("<I",struct.pack("<f",x))[0]

KSL=16640; VSL=17408; SS=KSL+VSL
XB=4*SS; FB=XB+VSL; SB=FB+2048; STG=2048
assert SB+4*STG<=163840
def KOFF(j): return (j%4)*SS
def VOFF(j): return XB if j==7 else ((j+1)%4)*SS+KSL
QOFF=[VOFF(3),XB]

def pkmul(d,a,b):
    return I(f"v_pk_mul_f32 {vr(d,2)}, {vr(a,2)}, {vr(b,2)}",'valu',rd=R(a,2)+R(b,2),wr=R(d,2),cost=6)
def cnd_dpp(d,s0,s1,qp):
    return I(f"v_cndmask_b32_dpp v{d}, v{s0}, v{s1}, vcc quad_perm:{qp} row_mask:0xf bank_mask:0xf",'dpp',rd=[s0,s1],wr=[d])

def gen(depth=3, ldflags="nt", stflags="nt", stamps=0, pf=6, G=2, lthr=2.0**24, budget=24, fl=4, lprio=0, cprio=0,
        verbose=0, diag=None, dk=1, nomem=0, lds=163840, xmap=0, NFR=8, lsleep=4,
        cinit=1, forceslow=0, HZ=2, d0=3, tailb=40, order=1, stc=24, sigs="1,3", bar=0, hop=0, codepf=1, stset='q,K0,K1,K3,K5,K7,V7,e0,e3,st', nosig=0, pair=1, nload=4, stag=0, head=0, late=0, slow=0, lin=0, qsleep=0, pk2=0, osleep=0, qbar=0):
    vKA=[10,11]; vVA=[12,13,30]
    vFA,vSA=14,15
    vNM,vLa,vLb,vMX,vT1,vOA=16,17,18,19,20,21
    vRL=22
    vF=[24,25]; vSG=26; vGK=27; vGV=28; vT2=29
    vQ=32; vFR=64
    vNB=vFR+4*NFR
    vS=[vNB+16+16*i for i in range(3)]
    vP=[vS[2]+16+8*i for i in range(4)]
    vO=vP[3]+8
    assert vO+64<=256
    sC="s40"; sTHR="s41"
    sEV,sOD,sLO,sHI="s[76:77]","s[78:79]","s[80:81]","s[82:83]"
    LK=(lambda j: 3 if j==0 else 2*j+2) if not stag else (lambda j: {0:1,1:3}.get(j,2*j+2))
    LV=lambda j: 2*j+5 if j<7 else 18
    sig_iters=[int(x) for x in str(sigs).split(",")]
    rare=[]; scnt=[0]
    def stamp(name):
        o=[]
        if diag==name: o.append(raw("s_memrealtime s[60:61]"))
        if stamps and name in stset.split(','):
            i=scnt[0]; scnt[0]+=1; o.append(raw(f"s_memtime s[{50+2*i}:{51+2*i}]"))
        return o
    cn=[0]
    def flag_read():
        r=vF[cn[0]%2]; return I(f"ds_read_b32 v{r}, v{vFA}",'dsr',rd=[vFA],wr=[r])
    def flag_check(val,name):
        r=vF[cn[0]%2]; cn[0]+=1
        if nomem: return stamp(name)
        if stamps: rare.extend([label(f"L_spin{name}"), raw(f"s_bitset1_b32 s75, {cn[0]-1}"), raw("s_add_u32 s74, s74, 1")])
        rare.extend(([] if stamps else [label(f"L_spin{name}")])+([raw(f"s_sleep {qsleep}")] if (qsleep and name=='q') else [])+([raw(f"s_sleep {osleep}")] if (osleep and name!='q') else [])+[ raw(f"ds_read_b32 v{r}, v{vFA}"), raw("s_waitcnt lgkmcnt(0)"),
                     raw(f"v_cmp_gt_u32 vcc, {val}, v{r}"), raw(f"s_cbranch_vccnz L_spin{name}"), raw(f"s_branch L_back{name}")])
        return [I(f"v_cmp_gt_u32 vcc, {val}, v{r}\n    s_cbranch_vccnz L_spin{name}\nL_back{name}:",'valu',rd=[r],sw=['vcc'],cost=8,tag='vcc')]+stamp(name)
    def signal(val): return [] if nosig else [valu("v_mov_b32",vSG,str(val)), I(f"ds_write_b32 v{vSA}, v{vSG}",'dsw',rd=[vSA,vSG])]

    M=[]
    def addr(base,off):
        ss=off//SS; return (base[ss//2], off-(ss//2)*2*SS)
    def add_qk(h):
        j,u=divmod(h,2); d=vS[h%3]
        for s in range(8):
            f=vFR+4*(len(M)%NFR)
            c0=vNB if (cinit and h>=2) else "0"
            a,o=addr(vKA,KOFF(j)+u*512+s*32)
            M.append(dict(mfma=mfma32(d,f,vQ+4*s,c0 if s==0 else d),reads=[dsr128(f,a,o)],st=('K',j),id=('K',h,s)))
    def add_pv(h,dts,first=False):
        j,u=divmod(h,2)
        for tl in range(2):
            for dt in dts:
                one_pv(h,tl,dt)
    def one_pv(h,tl,dt):
        j,u=divmod(h,2); t=2*u+tl
        f=vFR+4*(len(M)%NFR)
        rds=[]
        for x in range(2):
            io=(t*4352+x*512+64*dt) if not lin else (x*8704+t*256+64*dt)
            a,o=addr(vVA,VOFF(j)-KSL+io) if j<7 else (vVA[2],io); rds.append(dsrtr(f+2*x,a,o))
        c="0" if (h==0 and tl==0) else vO+16*dt
        M.append(dict(mfma=mfma32(vO+16*dt,f,vP[h%4]+4*tl,c),reads=rds,st=('V',j),id=('V',h,tl,dt)))
    add_qk(0); add_qk(1)
    if head:
        add_qk(2); add_qk(3); add_pv(0,range(4)); add_pv(1,range(4))
    for i in range(2 if head else 1,7):
        add_qk(2*i); add_pv(2*i-2,range(4)); add_qk(2*i+1); add_pv(2*i-1,range(4))
    def pvt(j,dt):
        for h in (2*j,2*j+1):
            for tl in range(2): one_pv(h,tl,dt)
    if order==1:
        add_qk(14); add_qk(15)
        pvt(6,3); pvt(6,2); pvt(6,0); pvt(7,0); pvt(6,1); pvt(7,1); pvt(7,2); pvt(7,3)
    elif order==2:
        add_qk(14); add_pv(12,(3,2)); add_qk(15); add_pv(13,(3,2))
        pvt(6,0); pvt(6,1); pvt(7,0); pvt(7,1); pvt(7,2); pvt(7,3)
    elif order==3:
        add_qk(14); add_qk(15)
        pvt(6,3); pvt(6,0); pvt(6,2); pvt(7,0); pvt(6,1); pvt(7,1); pvt(7,2); pvt(7,3)
    elif order==4:
        add_qk(14); add_qk(15)
        pvt(6,0); pvt(6,1); pvt(7,0); pvt(7,1); pvt(6,2); pvt(7,2); pvt(6,3); pvt(7,3)
    elif order==5:
        add_qk(14); add_qk(15)
        pvt(6,0); pvt(6,1); pvt(6,2); add_pv(14,(0,1)); add_pv(15,(0,1)); pvt(7,2); pvt(6,3); pvt(7,3)
    NM=len(M); assert NM==256
    pos={m['id']:i for i,m in enumerate(M)}
    first_use={}; last_use={}
    for i,m in enumerate(M):
        first_use.setdefault(m['st'],i); last_use[m['st']]=i
    for st,i in first_use.items(): M[i]['need']=(LK(st[1]) if st[0]=='K' else LV(st[1]), f"{st[0]}{st[1]}")
    if stag: del M[0]['need']
    for it in sig_iters:
        i0=max(last_use[('K',it)],last_use[('V',it-1)])
        if bar: M[i0+pf+1]['bar']=1
        else: M[i0]['sig']=2*it+4
    F=[]
    def addF(lst,avail,due):
        for x in lst: F.append([x,avail,due])
    def crosshalf(o,reg,tmp,op):
        o.append(valu("v_mov_b32",tmp,reg)); o.append(perm32(reg,tmp)); o.append(valu(op,reg,reg,tmp))
    def max_blk(src,dst,first):
        o=[valu("v_max3_f32",dst,src,src+1,src+2) if first else valu("v_max3_f32",dst,dst,src,src+1)]
        k=3 if first else 2
        while k+1<16: o.append(valu("v_max3_f32",dst,dst,src+k,src+k+1)); k+=2
        if k<16: o.append(valu("v_max_f32",dst,dst,src+k))
        return o
    def exp_blk(src,dstp,pre):
        seq=[]; n=16
        for i in range(n+3):
            if i<n and pre=='fma': seq.append(valu("v_fma_f32",src+i,src+i,sC,vNM))
            if i<n and pre=='add': seq.append(valu("v_add_f32",src+i,src+i,vNM))
            if 0<=i-1<n: seq.append(trans("v_exp_f32",src+i-1,src+i-1))
            if 0<=i-2<n:
                l=vLa if (i-2)%2==0 else vLb; seq.append(valu("v_add_f32",l,l,src+i-2))
            if i-3>=0 and (i-3)%2==1:
                k=(i-3)//2; seq.append(valu("v_cvt_pk_bf16_f32",dstp+k,src+2*k,src+2*k+1))
        return seq
    st=max_blk(vS[0],vMX,True); crosshalf(st,vMX,vT1,"v_max_f32")
    if cinit:
        st.append(valu("v_sub_f32",vNM,"0",vMX)); st+=[valu("v_sub_f32",vNB+i,"0",vMX) for i in range(16)]
        addF(st,8+HZ,16)
    else:
        st+=[valu("v_mul_f32",vNM,sC,vMX),valu("v_sub_f32",vNM,"0",vNM)]; addF(st,8+HZ,24)
    for h in range(16):
        pre=('add' if h<2 else None) if cinit else 'fma'
        av=pos[('K',h,7)]+1+HZ
        dueS=pos[('K',h+3,0)] if h+3<16 else NM
        for x in exp_blk(vS[h%3],vP[h%4],pre):
            a=av; d=dueS
            if x.text.startswith("v_cvt"):
                k=list(x.wr)[0]-vP[h%4]; tl=k//4
                d=min(d,min(pos[('V',h,tl,dt)] for dt in range(4)))
                if h>=4: a=max(a,max(pos[('V',h-4,tl,dt)] for dt in range(4))+1)
            F.append([x,a,d])
    fin=[valu("v_add_f32",vLa,vLa,vLb)]; crosshalf(fin,vLa,vT1,"v_add_f32")
    fin.append(trans("v_rcp_f32",vRL,vLa))
    br="" if nomem else ("\n    s_cbranch_vccnz L_slow" if not forceslow else "\n    s_branch L_slow")
    fin.append(I(f"v_cmp_nge_f32 vcc, {sTHR}, v{vLa}"+br,'valu',rd=[vLa],sw=['vcc'],sr=[sTHR],cost=8))
    fin.append(valu("v_mov_b32",vRL+1,vRL))
    addF(fin,0,NM)
    def setvcc(s): return I(f"s_mov_b64 vcc, {s}",'salu')
    def epi(dt,pk=False,tmp=None):
        o=vO+16*dt; r=[]
        r+=[pkmul(o+2*k,o+2*k,vRL) for k in range(8)] if pk else [valu("v_mul_f32",o+k,o+k,vRL) for k in range(16)]
        r+=[valu("v_cvt_pk_bf16_f32",o+k,o+2*k,o+2*k+1) for k in range(8)]
        W=lambda k,e:o+2*k+e; X=lambda k,e:o+8+2*k+e
        g=[]
        g.append([setvcc(sEV)]+[cnd_dpp(X(k,e),W(k+1,e),W(k,e),"[1,0,3,2]") for k in (0,2) for e in range(2)])
        g.append([setvcc(sOD)]+[cnd_dpp(X(k+1,e),W(k,e),W(k+1,e),"[1,0,3,2]") for k in (0,2) for e in range(2)])
        g.append([setvcc(sLO)]+[cnd_dpp(W(k,e),X(k+2,e),X(k,e),"[2,3,0,1]") for k in (0,1) for e in range(2)])
        g.append([setvcc(sHI)]+[cnd_dpp(W(k+2,e),X(k,e),X(k+2,e),"[2,3,0,1]") for k in (0,1) for e in range(2)])
        for x in g: r+=x
        for j in range(2): r+=[perm32(o+4*j,o+4*j+2),perm32(o+4*j+1,o+4*j+3)]
        sts=[I(f"buffer_store_dwordx4 {vr(o+4*j,4)}, v{vOA}, s[32:35], 0 offen offset:{512*j+64*dt} {stflags}".rstrip(),'st4',rd=[vOA]+R(o+4*j,4),cost=stc) for j in range(2)]
        return r,sts
    lastdt={dt:max(i for i,m in enumerate(M) if m['id'][0]=='V' and m['id'][3]==dt) for dt in range(4)}
    dorder=sorted(range(4),key=lambda d:lastdt[d])
    held=[]
    for n,dt in enumerate(dorder[:3]):
        r,sts=epi(dt,pk=(pk2 and n==2))
        if pair:
            if n%2==0: held=sts; sts=[]
            else:
                assert dt//2==dorder[n-1]//2
                sts=[held[0],sts[0],held[1],sts[1]]; held=[]
        for x in sts[1:]: x.cost=0
        addF((stamp('e0') if dt==dorder[0] else [])+r+sts,(lastdt[dt]+1+HZ) if not (pk2 and n==2) else NM+5,NM+1)
    lastflag=max(i for i,m in enumerate(M) if 'need' in m)-pf
    assert lastflag<lastdt[dorder[0]]
    P=[]
    P+=([flag_read()]+flag_check("s46","q")) if not qbar else stamp('q')
    for s in range(8): P.append(dsr128(vQ+4*s,vT1,32*s))
    P+=[valu("v_mov_b32",vLa,"0"),valu("v_mov_b32",vLb,"0")]
    if cinit:
        P+=[valu("v_mov_b32",vRL,sC),valu("v_mov_b32",vRL+1,sC)]
        t=vS[2]
        for r in range(34):
            if r<32:
                a=t+2*(r%8); P+=[valu("v_lshlrev_b32",a,"16",vQ+r),valu("v_and_b32",a+1,"0xffff0000",vQ+r)]
            if 1<=r<33:
                b=t+2*((r-1)%8); P.append(pkmul(b,b,vRL))
            if r>=2:
                b=t+2*((r-2)%8); P.append(valu("v_cvt_pk_bf16_f32",vQ+r-2,b,b+1))
    fi=0; cost=0
    def issue_reads(i):
        nonlocal cost
        m=M[i]
        if 'need' in m:
            if not m.get('fr'): P.append(flag_read()); cost+=4
            P.extend(flag_check(*m['need'])); cost+=12
        P.extend(m['reads']); cost+=4*len(m['reads'])
        if 'sig' in m: P.extend(signal(m['sig'])); cost+=8
        if 'bar' in m and not nomem: P.append(raw("s_barrier")); cost+=4
    needs=[i for i in range(NM) if 'need' in M[i]]
    lates=[i for i in needs if M[i]['need'][1] in ('K1','V0')] if late else []
    def rg(i):
        g=i-pf
        for b in lates:
            if b<=i: g=max(g,b-late)
        return max(g,-1)
    by_gap={}
    for i in range(NM): by_gap.setdefault(rg(i),[]).append(i)
    fr_gap={}
    for a,b in zip([None]+needs[:-1],needs):
        g=rg(b)-fl
        if a is not None: g=max(g,rg(a))
        if 0<=g<rg(b): fr_gap[g]=b
    for i in by_gap[-1]: issue_reads(i)
    carry=0
    for g in range(NM):
        while fi<len(F) and any(F[k][2]<=g for k in range(fi,min(fi+150,len(F)))):
            assert F[fi][1]<=g+HZ, ("forced before avail",F[fi][0].text,F[fi][1],g)
            P.append(F[fi][0]); fi+=1
        cost=0
        if G>1 and g%G==0:
            ex=set()
            for k in range(1,G):
                if g+k<NM and rg(g+k)<g-1:
                    for r in M[g+k]['reads']: ex|=r.wr
            P.append(I("",'touch',rd=ex,cost=0))
        P.append(M[g]['mfma'])
        if slow and g%4==0: P.append(nop(slow-1))
        if (g+1)%G==0: cost+=4
        for i in by_gap.get(g,[]): issue_reads(i)
        if g in fr_gap:
            P.append(flag_read()); M[fr_gap[g]]['fr']=True; cost+=4
        b=budget if g<pos[('K',15,7)] else tailb
        lim=b+carry
        while fi<len(F) and F[fi][1]<=g+1 and cost+F[fi][0].cost<=lim:
            P.append(F[fi][0]); cost+=F[fi][0].cost; fi+=1
        carry=max(-8,min(4,lim-cost))
    while fi<len(F): P.append(F[fi][0]); fi+=1
    r,sts=epi(dorder[3],pk=True)
    if pair: sts=[held[0],sts[0],held[1],sts[1]]
    P+=stamp('e3')+r+sts+stamp('st')
    prog=insert_lgkm(P); prog=[x for x in prog if x.kind!='touch']
    prog,added=pad_hazards(prog,verbose)
    nh=0
    if hop:
        out=[]; cnt=0
        step=len(prog)//hop+1
        nxt=step//2
        pts=[]
        for i,x in enumerate(prog):
            if i>=nxt and x.kind in ('mfma','valu') and nh<hop:
                tgt=f"L_hop{nh+4}" if nh+4<hop else "L_hopdone"
                out.append(label(f"L_hop{nh}")); out.append(raw(f"s_cbranch_execz {tgt}")); nh+=1; nxt+=step
            out.append(x)
        assert nh==hop,(nh,hop)
        prog=out
    k0=[i for i,x in enumerate(prog) if x.kind=='mfma'][0]
    sys.stderr.write(f"consumer: {len(prog)} instrs, nops {added}, est total {est_cycles(prog)} from-first-mfma {est_cycles(prog[k0:])}\n")

    S=[]; sa=vS[0]; kf=vS[1]; sp=vP[0]
    S+=[label("L_slow"), raw("s_waitcnt vmcnt(0) lgkmcnt(0)"), nop(15), nop(15)]
    S+=[valu("v_mov_b32",vMX,"0xff800000"), raw("s_mov_b32 s46, 0"), label("L_s1")]
    def kload():
        return [raw(f"buffer_load_dwordx4 {vr(kf+4*s,4)}, v{vGK}, s[20:23], s46 offen offset:{32*s}") for s in range(8)]+[raw("s_waitcnt vmcnt(0)")]
    S+=kload()+[mfma32(sa,kf+4*s,vQ+4*s,"0" if s==0 else sa) for s in range(8)]+max_blk(sa,vMX,False)
    S+=[raw("s_add_u32 s46, s46, 8192"),raw("s_cmp_lt_u32 s46, 131072"),raw("s_cbranch_scc1 L_s1")]
    crosshalf(S,vMX,vT1,"v_max_f32")
    S+=[valu("v_sub_f32",vNM,"0",vMX)] if cinit else [valu("v_mul_f32",vNM,sC,vMX),valu("v_sub_f32",vNM,"0",vNM)]
    S+=[valu("v_mov_b32",vLa,"0"),valu("v_mov_b32",vLb,"0")]+[valu("v_mov_b32",vO+i,"0") for i in range(64)]
    S+=[raw("s_mov_b32 s46, 0"), label("L_s2")]
    S+=kload()+[mfma32(sa,kf+4*s,vQ+4*s,"0" if s==0 else sa) for s in range(8)]
    S+=exp_blk(sa,sp,'add' if cinit else 'fma')
    for t in range(2):
        for u in range(2):
            S+=[raw("s_mov_b32 m0, s47"),raw(f"s_add_u32 s19, s46, {t*4096+u*2048}"),raw(f"buffer_load_dwordx4 v{vGV}, s[24:27], s19 offen lds"),
                raw(f"buffer_load_dwordx4 v{vGV}, s[24:27], s19 offen offset:1024 lds"),raw("s_waitcnt vmcnt(0)")]
            S+=[raw(f"ds_read_b64_tr_b16 {vr(kf+4*dt+2*u,2)}, v{vT2} offset:{64*dt}") for dt in range(4)]
            S.append(raw("s_waitcnt lgkmcnt(0)"))
        S+=[mfma32(vO+16*dt,kf+4*dt,sp+4*t,vO+16*dt) for dt in range(4)]
    S+=[nop(15),raw("s_add_u32 s46, s46, 8192"),raw("s_cmp_lt_u32 s46, 131072"),raw("s_cbranch_scc1 L_s2")]
    S.append(valu("v_add_f32",vLa,vLa,vLb)); crosshalf(S,vLa,vT1,"v_add_f32")
    S+=[trans("v_rcp_f32",vRL,vLa),nop(1)]
    for dt in range(4):
        r,sts=epi(dt); S+=r+sts
    S.append(raw("s_endpgm"))
    S,_=pad_hazards(S)

    H=[]; e=H.append
    e(f"; @launch grid=(256,1,1) block=({256+64*nload},1,1) lds={lds}")
    e('.amdgcn_target "amdgcn-amd-amdhsa--gfx950"')
    e(f".text\n.globl {KN}\n.p2align 8\n.type {KN},@function\n{KN}:")
    e("s_load_dwordx4 s[4:7], s[0:1], 0")
    e("s_load_dwordx4 s[8:11], s[0:1], 16")
    if stamps:
        e("s_load_dwordx2 s[12:13], s[0:1], 40")
        e("s_memrealtime s[96:97]\ns_memtime s[98:99]")
    if diag is not None: e("s_memrealtime s[96:97]")
    e("s_cmp_ge_u32 s2, 256\ns_cbranch_scc1 L_end")
    e("v_lshrrev_b32 v1, 6, v0\nv_and_b32 v2, 63, v0")
    if xmap==0: e("s_and_b32 s14, s2, 7\ns_lshr_b32 s15, s2, 4\ns_lshl_b32 s15, s15, 3\ns_add_u32 s14, s14, s15")
    else: e("s_and_b32 s14, s2, 7\ns_lshr_b32 s15, s2, 4\ns_lshl_b32 s14, s14, 4\ns_add_u32 s14, s14, s15")
    e("v_readfirstlane_b32 s16, v1")
    e("s_bfe_u32 s15, s2, 0x10003")
    e("s_lshl_b32 s17, s14, 17")
    e("s_lshl_b32 s18, s14, 16\ns_lshl_b32 s19, s15, 15\ns_add_u32 s18, s18, s19")
    e(f"v_lshlrev_b32 v{vSA}, 2, v0\nv_add_u32 v{vSA}, {FB}, v{vSA}\nv_mov_b32 v{vSG}, 0\nds_write_b32 v{vSA}, v{vSG}")
    e(f"s_cmp_ge_u32 s16, {nload}\ns_cbranch_scc1 L_consumer")
    if nomem==1: e("s_waitcnt lgkmcnt(0)\ns_barrier\ns_endpgm")
    if lprio: e(f"s_setprio {lprio}")
    e("s_getpc_b64 s[36:37]\nL_pc:")
    e("s_add_u32 s36, s36, L_table-L_pc\ns_addc_u32 s37, s37, 0\ns_mov_b32 s38, 128\ns_mov_b32 s39, 0x20000")
    e("v_lshrrev_b32 v3, 4, v2\nv_and_b32 v4, 15, v2\nv_lshlrev_b32 v4, 4, v4")
    e("s_lshl_b32 s44, s16, 8")
    e("v_add_u32 v4, s44, v4")
    e("v_lshl_add_u32 v6, v3, 12, v4\nv_lshl_add_u32 v7, v3, 10, v4")
    e("s_mul_i32 s42, s16, 1040\ns_mul_i32 s43, s16, 1088")
    if lin:
        assert nload==4
        e("s_mul_i32 s84, s16, 3120\ns_mul_i32 s43, s16, 4352\ns_lshl_b32 s85, s16, 12\ns_add_u32 s17, s17, s85\nv_lshlrev_b32 v5, 4, v2")
    e(f"s_add_u32 s44, s44, {FB}")
    e(f"s_add_u32 s46, s42, {QOFF[0]}")
    e("s_mov_b32 s30, 32768\ns_mov_b32 s31, 0x20000\ns_mov_b32 s22, 131072\ns_mov_b32 s23, 0x20000\ns_mov_b32 s26, 131072\ns_mov_b32 s27, 0x20000")
    if lin: e("s_sub_u32 s22, s22, s85\ns_sub_u32 s26, s26, s85")
    if lin==2: e("s_mov_b32 s23, 0x800000\ns_mov_b32 s27, 0x800000")
    e(f"s_movk_i32 s40, {nload*784}\ns_movk_i32 s41, {nload*832}")
    e("s_waitcnt lgkmcnt(0)")
    ldiag = diag if isinstance(diag,str) and diag.startswith('l') else None
    lst=[0]
    def lstamp(name):
        if ldiag==name: e("s_memrealtime s[60:61]")
        if stamps:
            i=lst[0]; lst[0]+=1; e(f"s_memtime s[{50+2*i}:{51+2*i}]")
    lstamp('l0')
    e("s_add_u32 s28, s4, s18\ns_addc_u32 s29, s5, 0")
    NI=16//nload
    def kq_stage(srd,m0base,soff):
        e(f"s_mov_b32 m0, {m0base}")
        for g in range(NI):
            if g==0: e("s_nop 0")
            e(f"buffer_load_dwordx4 v6, {srd}, {soff} offen offset:{g*nload*256} {ldflags} lds")
            if g<NI-1: e("s_add_u32 m0, m0, s40\ns_nop 0")
    def v_stage():
        e("s_add_u32 m0, s46, s43")
        per=4//nload
        for t in range(4):
            for rr in range(per):
                if t==0 and rr==0: e("s_nop 0")
                e(f"buffer_load_dwordx4 v7, s[24:27], s15 offen offset:{rr*nload*256} {ldflags} lds")
                if rr<per-1: e("s_add_u32 m0, m0, s41\ns_nop 0")
            if t<3: e(f"s_add_u32 m0, m0, {4352-(per-1)*nload*832}\ns_add_u32 s15, s15, 4096")
    if lin:
        _kq=kq_stage
        vo = "v5" if lin==1 else "off"; of = "offen " if lin==1 else ""
        def lin_stage(srd,soff,step):
            for g in range(4):
                if g==0: e("s_nop 0")
                e(f"buffer_load_dwordx4 {vo}, {srd}, {soff} {of}offset:{g*1024} {ldflags} lds")
                if g<3: e(f"s_add_u32 m0, m0, {step}\ns_nop 0")
        def kq_stage(srd,m0base,soff):
            if srd=="s[28:31]": return _kq(srd,m0base,soff)
            e(f"s_add_u32 m0, {m0base}, s84"); lin_stage(srd,soff,16)
        def v_stage():
            e("s_add_u32 m0, s46, s43"); lin_stage("s[24:27]","s15",64)
    def lflag(soff): e(f"s_mov_b32 m0, s44\ns_nop 0\nbuffer_load_dword v{vSG}, s[36:39], {soff} offen lds" if lin<2 else f"s_mov_b32 m0, s44\ns_nop 0\nbuffer_load_dword off, s[36:39], {soff} lds")
    if not stag:
        kq_stage("s[28:31]","s46","0")
        if not qbar: lflag("4")
        lstamp('l1')
        e(f"s_add_u32 s46, s42, {QOFF[1]}\ns_movk_i32 s45, 16384")
        kq_stage("s[28:31]","s46","s45")
        if not qbar: lflag("8")
        e("s_add_u32 s20, s6, s17\ns_addc_u32 s21, s7, 0")
        if lin==2: e("s_or_b32 s21, s21, 0x100000")
        kq_stage("s[20:23]","s42","0"); lflag("12")
    else:
        e("s_add_u32 s20, s6, s17\ns_addc_u32 s21, s7, 0")
        kq_stage("s[28:31]","s46","0")
        lstamp('l1')
        kq_stage("s[20:23]","s42","0"); lflag("8")
        e(f"s_add_u32 s47, s42, {SS}\ns_movk_i32 s45, 16384")
        kq_stage("s[20:23]","s47","s45"); lflag("12")
    lstamp('l2')
    e("s_add_u32 s24, s8, s17\ns_addc_u32 s25, s9, 0")
    if lin==2: e("s_or_b32 s25, s25, 0x100000")
    e(f"v_and_b32 v3, 3, v2\nv_lshlrev_b32 v3, 8, v3\nv_lshl_add_u32 v{vFA}, v2, 2, v3\nv_add_u32 v{vFA}, {FB+256*nload}, v{vFA}")
    e(f"s_mov_b32 s46, {SS}\ns_mov_b32 s49, 16\ns_add_u32 s43, s43, {KSL}")
    def need_for(i):
        if i<4: return 0
        req=6 if i in (4,8) else 2*(i-4)+4
        return min(2*it+4 for it in sig_iters if 2*it+4>=req)
    packed=0
    seen=0
    for i in range(1,9):
        n=need_for(i)
        if n>seen: packed|=n<<(4*(i-1)); seen=n
    e(f"s_mov_b32 s48, {packed:#x}")
    if not qbar: e("s_barrier")
    else:
        assert not stag
        e(f"s_add_u32 s47, s46, s42\ns_waitcnt vmcnt({2*NI+1})")
        kq_stage("s[20:23]","s47","s45"); lflag("16")
        e(f"s_lshr_b32 s48, s48, 4\ns_mov_b32 s15, 0\ns_mov_b32 s49, 20\ns_waitcnt vmcnt({2*NI+2})\ns_barrier\ns_branch L_lv")
    if d0<depth: e(f"s_waitcnt vmcnt({(NI+1)*(d0-1)})")
    W=(NI+1)*(depth-1)
    if stag:
        e(f"s_add_u32 s47, s42, {QOFF[1]}\ns_waitcnt vmcnt({W})")
        kq_stage("s[28:31]","s47","s45"); lflag("16")
        e("s_lshr_b32 s48, s48, 4\ns_mov_b32 s15, 0\ns_mov_b32 s49, 20\ns_branch L_lv")
    e("L_lloop:")
    if not nomem:
        e("s_and_b32 s14, s48, 15\ns_cbranch_scc0 L_lgo")
        if bar: e("s_barrier\nL_lgo:")
        else: e(f"s_branch L_lx\nL_lw:\ns_sleep {lsleep}\nL_lx:\nds_read_b32 v8, v{vFA}\ns_waitcnt lgkmcnt(0)\nv_cmp_gt_u32 vcc, s14, v8\ns_cbranch_vccnz L_lw\nL_lgo:")
    e("s_lshr_b32 s48, s48, 4\ns_sub_u32 s15, s45, 16384")
    e(f"s_cmp_eq_u32 s49, 72\ns_cselect_b32 s46, {XB-KSL}, s46\ns_cbranch_scc1 L_lv")
    e("s_add_u32 s47, s46, s42")
    e(f"s_waitcnt vmcnt({W})")
    kq_stage("s[20:23]","s47","s45"); lflag("s49")
    e("s_add_u32 s49, s49, 4")
    e("L_lv:")
    e(f"s_waitcnt vmcnt({W})")
    v_stage(); lflag("s49")
    e(f"s_add_u32 s49, s49, 4\ns_add_u32 s45, s45, 16384\ns_add_u32 s46, s46, {SS}\ns_cmp_eq_u32 s46, {4*SS}\ns_cselect_b32 s46, 0, s46")
    e("s_cmp_lt_u32 s49, 76\ns_cbranch_scc1 L_lloop")
    lstamp('l3')
    e("s_waitcnt vmcnt(0)")
    lstamp('l4')
    if stamps:
        e("s_memrealtime s[94:95]\ns_waitcnt lgkmcnt(0)")
        e("s_mov_b32 s36, s12\ns_mov_b32 s37, s13\ns_mov_b32 s38, 0x1000000\ns_mov_b32 s39, 0x20000")
        e("s_cmp_lg_u32 s16, 0\ns_cbranch_scc1 L_end")
        e("s_lshl_b32 s45, s2, 8\ns_add_u32 s45, s45, 65536\nv_mov_b32 v7, s45")
        for i,r in enumerate([96,98]+[50+2*min(i,lst[0]-1) for i in range(scnt[0]+1)]+[94]):
            e(f"v_mov_b32 v8, s{r}\nbuffer_store_dword v8, v7, s[36:39], 0 offen offset:{4*i}\ns_nop 1")
    if ldiag:
        e(f"s_memrealtime s[62:63]\ns_waitcnt lgkmcnt(0)\ns_sub_u32 s67, s60, s96\ns_mul_i32 s67, s67, {dk}\ns_add_u32 s67, s67, 500\ns_min_u32 s67, s67, 100000\nL_lspin:\ns_memrealtime s[64:65]\ns_waitcnt lgkmcnt(0)\ns_sub_u32 s66, s64, s62\ns_cmp_lt_u32 s66, s67\ns_cbranch_scc1 L_lspin")
    e("L_end:\ns_endpgm")
    e(".p2align 7\nL_table:\n"+"\n".join(f".long {i}" for i in range(32)))
    e("L_consumer:")
    if cprio: e(f"s_setprio {cprio}")
    e(f"s_sub_u32 s16, s16, {nload}")
    e(f"v_and_b32 v3, {nload-1}, v2\nv_lshlrev_b32 v3, 8, v3\nv_lshl_add_u32 v{vFA}, v2, 2, v3")
    if codepf:
        e("s_getpc_b64 s[36:37]\nL_pc2:\ns_add_u32 s36, s36, L_main-L_pc2\ns_addc_u32 s37, s37, 0\ns_mov_b32 s38, L_slow-L_main\ns_mov_b32 s39, 0x20000")
        e("s_lshr_b32 s45, s2, 3\ns_lshl_b32 s45, s45, 2\ns_add_u32 s45, s45, s16\ns_lshl_b32 s45, s45, 7\nv_mov_b32 v9, 0\nbuffer_load_dword v31, v9, s[36:39], s45 offen")
    if hop:
        e("s_mov_b64 exec, 0\ns_cmp_eq_u32 s16, 0\ns_cbranch_scc1 L_hop0\ns_cmp_eq_u32 s16, 1\ns_cbranch_scc1 L_hop1\ns_cmp_eq_u32 s16, 2\ns_cbranch_scc1 L_hop2\ns_branch L_hop3\nL_hopdone:\ns_mov_b64 exec, -1")
    e(f"v_add_u32 v{vFA}, {FB}, v{vFA}")
    e("v_lshrrev_b32 v4, 5, v2\nv_and_b32 v5, 15, v2\nv_bfe_u32 v6, v2, 4, 1")
    e(f"v_mul_u32_u24 v{vKA[0]}, 1040, v5\nv_lshl_add_u32 v{vKA[0]}, v6, 8, v{vKA[0]}\nv_lshl_add_u32 v{vKA[0]}, v4, 4, v{vKA[0]}\nv_add_u32 v{vKA[1]}, {2*SS}, v{vKA[0]}")
    e("v_lshrrev_b32 v7, 2, v5\nv_and_b32 v8, 3, v5")
    e("v_lshlrev_b32 v3, 8, v4\nv_lshl_add_u32 v3, v6, 5, v3\nv_lshl_add_u32 v3, v8, 3, v3")
    if lin: e("v_mul_u32_u24 v3, 4352, v4\nv_lshl_add_u32 v3, v6, 5, v3\nv_lshl_add_u32 v3, v8, 3, v3")
    e(f"v_mul_u32_u24 v{vT2}, 1088, v7\nv_add_u32 v{vT2}, v{vT2}, v3")
    e(f"v_add_u32 v{vVA[0]}, {KSL}, v{vT2}\nv_add_u32 v{vVA[1]}, {KSL+2*SS}, v{vT2}\nv_add_u32 v{vVA[2]}, {XB}, v{vT2}")
    e(f"s_mul_i32 s47, s16, {STG}\ns_add_u32 s47, s47, {SB}")
    e(f"v_lshlrev_b32 v{vT2}, 10, v4\nv_lshl_add_u32 v{vT2}, v7, 8, v{vT2}\nv_lshl_add_u32 v{vT2}, v6, 5, v{vT2}\nv_lshl_add_u32 v{vT2}, v8, 3, v{vT2}\nv_add_u32 v{vT2}, s47, v{vT2}")
    e(f"v_and_b32 v3, 31, v2\nv_lshlrev_b32 v{vGK}, 8, v3\nv_lshl_add_u32 v{vGK}, v4, 4, v{vGK}")
    e(f"v_lshlrev_b32 v{vGV}, 4, v2")
    e(f"s_lshl_b32 s45, s16, 13\nv_bfe_u32 v3, v2, 2, 3\nv_lshlrev_b32 v{vOA}, 10, v3\nv_lshl_add_u32 v{vOA}, v4, 8, v{vOA}\nv_lshl_add_u32 v{vOA}, v8, 4, v{vOA}\nv_add_u32 v{vOA}, s45, v{vOA}")
    e(f"s_mov_b32 {sC}, {f2u(C_SCALE):#x}\ns_mov_b32 {sTHR}, {f2u(lthr):#x}")
    e("s_mov_b32 s76, 0x55555555\ns_mov_b32 s77, s76\ns_not_b64 s[78:79], s[76:77]\ns_mov_b32 s80, 0x33333333\ns_mov_b32 s81, s80\ns_not_b64 s[82:83], s[80:81]")
    e(f"s_lshr_b32 s46, s16, 1\ns_mov_b32 s45, {QOFF[0]}\ns_cmp_eq_u32 s46, 0\ns_cselect_b32 s45, s45, {QOFF[1]}\ns_and_b32 s19, s16, 1\ns_lshl_b32 s19, s19, 9\ns_add_u32 s45, s45, s19\ns_add_u32 s46, s46, 1")
    if stag: e("s_lshl_b32 s46, s46, 1")
    e(f"v_add_u32 v{vT1}, s45, v{vKA[0]}")
    e("s_waitcnt lgkmcnt(0)")
    e("s_add_u32 s32, s10, s18\ns_addc_u32 s33, s11, 0\ns_mov_b32 s34, 32768\ns_mov_b32 s35, 0x20000")
    e("s_add_u32 s20, s6, s17\ns_addc_u32 s21, s7, 0\ns_mov_b32 s22, 131072\ns_mov_b32 s23, 0x20000")
    e("s_add_u32 s24, s8, s17\ns_addc_u32 s25, s9, 0\ns_mov_b32 s26, 131072\ns_mov_b32 s27, 0x20000")
    e("s_barrier")
    if stamps: e("s_mov_b32 s74, 0\ns_mov_b32 s75, 0")
    e("s_branch L_main")
    e(text(rare))
    e(".p2align 3\nL_main:")
    e(text(prog))
    if stamps:
        ns=scnt[0]
        e("s_waitcnt vmcnt(0)")
        e(f"s_memtime s[{50+2*ns}:{51+2*ns}]\ns_memrealtime s[{52+2*ns}:{53+2*ns}]\ns_waitcnt lgkmcnt(0)")
        e("s_mov_b32 s36, s12\ns_mov_b32 s37, s13\ns_mov_b32 s38, 0x1000000\ns_mov_b32 s39, 0x20000")
        e("s_cmp_lg_u32 s16, 3\ns_cbranch_scc1 L_end2")
        e("s_lshl_b32 s45, s2, 8\nv_mov_b32 v7, s45")
        regs=[96,98]+[50+2*i for i in range(ns+2)]
        assert regs[-1]<74
        regs+=[74,75]
        for i,r in enumerate(regs):
            e(f"v_mov_b32 v8, s{r}\nbuffer_store_dword v8, v7, s[36:39], 0 offen offset:{4*i}\ns_nop 1")
        sys.stderr.write(f"nstamps={len(regs)}\n")
        e("L_end2:")
    if diag is not None and not ldiag:
        e("s_waitcnt vmcnt(0)")
        if diag=='end': e("s_memrealtime s[60:61]")
        e(f"s_memrealtime s[62:63]\ns_waitcnt lgkmcnt(0)\ns_sub_u32 s67, s60, s96\ns_mul_i32 s67, s67, {dk}\ns_min_u32 s67, s67, 100000\nL_spin:\ns_memrealtime s[64:65]\ns_waitcnt lgkmcnt(0)\ns_sub_u32 s66, s64, s62\ns_cmp_lt_u32 s66, s67\ns_cbranch_scc1 L_spin")
    e("s_endpgm")
    e(text(S))
    e(f'.section .rodata,"a"\n.p2align 6\n.amdhsa_kernel {KN}')
    e(f"  .amdhsa_next_free_vgpr 256\n  .amdhsa_next_free_sgpr 102\n  .amdhsa_accum_offset 256\n  .amdhsa_group_segment_fixed_size 0\n  .amdhsa_kernarg_size 48\n  .amdhsa_user_sgpr_count 2\n  .amdhsa_user_sgpr_kernarg_segment_ptr 1\n  .amdhsa_system_sgpr_workgroup_id_x 1\n.end_amdhsa_kernel")
    return "\n".join(H)+"\n"

if __name__=="__main__":
    name=sys.argv[1]; kw={}
    for a in sys.argv[2:]:
        k,v=a.split("=",1)
        try: v=int(v)
        except:
            try: v=float(v)
            except: pass
        kw[k]=v
    open(name,"w").write(gen(**kw))
```

```python
import sys, math, struct
from asmlib import *

KN="standalone__gqa_softmax__near_ridge_kernel"
C_SCALE = math.log2(math.e)/math.sqrt(128.0)
def f2u(x): return struct.unpack("<I",struct.pack("<f",x))[0]

KSL=16640; VSL=17408; SS=KSL+VSL
XB=4*SS; FB=XB+VSL; SB=FB+2048; STG=2048
assert SB+4*STG<=163840
def KOFF(j): return (j%4)*SS
def VOFF(j): return XB if j==7 else ((j+1)%4)*SS+KSL
QOFF=[VOFF(3),XB]

def pkmul(d,a,b):
    return I(f"v_pk_mul_f32 {vr(d,2)}, {vr(a,2)}, {vr(b,2)}",'valu',rd=R(a,2)+R(b,2),wr=R(d,2),cost=6)
def cnd_dpp(d,s0,s1,qp):
    return I(f"v_cndmask_b32_dpp v{d}, v{s0}, v{s1}, vcc quad_perm:{qp} row_mask:0xf bank_mask:0xf",'dpp',rd=[s0,s1],wr=[d])

def gen(depth=3, ldflags="nt", stflags="nt", stamps=0, pf=6, G=2, lthr=2.0**24, budget=24, fl=4, lprio=0, cprio=0,
        verbose=0, diag=None, dk=1, nomem=0, lds=163840, xmap=0, NFR=8, lsleep=4,
        cinit=1, forceslow=0, HZ=2, d0=3, tailb=40, order=1, stc=24, sigs="1,3", bar=0, hop=0, codepf=1, stset='q,K0,K1,K3,K5,K7,V7,e0,e3,st', nosig=0, pair=1, nload=4, stag=0, head=0, late=0, slow=0, lin=0, qsleep=0, pk2=0, osleep=0, qbar=0, dryt=0):
    vKA=[10,11]; vVA=[12,13,30]
    vFA,vSA=14,15
    vNM,vLa,vLb,vMX,vT1,vOA=16,17,18,19,20,21
    vRL=22
    vF=[24,25]; vSG=26; vGK=27; vGV=28; vT2=29
    vQ=32; vFR=64
    vNB=vFR+4*NFR
    vS=[vNB+16+16*i for i in range(3)]
    vP=[vS[2]+16+8*i for i in range(4)]
    vO=vP[3]+8
    assert vO+64<=256
    sC="s40"; sTHR="s41"
    sEV,sOD,sLO,sHI="s[76:77]","s[78:79]","s[80:81]","s[82:83]"
    LK=(lambda j: 3 if j==0 else 2*j+2) if not stag else (lambda j: {0:1,1:3}.get(j,2*j+2))
    LV=lambda j: 2*j+5 if j<7 else 18
    sig_iters=[int(x) for x in str(sigs).split(",")]
    rare=[]; scnt=[0]
    def stamp(name):
        o=[]
        if diag==name: o.append(raw("s_memrealtime s[60:61]"))
        if stamps and name in stset.split(','):
            i=scnt[0]; scnt[0]+=1; o.append(raw(f"s_memtime s[{50+2*i}:{51+2*i}]"))
        return o
    cn=[0]
    def flag_read():
        r=vF[cn[0]%2]; return I(f"ds_read_b32 v{r}, v{vFA}",'dsr',rd=[vFA],wr=[r])
    def flag_check(val,name):
        r=vF[cn[0]%2]; cn[0]+=1
        if nomem: return stamp(name)
        if stamps: rare.extend([label(f"L_spin{name}"), raw(f"s_bitset1_b32 s75, {cn[0]-1}"), raw("s_add_u32 s74, s74, 1")])
        rare.extend(([] if stamps else [label(f"L_spin{name}")])+([raw(f"s_sleep {qsleep}")] if (qsleep and name=='q') else [])+([raw(f"s_sleep {osleep}")] if (osleep and name!='q') else [])+[ raw(f"ds_read_b32 v{r}, v{vFA}"), raw("s_waitcnt lgkmcnt(0)"),
                     raw(f"v_cmp_gt_u32 vcc, {val}, v{r}"), raw(f"s_cbranch_vccnz L_spin{name}"), raw(f"s_branch L_back{name}")])
        return [I(f"v_cmp_gt_u32 vcc, {val}, v{r}\n    s_cbranch_vccnz L_spin{name}\nL_back{name}:",'valu',rd=[r],sw=['vcc'],cost=8,tag='vcc')]+stamp(name)
    def signal(val): return [] if nosig else [valu("v_mov_b32",vSG,str(val)), I(f"ds_write_b32 v{vSA}, v{vSG}",'dsw',rd=[vSA,vSG])]

    M=[]
    def addr(base,off):
        ss=off//SS; return (base[ss//2], off-(ss//2)*2*SS)
    def add_qk(h):
        j,u=divmod(h,2); d=vS[h%3]
        for s in range(8):
            f=vFR+4*(len(M)%NFR)
            c0=vNB if (cinit and h>=2) else "0"
            a,o=addr(vKA,KOFF(j)+u*512+s*32)
            M.append(dict(mfma=mfma32(d,f,vQ+4*s,c0 if s==0 else d),reads=[dsr128(f,a,o)],st=('K',j),id=('K',h,s)))
    def add_pv(h,dts,first=False):
        j,u=divmod(h,2)
        for tl in range(2):
            for dt in dts:
                one_pv(h,tl,dt)
    def one_pv(h,tl,dt):
        j,u=divmod(h,2); t=2*u+tl
        f=vFR+4*(len(M)%NFR)
        rds=[]
        for x in range(2):
            io=(t*4352+x*512+64*dt) if not lin else (x*8704+t*256+64*dt)
            a,o=addr(vVA,VOFF(j)-KSL+io) if j<7 else (vVA[2],io); rds.append(dsrtr(f+2*x,a,o))
        c="0" if (h==0 and tl==0) else vO+16*dt
        M.append(dict(mfma=mfma32(vO+16*dt,f,vP[h%4]+4*tl,c),reads=rds,st=('V',j),id=('V',h,tl,dt)))
    add_qk(0); add_qk(1)
    if head:
        add_qk(2); add_qk(3); add_pv(0,range(4)); add_pv(1,range(4))
    for i in range(2 if head else 1,7):
        add_qk(2*i); add_pv(2*i-2,range(4)); add_qk(2*i+1); add_pv(2*i-1,range(4))
    def pvt(j,dt):
        for h in (2*j,2*j+1):
            for tl in range(2): one_pv(h,tl,dt)
    if order==1:
        add_qk(14); add_qk(15)
        pvt(6,3); pvt(6,2); pvt(6,0); pvt(7,0); pvt(6,1); pvt(7,1); pvt(7,2); pvt(7,3)
    elif order==2:
        add_qk(14); add_pv(12,(3,2)); add_qk(15); add_pv(13,(3,2))
        pvt(6,0); pvt(6,1); pvt(7,0); pvt(7,1); pvt(7,2); pvt(7,3)
    elif order==3:
        add_qk(14); add_qk(15)
        pvt(6,3); pvt(6,0); pvt(6,2); pvt(7,0); pvt(6,1); pvt(7,1); pvt(7,2); pvt(7,3)
    elif order==4:
        add_qk(14); add_qk(15)
        pvt(6,0); pvt(6,1); pvt(7,0); pvt(7,1); pvt(6,2); pvt(7,2); pvt(6,3); pvt(7,3)
    elif order==5:
        add_qk(14); add_qk(15)
        pvt(6,0); pvt(6,1); pvt(6,2); add_pv(14,(0,1)); add_pv(15,(0,1)); pvt(7,2); pvt(6,3); pvt(7,3)
    NM=len(M); assert NM==256
    pos={m['id']:i for i,m in enumerate(M)}
    first_use={}; last_use={}
    for i,m in enumerate(M):
        first_use.setdefault(m['st'],i); last_use[m['st']]=i
    for st,i in first_use.items(): M[i]['need']=(LK(st[1]) if st[0]=='K' else LV(st[1]), f"{st[0]}{st[1]}")
    if stag: del M[0]['need']
    for it in sig_iters:
        i0=max(last_use[('K',it)],last_use[('V',it-1)])
        if bar: M[i0+pf+1]['bar']=1
        else: M[i0]['sig']=2*it+4
    F=[]
    def addF(lst,avail,due):
        for x in lst: F.append([x,avail,due])
    def crosshalf(o,reg,tmp,op):
        o.append(valu("v_mov_b32",tmp,reg)); o.append(perm32(reg,tmp)); o.append(valu(op,reg,reg,tmp))
    def max_blk(src,dst,first):
        o=[valu("v_max3_f32",dst,src,src+1,src+2) if first else valu("v_max3_f32",dst,dst,src,src+1)]
        k=3 if first else 2
        while k+1<16: o.append(valu("v_max3_f32",dst,dst,src+k,src+k+1)); k+=2
        if k<16: o.append(valu("v_max_f32",dst,dst,src+k))
        return o
    def exp_blk(src,dstp,pre):
        seq=[]; n=16
        for i in range(n+3):
            if i<n and pre=='fma': seq.append(valu("v_fma_f32",src+i,src+i,sC,vNM))
            if i<n and pre=='add': seq.append(valu("v_add_f32",src+i,src+i,vNM))
            if 0<=i-1<n: seq.append(trans("v_exp_f32",src+i-1,src+i-1))
            if 0<=i-2<n:
                l=vLa if (i-2)%2==0 else vLb; seq.append(valu("v_add_f32",l,l,src+i-2))
            if i-3>=0 and (i-3)%2==1:
                k=(i-3)//2; seq.append(valu("v_cvt_pk_bf16_f32",dstp+k,src+2*k,src+2*k+1))
        return seq
    st=max_blk(vS[0],vMX,True); crosshalf(st,vMX,vT1,"v_max_f32")
    if cinit:
        st.append(valu("v_sub_f32",vNM,"0",vMX)); st+=[valu("v_sub_f32",vNB+i,"0",vMX) for i in range(16)]
        addF(st,8+HZ,16)
    else:
        st+=[valu("v_mul_f32",vNM,sC,vMX),valu("v_sub_f32",vNM,"0",vNM)]; addF(st,8+HZ,24)
    for h in range(16):
        pre=('add' if h<2 else None) if cinit else 'fma'
        av=pos[('K',h,7)]+1+HZ
        dueS=pos[('K',h+3,0)] if h+3<16 else NM
        for x in exp_blk(vS[h%3],vP[h%4],pre):
            a=av; d=dueS
            if x.text.startswith("v_cvt"):
                k=list(x.wr)[0]-vP[h%4]; tl=k//4
                d=min(d,min(pos[('V',h,tl,dt)] for dt in range(4)))
                if h>=4: a=max(a,max(pos[('V',h-4,tl,dt)] for dt in range(4))+1)
            F.append([x,a,d])
    fin=[valu("v_add_f32",vLa,vLa,vLb)]; crosshalf(fin,vLa,vT1,"v_add_f32")
    fin.append(trans("v_rcp_f32",vRL,vLa))
    br="" if nomem else ("\n    s_cbranch_vccnz L_slow" if not forceslow else "\n    s_branch L_slow")
    fin.append(I(f"v_cmp_nge_f32 vcc, {sTHR}, v{vLa}"+br,'valu',rd=[vLa],sw=['vcc'],sr=[sTHR],cost=8))
    fin.append(valu("v_mov_b32",vRL+1,vRL))
    addF(fin,0,NM)
    def setvcc(s): return I(f"s_mov_b64 vcc, {s}",'salu')
    def epi(dt,pk=False,tmp=None):
        o=vO+16*dt; r=[]
        r+=[pkmul(o+2*k,o+2*k,vRL) for k in range(8)] if pk else [valu("v_mul_f32",o+k,o+k,vRL) for k in range(16)]
        r+=[valu("v_cvt_pk_bf16_f32",o+k,o+2*k,o+2*k+1) for k in range(8)]
        W=lambda k,e:o+2*k+e; X=lambda k,e:o+8+2*k+e
        g=[]
        g.append([setvcc(sEV)]+[cnd_dpp(X(k,e),W(k+1,e),W(k,e),"[1,0,3,2]") for k in (0,2) for e in range(2)])
        g.append([setvcc(sOD)]+[cnd_dpp(X(k+1,e),W(k,e),W(k+1,e),"[1,0,3,2]") for k in (0,2) for e in range(2)])
        g.append([setvcc(sLO)]+[cnd_dpp(W(k,e),X(k+2,e),X(k,e),"[2,3,0,1]") for k in (0,1) for e in range(2)])
        g.append([setvcc(sHI)]+[cnd_dpp(W(k+2,e),X(k,e),X(k+2,e),"[2,3,0,1]") for k in (0,1) for e in range(2)])
        for x in g: r+=x
        for j in range(2): r+=[perm32(o+4*j,o+4*j+2),perm32(o+4*j+1,o+4*j+3)]
        sts=[I(f"buffer_store_dwordx4 {vr(o+4*j,4)}, v{vOA}, s[32:35], 0 offen offset:{512*j+64*dt} {stflags}".rstrip(),'st4',rd=[vOA]+R(o+4*j,4),cost=stc) for j in range(2)]
        return r,sts
    lastdt={dt:max(i for i,m in enumerate(M) if m['id'][0]=='V' and m['id'][3]==dt) for dt in range(4)}
    dorder=sorted(range(4),key=lambda d:lastdt[d])
    held=[]
    for n,dt in enumerate(dorder[:3]):
        r,sts=epi(dt,pk=(pk2 and n==2))
        if pair:
            if n%2==0: held=sts; sts=[]
            else:
                assert dt//2==dorder[n-1]//2
                sts=[held[0],sts[0],held[1],sts[1]]; held=[]
        for x in sts[1:]: x.cost=0
        addF((stamp('e0') if dt==dorder[0] else [])+r+sts,(lastdt[dt]+1+HZ) if not (pk2 and n==2) else NM+5,NM+1)
    lastflag=max(i for i,m in enumerate(M) if 'need' in m)-pf
    assert lastflag<lastdt[dorder[0]]
    P=[]
    P+=([flag_read()]+flag_check("s46","q")) if not qbar else stamp('q')
    for s in range(8): P.append(dsr128(vQ+4*s,vT1,32*s))
    P+=[valu("v_mov_b32",vLa,"0"),valu("v_mov_b32",vLb,"0")]
    if cinit:
        P+=[valu("v_mov_b32",vRL,sC),valu("v_mov_b32",vRL+1,sC)]
        t=vS[2]
        for r in range(34):
            if r<32:
                a=t+2*(r%8); P+=[valu("v_lshlrev_b32",a,"16",vQ+r),valu("v_and_b32",a+1,"0xffff0000",vQ+r)]
            if 1<=r<33:
                b=t+2*((r-1)%8); P.append(pkmul(b,b,vRL))
            if r>=2:
                b=t+2*((r-2)%8); P.append(valu("v_cvt_pk_bf16_f32",vQ+r-2,b,b+1))
    fi=0; cost=0
    def issue_reads(i):
        nonlocal cost
        m=M[i]
        if 'need' in m:
            if not m.get('fr'): P.append(flag_read()); cost+=4
            P.extend(flag_check(*m['need'])); cost+=12
        P.extend(m['reads']); cost+=4*len(m['reads'])
        if 'sig' in m: P.extend(signal(m['sig'])); cost+=8
        if 'bar' in m and not nomem: P.append(raw("s_barrier")); cost+=4
    needs=[i for i in range(NM) if 'need' in M[i]]
    lates=[i for i in needs if M[i]['need'][1] in ('K1','V0')] if late else []
    def rg(i):
        g=i-pf
        for b in lates:
            if b<=i: g=max(g,b-late)
        return max(g,-1)
    by_gap={}
    for i in range(NM): by_gap.setdefault(rg(i),[]).append(i)
    fr_gap={}
    for a,b in zip([None]+needs[:-1],needs):
        g=rg(b)-fl
        if a is not None: g=max(g,rg(a))
        if 0<=g<rg(b): fr_gap[g]=b
    for i in by_gap[-1]: issue_reads(i)
    carry=0
    for g in range(NM):
        while fi<len(F) and any(F[k][2]<=g for k in range(fi,min(fi+150,len(F)))):
            assert F[fi][1]<=g+HZ, ("forced before avail",F[fi][0].text,F[fi][1],g)
            P.append(F[fi][0]); fi+=1
        cost=0
        if G>1 and g%G==0:
            ex=set()
            for k in range(1,G):
                if g+k<NM and rg(g+k)<g-1:
                    for r in M[g+k]['reads']: ex|=r.wr
            P.append(I("",'touch',rd=ex,cost=0))
        P.append(M[g]['mfma'])
        if slow and g%4==0: P.append(nop(slow-1))
        if (g+1)%G==0: cost+=4
        for i in by_gap.get(g,[]): issue_reads(i)
        if g in fr_gap:
            P.append(flag_read()); M[fr_gap[g]]['fr']=True; cost+=4
        b=budget if g<pos[('K',15,7)] else tailb
        lim=b+carry
        while fi<len(F) and F[fi][1]<=g+1 and cost+F[fi][0].cost<=lim:
            P.append(F[fi][0]); cost+=F[fi][0].cost; fi+=1
        carry=max(-8,min(4,lim-cost))
    while fi<len(F): P.append(F[fi][0]); fi+=1
    r,sts=epi(dorder[3],pk=True)
    if pair: sts=[held[0],sts[0],held[1],sts[1]]
    P+=stamp('e3')+r+sts+stamp('st')
    prog=insert_lgkm(P); prog=[x for x in prog if x.kind!='touch']
    prog,added=pad_hazards(prog,verbose)
    if dryt:
        mi=[i for i,x in enumerate(prog) if x.kind=='mfma']
        a=mi[dryt]; n=len(prog)-a
        cuts=[a+n*k//4 for k in range(4)]
        out=[]; i=0; q=0
        while i<len(prog):
            x=prog[i]
            if q<4 and i>=cuts[q] and x.kind!='st4':
                if q>0: out.append(raw("s_cbranch_execz L_drydone"))
                out.append(label(f"L_dq{q}")); q+=1
            if x.kind=='st4':
                j=i
                while j+1<len(prog) and prog[j+1].kind=='st4': j+=1
                last = all(y.kind!='st4' and y.kind!='valu' for y in prog[j+1:])
                out.append(raw("s_cbranch_execz L_drydone" if last else f"s_cbranch_execz L_sk{i}")); out+=prog[i:j+1]
                if not last: out.append(label(f"L_sk{i}"))
                i=j+1; continue
            out.append(x); i+=1
        prog=out
    nh=0
    if hop:
        out=[]; cnt=0
        step=len(prog)//hop+1
        nxt=step//2
        pts=[]
        for i,x in enumerate(prog):
            if i>=nxt and x.kind in ('mfma','valu') and nh<hop:
                tgt=f"L_hop{nh+4}" if nh+4<hop else "L_hopdone"
                out.append(label(f"L_hop{nh}")); out.append(raw(f"s_cbranch_execz {tgt}")); nh+=1; nxt+=step
            out.append(x)
        assert nh==hop,(nh,hop)
        prog=out
    k0=[i for i,x in enumerate(prog) if x.kind=='mfma'][0]
    sys.stderr.write(f"consumer: {len(prog)} instrs, nops {added}, est total {est_cycles(prog)} from-first-mfma {est_cycles(prog[k0:])}\n")

    S=[]; sa=vS[0]; kf=vS[1]; sp=vP[0]
    S+=[label("L_slow"), raw("s_waitcnt vmcnt(0) lgkmcnt(0)"), nop(15), nop(15)]
    S+=[valu("v_mov_b32",vMX,"0xff800000"), raw("s_mov_b32 s46, 0"), label("L_s1")]
    def kload():
        return [raw(f"buffer_load_dwordx4 {vr(kf+4*s,4)}, v{vGK}, s[20:23], s46 offen offset:{32*s}") for s in range(8)]+[raw("s_waitcnt vmcnt(0)")]
    S+=kload()+[mfma32(sa,kf+4*s,vQ+4*s,"0" if s==0 else sa) for s in range(8)]+max_blk(sa,vMX,False)
    S+=[raw("s_add_u32 s46, s46, 8192"),raw("s_cmp_lt_u32 s46, 131072"),raw("s_cbranch_scc1 L_s1")]
    crosshalf(S,vMX,vT1,"v_max_f32")
    S+=[valu("v_sub_f32",vNM,"0",vMX)] if cinit else [valu("v_mul_f32",vNM,sC,vMX),valu("v_sub_f32",vNM,"0",vNM)]
    S+=[valu("v_mov_b32",vLa,"0"),valu("v_mov_b32",vLb,"0")]+[valu("v_mov_b32",vO+i,"0") for i in range(64)]
    S+=[raw("s_mov_b32 s46, 0"), label("L_s2")]
    S+=kload()+[mfma32(sa,kf+4*s,vQ+4*s,"0" if s==0 else sa) for s in range(8)]
    S+=exp_blk(sa,sp,'add' if cinit else 'fma')
    for t in range(2):
        for u in range(2):
            S+=[raw("s_mov_b32 m0, s47"),raw(f"s_add_u32 s19, s46, {t*4096+u*2048}"),raw(f"buffer_load_dwordx4 v{vGV}, s[24:27], s19 offen lds"),
                raw(f"buffer_load_dwordx4 v{vGV}, s[24:27], s19 offen offset:1024 lds"),raw("s_waitcnt vmcnt(0)")]
            S+=[raw(f"ds_read_b64_tr_b16 {vr(kf+4*dt+2*u,2)}, v{vT2} offset:{64*dt}") for dt in range(4)]
            S.append(raw("s_waitcnt lgkmcnt(0)"))
        S+=[mfma32(vO+16*dt,kf+4*dt,sp+4*t,vO+16*dt) for dt in range(4)]
    S+=[nop(15),raw("s_add_u32 s46, s46, 8192"),raw("s_cmp_lt_u32 s46, 131072"),raw("s_cbranch_scc1 L_s2")]
    S.append(valu("v_add_f32",vLa,vLa,vLb)); crosshalf(S,vLa,vT1,"v_add_f32")
    S+=[trans("v_rcp_f32",vRL,vLa),nop(1)]
    for dt in range(4):
        r,sts=epi(dt); S+=r+sts
    S.append(raw("s_endpgm"))
    S,_=pad_hazards(S)

    H=[]; e=H.append
    e(f"; @launch grid=(256,1,1) block=({256+64*nload},1,1) lds={lds}")
    e('.amdgcn_target "amdgcn-amd-amdhsa--gfx950"')
    e(f".text\n.globl {KN}\n.p2align 8\n.type {KN},@function\n{KN}:")
    e("s_load_dwordx4 s[4:7], s[0:1], 0")
    e("s_load_dwordx4 s[8:11], s[0:1], 16")
    if stamps:
        e("s_load_dwordx2 s[12:13], s[0:1], 40")
        e("s_memrealtime s[96:97]\ns_memtime s[98:99]")
    if diag is not None: e("s_memrealtime s[96:97]")
    e("s_cmp_ge_u32 s2, 256\ns_cbranch_scc1 L_end")
    e("v_lshrrev_b32 v1, 6, v0\nv_and_b32 v2, 63, v0")
    if xmap==0: e("s_and_b32 s14, s2, 7\ns_lshr_b32 s15, s2, 4\ns_lshl_b32 s15, s15, 3\ns_add_u32 s14, s14, s15")
    else: e("s_and_b32 s14, s2, 7\ns_lshr_b32 s15, s2, 4\ns_lshl_b32 s14, s14, 4\ns_add_u32 s14, s14, s15")
    e("v_readfirstlane_b32 s16, v1")
    e("s_bfe_u32 s15, s2, 0x10003")
    e("s_lshl_b32 s17, s14, 17")
    e("s_lshl_b32 s18, s14, 16\ns_lshl_b32 s19, s15, 15\ns_add_u32 s18, s18, s19")
    e(f"v_lshlrev_b32 v{vSA}, 2, v0\nv_add_u32 v{vSA}, {FB}, v{vSA}\nv_mov_b32 v{vSG}, 0\nds_write_b32 v{vSA}, v{vSG}")
    e(f"s_cmp_ge_u32 s16, {nload}\ns_cbranch_scc1 L_consumer")
    if nomem==1: e("s_waitcnt lgkmcnt(0)\ns_barrier\ns_endpgm")
    if lprio: e(f"s_setprio {lprio}")
    e("s_getpc_b64 s[36:37]\nL_pc:")
    e("s_add_u32 s36, s36, L_table-L_pc\ns_addc_u32 s37, s37, 0\ns_mov_b32 s38, 128\ns_mov_b32 s39, 0x20000")
    e("v_lshrrev_b32 v3, 4, v2\nv_and_b32 v4, 15, v2\nv_lshlrev_b32 v4, 4, v4")
    e("s_lshl_b32 s44, s16, 8")
    e("v_add_u32 v4, s44, v4")
    e("v_lshl_add_u32 v6, v3, 12, v4\nv_lshl_add_u32 v7, v3, 10, v4")
    e("s_mul_i32 s42, s16, 1040\ns_mul_i32 s43, s16, 1088")
    if lin:
        assert nload==4
        e("s_mul_i32 s84, s16, 3120\ns_mul_i32 s43, s16, 4352\ns_lshl_b32 s85, s16, 12\ns_add_u32 s17, s17, s85\nv_lshlrev_b32 v5, 4, v2")
    e(f"s_add_u32 s44, s44, {FB}")
    e(f"s_add_u32 s46, s42, {QOFF[0]}")
    e("s_mov_b32 s30, 32768\ns_mov_b32 s31, 0x20000\ns_mov_b32 s22, 131072\ns_mov_b32 s23, 0x20000\ns_mov_b32 s26, 131072\ns_mov_b32 s27, 0x20000")
    if lin: e("s_sub_u32 s22, s22, s85\ns_sub_u32 s26, s26, s85")
    if lin==2: e("s_mov_b32 s23, 0x800000\ns_mov_b32 s27, 0x800000")
    e(f"s_movk_i32 s40, {nload*784}\ns_movk_i32 s41, {nload*832}")
    e("s_waitcnt lgkmcnt(0)")
    ldiag = diag if isinstance(diag,str) and diag.startswith('l') else None
    lst=[0]
    def lstamp(name):
        if ldiag==name: e("s_memrealtime s[60:61]")
        if stamps:
            i=lst[0]; lst[0]+=1; e(f"s_memtime s[{50+2*i}:{51+2*i}]")
    lstamp('l0')
    e("s_add_u32 s28, s4, s18\ns_addc_u32 s29, s5, 0")
    NI=16//nload
    def kq_stage(srd,m0base,soff):
        e(f"s_mov_b32 m0, {m0base}")
        for g in range(NI):
            if g==0: e("s_nop 0")
            e(f"buffer_load_dwordx4 v6, {srd}, {soff} offen offset:{g*nload*256} {ldflags} lds")
            if g<NI-1: e("s_add_u32 m0, m0, s40\ns_nop 0")
    def v_stage():
        e("s_add_u32 m0, s46, s43")
        per=4//nload
        for t in range(4):
            for rr in range(per):
                if t==0 and rr==0: e("s_nop 0")
                e(f"buffer_load_dwordx4 v7, s[24:27], s15 offen offset:{rr*nload*256} {ldflags} lds")
                if rr<per-1: e("s_add_u32 m0, m0, s41\ns_nop 0")
            if t<3: e(f"s_add_u32 m0, m0, {4352-(per-1)*nload*832}\ns_add_u32 s15, s15, 4096")
    if lin:
        _kq=kq_stage
        vo = "v5" if lin==1 else "off"; of = "offen " if lin==1 else ""
        def lin_stage(srd,soff,step):
            for g in range(4):
                if g==0: e("s_nop 0")
                e(f"buffer_load_dwordx4 {vo}, {srd}, {soff} {of}offset:{g*1024} {ldflags} lds")
                if g<3: e(f"s_add_u32 m0, m0, {step}\ns_nop 0")
        def kq_stage(srd,m0base,soff):
            if srd=="s[28:31]": return _kq(srd,m0base,soff)
            e(f"s_add_u32 m0, {m0base}, s84"); lin_stage(srd,soff,16)
        def v_stage():
            e("s_add_u32 m0, s46, s43"); lin_stage("s[24:27]","s15",64)
    def lflag(soff): e(f"s_mov_b32 m0, s44\ns_nop 0\nbuffer_load_dword v{vSG}, s[36:39], {soff} offen lds" if lin<2 else f"s_mov_b32 m0, s44\ns_nop 0\nbuffer_load_dword off, s[36:39], {soff} lds")
    if not stag:
        kq_stage("s[28:31]","s46","0")
        if not qbar: lflag("4")
        lstamp('l1')
        e(f"s_add_u32 s46, s42, {QOFF[1]}\ns_movk_i32 s45, 16384")
        kq_stage("s[28:31]","s46","s45")
        if not qbar: lflag("8")
        e("s_add_u32 s20, s6, s17\ns_addc_u32 s21, s7, 0")
        if lin==2: e("s_or_b32 s21, s21, 0x100000")
        kq_stage("s[20:23]","s42","0"); lflag("12")
    else:
        e("s_add_u32 s20, s6, s17\ns_addc_u32 s21, s7, 0")
        kq_stage("s[28:31]","s46","0")
        lstamp('l1')
        kq_stage("s[20:23]","s42","0"); lflag("8")
        e(f"s_add_u32 s47, s42, {SS}\ns_movk_i32 s45, 16384")
        kq_stage("s[20:23]","s47","s45"); lflag("12")
    lstamp('l2')
    e("s_add_u32 s24, s8, s17\ns_addc_u32 s25, s9, 0")
    if lin==2: e("s_or_b32 s25, s25, 0x100000")
    e(f"v_and_b32 v3, 3, v2\nv_lshlrev_b32 v3, 8, v3\nv_lshl_add_u32 v{vFA}, v2, 2, v3\nv_add_u32 v{vFA}, {FB+256*nload}, v{vFA}")
    e(f"s_mov_b32 s46, {SS}\ns_mov_b32 s49, 16\ns_add_u32 s43, s43, {KSL}")
    def need_for(i):
        if i<4: return 0
        req=6 if i in (4,8) else 2*(i-4)+4
        return min(2*it+4 for it in sig_iters if 2*it+4>=req)
    packed=0
    seen=0
    for i in range(1,9):
        n=need_for(i)
        if n>seen: packed|=n<<(4*(i-1)); seen=n
    e(f"s_mov_b32 s48, {packed:#x}")
    if not qbar: e("s_barrier")
    else:
        assert not stag
        e(f"s_add_u32 s47, s46, s42\ns_waitcnt vmcnt({2*NI+1})")
        kq_stage("s[20:23]","s47","s45"); lflag("16")
        e(f"s_lshr_b32 s48, s48, 4\ns_mov_b32 s15, 0\ns_mov_b32 s49, 20\ns_waitcnt vmcnt({2*NI+2})\ns_barrier\ns_branch L_lv")
    if d0<depth: e(f"s_waitcnt vmcnt({(NI+1)*(d0-1)})")
    W=(NI+1)*(depth-1)
    if stag:
        e(f"s_add_u32 s47, s42, {QOFF[1]}\ns_waitcnt vmcnt({W})")
        kq_stage("s[28:31]","s47","s45"); lflag("16")
        e("s_lshr_b32 s48, s48, 4\ns_mov_b32 s15, 0\ns_mov_b32 s49, 20\ns_branch L_lv")
    e("L_lloop:")
    if not nomem:
        e("s_and_b32 s14, s48, 15\ns_cbranch_scc0 L_lgo")
        if bar: e("s_barrier\nL_lgo:")
        else: e(f"s_branch L_lx\nL_lw:\ns_sleep {lsleep}\nL_lx:\nds_read_b32 v8, v{vFA}\ns_waitcnt lgkmcnt(0)\nv_cmp_gt_u32 vcc, s14, v8\ns_cbranch_vccnz L_lw\nL_lgo:")
    e("s_lshr_b32 s48, s48, 4\ns_sub_u32 s15, s45, 16384")
    e(f"s_cmp_eq_u32 s49, 72\ns_cselect_b32 s46, {XB-KSL}, s46\ns_cbranch_scc1 L_lv")
    e("s_add_u32 s47, s46, s42")
    e(f"s_waitcnt vmcnt({W})")
    kq_stage("s[20:23]","s47","s45"); lflag("s49")
    e("s_add_u32 s49, s49, 4")
    e("L_lv:")
    e(f"s_waitcnt vmcnt({W})")
    v_stage(); lflag("s49")
    e(f"s_add_u32 s49, s49, 4\ns_add_u32 s45, s45, 16384\ns_add_u32 s46, s46, {SS}\ns_cmp_eq_u32 s46, {4*SS}\ns_cselect_b32 s46, 0, s46")
    e("s_cmp_lt_u32 s49, 76\ns_cbranch_scc1 L_lloop")
    lstamp('l3')
    e("s_waitcnt vmcnt(0)")
    lstamp('l4')
    if stamps:
        e("s_memrealtime s[94:95]\ns_waitcnt lgkmcnt(0)")
        e("s_mov_b32 s36, s12\ns_mov_b32 s37, s13\ns_mov_b32 s38, 0x1000000\ns_mov_b32 s39, 0x20000")
        e("s_cmp_lg_u32 s16, 0\ns_cbranch_scc1 L_end")
        e("s_lshl_b32 s45, s2, 8\ns_add_u32 s45, s45, 65536\nv_mov_b32 v7, s45")
        for i,r in enumerate([96,98]+[50+2*min(i,lst[0]-1) for i in range(scnt[0]+1)]+[94]):
            e(f"v_mov_b32 v8, s{r}\nbuffer_store_dword v8, v7, s[36:39], 0 offen offset:{4*i}\ns_nop 1")
    if ldiag:
        e(f"s_memrealtime s[62:63]\ns_waitcnt lgkmcnt(0)\ns_sub_u32 s67, s60, s96\ns_mul_i32 s67, s67, {dk}\ns_add_u32 s67, s67, 500\ns_min_u32 s67, s67, 100000\nL_lspin:\ns_memrealtime s[64:65]\ns_waitcnt lgkmcnt(0)\ns_sub_u32 s66, s64, s62\ns_cmp_lt_u32 s66, s67\ns_cbranch_scc1 L_lspin")
    e("L_end:\ns_endpgm")
    e(".p2align 7\nL_table:\n"+"\n".join(f".long {i}" for i in range(32)))
    e("L_consumer:")
    if cprio: e(f"s_setprio {cprio}")
    e(f"s_sub_u32 s16, s16, {nload}")
    e(f"v_and_b32 v3, {nload-1}, v2\nv_lshlrev_b32 v3, 8, v3\nv_lshl_add_u32 v{vFA}, v2, 2, v3")
    if codepf:
        e("s_getpc_b64 s[36:37]\nL_pc2:\ns_add_u32 s36, s36, L_main-L_pc2\ns_addc_u32 s37, s37, 0\ns_mov_b32 s38, L_slow-L_main\ns_mov_b32 s39, 0x20000")
        e("s_lshr_b32 s45, s2, 3\ns_lshl_b32 s45, s45, 2\ns_add_u32 s45, s45, s16\ns_lshl_b32 s45, s45, 7\nv_mov_b32 v9, 0\nbuffer_load_dword v31, v9, s[36:39], s45 offen")
    if hop:
        e("s_mov_b64 exec, 0\ns_cmp_eq_u32 s16, 0\ns_cbranch_scc1 L_hop0\ns_cmp_eq_u32 s16, 1\ns_cbranch_scc1 L_hop1\ns_cmp_eq_u32 s16, 2\ns_cbranch_scc1 L_hop2\ns_branch L_hop3\nL_hopdone:\ns_mov_b64 exec, -1")
    e(f"v_add_u32 v{vFA}, {FB}, v{vFA}")
    e("v_lshrrev_b32 v4, 5, v2\nv_and_b32 v5, 15, v2\nv_bfe_u32 v6, v2, 4, 1")
    e(f"v_mul_u32_u24 v{vKA[0]}, 1040, v5\nv_lshl_add_u32 v{vKA[0]}, v6, 8, v{vKA[0]}\nv_lshl_add_u32 v{vKA[0]}, v4, 4, v{vKA[0]}\nv_add_u32 v{vKA[1]}, {2*SS}, v{vKA[0]}")
    e("v_lshrrev_b32 v7, 2, v5\nv_and_b32 v8, 3, v5")
    e("v_lshlrev_b32 v3, 8, v4\nv_lshl_add_u32 v3, v6, 5, v3\nv_lshl_add_u32 v3, v8, 3, v3")
    if lin: e("v_mul_u32_u24 v3, 4352, v4\nv_lshl_add_u32 v3, v6, 5, v3\nv_lshl_add_u32 v3, v8, 3, v3")
    e(f"v_mul_u32_u24 v{vT2}, 1088, v7\nv_add_u32 v{vT2}, v{vT2}, v3")
    e(f"v_add_u32 v{vVA[0]}, {KSL}, v{vT2}\nv_add_u32 v{vVA[1]}, {KSL+2*SS}, v{vT2}\nv_add_u32 v{vVA[2]}, {XB}, v{vT2}")
    e(f"s_mul_i32 s47, s16, {STG}\ns_add_u32 s47, s47, {SB}")
    e(f"v_lshlrev_b32 v{vT2}, 10, v4\nv_lshl_add_u32 v{vT2}, v7, 8, v{vT2}\nv_lshl_add_u32 v{vT2}, v6, 5, v{vT2}\nv_lshl_add_u32 v{vT2}, v8, 3, v{vT2}\nv_add_u32 v{vT2}, s47, v{vT2}")
    e(f"v_and_b32 v3, 31, v2\nv_lshlrev_b32 v{vGK}, 8, v3\nv_lshl_add_u32 v{vGK}, v4, 4, v{vGK}")
    e(f"v_lshlrev_b32 v{vGV}, 4, v2")
    e(f"s_lshl_b32 s45, s16, 13\nv_bfe_u32 v3, v2, 2, 3\nv_lshlrev_b32 v{vOA}, 10, v3\nv_lshl_add_u32 v{vOA}, v4, 8, v{vOA}\nv_lshl_add_u32 v{vOA}, v8, 4, v{vOA}\nv_add_u32 v{vOA}, s45, v{vOA}")
    e(f"s_mov_b32 {sC}, {f2u(C_SCALE):#x}\ns_mov_b32 {sTHR}, {f2u(lthr):#x}")
    e("s_mov_b32 s76, 0x55555555\ns_mov_b32 s77, s76\ns_not_b64 s[78:79], s[76:77]\ns_mov_b32 s80, 0x33333333\ns_mov_b32 s81, s80\ns_not_b64 s[82:83], s[80:81]")
    e(f"s_lshr_b32 s46, s16, 1\ns_mov_b32 s45, {QOFF[0]}\ns_cmp_eq_u32 s46, 0\ns_cselect_b32 s45, s45, {QOFF[1]}\ns_and_b32 s19, s16, 1\ns_lshl_b32 s19, s19, 9\ns_add_u32 s45, s45, s19\ns_add_u32 s46, s46, 1")
    if stag: e("s_lshl_b32 s46, s46, 1")
    e(f"v_add_u32 v{vT1}, s45, v{vKA[0]}")
    if dryt:
        for r in range(vFR,vFR+4*NFR): e(f"v_mov_b32 v{r}, 0")
        e(f"v_mov_b32 v9, v{vT1}")
        e("s_mov_b64 exec, 0\ns_cmp_eq_u32 s16, 0\ns_cbranch_scc1 L_dq0\ns_cmp_eq_u32 s16, 1\ns_cbranch_scc1 L_dq1\ns_cmp_eq_u32 s16, 2\ns_cbranch_scc1 L_dq2\ns_branch L_dq3\nL_drydone:\ns_mov_b64 exec, -1")
        e(f"v_mov_b32 v{vT1}, v9")
        if stamps: e("s_memtime s[72:73]")
    e("s_waitcnt lgkmcnt(0)")
    e("s_add_u32 s32, s10, s18\ns_addc_u32 s33, s11, 0\ns_mov_b32 s34, 32768\ns_mov_b32 s35, 0x20000")
    e("s_add_u32 s20, s6, s17\ns_addc_u32 s21, s7, 0\ns_mov_b32 s22, 131072\ns_mov_b32 s23, 0x20000")
    e("s_add_u32 s24, s8, s17\ns_addc_u32 s25, s9, 0\ns_mov_b32 s26, 131072\ns_mov_b32 s27, 0x20000")
    e("s_barrier")
    if stamps: e("s_mov_b32 s74, 0\ns_mov_b32 s75, 0")
    e("s_branch L_main")
    e(text(rare))
    e(".p2align 3\nL_main:")
    e(text(prog))
    if stamps:
        ns=scnt[0]
        e("s_waitcnt vmcnt(0)")
        e(f"s_memtime s[{50+2*ns}:{51+2*ns}]\ns_memrealtime s[{52+2*ns}:{53+2*ns}]\ns_waitcnt lgkmcnt(0)")
        e("s_mov_b32 s36, s12\ns_mov_b32 s37, s13\ns_mov_b32 s38, 0x1000000\ns_mov_b32 s39, 0x20000")
        e("s_cmp_lg_u32 s16, 3\ns_cbranch_scc1 L_end2")
        e("s_lshl_b32 s45, s2, 8\nv_mov_b32 v7, s45")
        regs=[96,98]+[50+2*i for i in range(ns+2)]
        assert regs[-1]<74
        regs+=[74,75]
        if dryt: regs[2]=72
        for i,r in enumerate(regs):
            e(f"v_mov_b32 v8, s{r}\nbuffer_store_dword v8, v7, s[36:39], 0 offen offset:{4*i}\ns_nop 1")
        sys.stderr.write(f"nstamps={len(regs)}\n")
        e("L_end2:")
    if diag is not None and not ldiag:
        e("s_waitcnt vmcnt(0)")
        if diag=='end': e("s_memrealtime s[60:61]")
        e(f"s_memrealtime s[62:63]\ns_waitcnt lgkmcnt(0)\ns_sub_u32 s67, s60, s96\ns_mul_i32 s67, s67, {dk}\ns_min_u32 s67, s67, 100000\nL_spin:\ns_memrealtime s[64:65]\ns_waitcnt lgkmcnt(0)\ns_sub_u32 s66, s64, s62\ns_cmp_lt_u32 s66, s67\ns_cbranch_scc1 L_spin")
    e("s_endpgm")
    e(text(S))
    e(f'.section .rodata,"a"\n.p2align 6\n.amdhsa_kernel {KN}')
    e(f"  .amdhsa_next_free_vgpr 256\n  .amdhsa_next_free_sgpr 102\n  .amdhsa_accum_offset 256\n  .amdhsa_group_segment_fixed_size 0\n  .amdhsa_kernarg_size 48\n  .amdhsa_user_sgpr_count 2\n  .amdhsa_user_sgpr_kernarg_segment_ptr 1\n  .amdhsa_system_sgpr_workgroup_id_x 1\n.end_amdhsa_kernel")
    return "\n".join(H)+"\n"

if __name__=="__main__":
    name=sys.argv[1]; kw={}
    for a in sys.argv[2:]:
        k,v=a.split("=",1)
        try: v=int(v)
        except:
            try: v=float(v)
            except: pass
        kw[k]=v
    open(name,"w").write(gen(**kw))
```

```python
import sys, math, struct
from asmlib import *

KN="standalone__gqa_softmax__near_ridge_kernel"
C_SCALE = math.log2(math.e)/math.sqrt(128.0)
def f2u(x): return struct.unpack("<I",struct.pack("<f",x))[0]

KSL=16640; VSL=17408; SS=KSL+VSL
XB=4*SS; FB=XB+VSL; SB=FB+2048; STG=2048
assert SB+4*STG<=163840
def KOFF(j): return (j%4)*SS
def VOFF(j): return XB if j==7 else ((j+1)%4)*SS+KSL
QOFF=[VOFF(3),XB]

def pkmul(d,a,b):
    return I(f"v_pk_mul_f32 {vr(d,2)}, {vr(a,2)}, {vr(b,2)}",'valu',rd=R(a,2)+R(b,2),wr=R(d,2),cost=6)
def cnd_dpp(d,s0,s1,qp):
    return I(f"v_cndmask_b32_dpp v{d}, v{s0}, v{s1}, vcc quad_perm:{qp} row_mask:0xf bank_mask:0xf",'dpp',rd=[s0,s1],wr=[d])

def gen(depth=3, ldflags="nt", stflags="nt", stamps=0, pf=6, G=2, lthr=2.0**24, budget=24, fl=4, lprio=0, cprio=0,
        verbose=0, diag=None, dk=1, nomem=0, lds=163840, xmap=0, NFR=8, lsleep=4,
        cinit=1, forceslow=0, HZ=2, d0=3, tailb=40, order=1, stc=24, sigs="1,3", bar=0, hop=0, codepf=1, stset='q,K0,K1,K3,K5,K7,V7,e0,e3,st', nosig=0, pair=1, nload=4, stag=0, head=0, late=0, slow=0, lin=0, qsleep=0, pk2=0, osleep=0, qbar=0, dryt=0, init=''):
    vKA=[10,11]; vVA=[12,13,30]
    vFA,vSA=14,15
    vNM,vLa,vLb,vMX,vT1,vOA=16,17,18,19,20,21
    vRL=22
    vF=[24,25]; vSG=26; vGK=27; vGV=28; vT2=29
    vQ=32; vFR=64
    vNB=vFR+4*NFR
    vS=[vNB+16+16*i for i in range(3)]
    vP=[vS[2]+16+8*i for i in range(4)]
    vO=vP[3]+8
    assert vO+64<=256
    sC="s40"; sTHR="s41"
    sEV,sOD,sLO,sHI="s[76:77]","s[78:79]","s[80:81]","s[82:83]"
    LK=(lambda j: 3 if j==0 else 2*j+2) if not stag else (lambda j: {0:1,1:3}.get(j,2*j+2))
    LV=lambda j: 2*j+5 if j<7 else 18
    ini=init.split(',') if init else []
    if ini:
        assert len(ini) in (5,7,9) and not stag and not qbar
        _LK,_LV=LK,LV
        LK=lambda j: ini.index(f"K{j}")+1 if f"K{j}" in ini else _LK(j)
        LV=lambda j: ini.index(f"V{j}")+1 if f"V{j}" in ini else _LV(j)
    sig_iters=[int(x) for x in str(sigs).split(",")]
    rare=[]; scnt=[0]
    def stamp(name):
        o=[]
        if diag==name: o.append(raw("s_memrealtime s[60:61]"))
        if stamps and name in stset.split(','):
            i=scnt[0]; scnt[0]+=1; o.append(raw(f"s_memtime s[{50+2*i}:{51+2*i}]"))
        return o
    cn=[0]
    def flag_read():
        r=vF[cn[0]%2]; return I(f"ds_read_b32 v{r}, v{vFA}",'dsr',rd=[vFA],wr=[r])
    def flag_check(val,name):
        r=vF[cn[0]%2]; cn[0]+=1
        if nomem: return stamp(name)
        if stamps: rare.extend([label(f"L_spin{name}"), raw(f"s_bitset1_b32 s75, {cn[0]-1}"), raw("s_add_u32 s74, s74, 1")])
        rare.extend(([] if stamps else [label(f"L_spin{name}")])+([raw(f"s_sleep {qsleep}")] if (qsleep and name=='q') else [])+([raw(f"s_sleep {osleep}")] if (osleep and name!='q') else [])+[ raw(f"ds_read_b32 v{r}, v{vFA}"), raw("s_waitcnt lgkmcnt(0)"),
                     raw(f"v_cmp_gt_u32 vcc, {val}, v{r}"), raw(f"s_cbranch_vccnz L_spin{name}"), raw(f"s_branch L_back{name}")])
        return [I(f"v_cmp_gt_u32 vcc, {val}, v{r}\n    s_cbranch_vccnz L_spin{name}\nL_back{name}:",'valu',rd=[r],sw=['vcc'],cost=8,tag='vcc')]+stamp(name)
    def signal(val): return [] if nosig else [valu("v_mov_b32",vSG,str(val)), I(f"ds_write_b32 v{vSA}, v{vSG}",'dsw',rd=[vSA,vSG])]

    M=[]
    def PL(h): return vS[h%3] if (order in (7,8) and h>=14) else vP[h%4]
    def addr(base,off):
        ss=off//SS; return (base[ss//2], off-(ss//2)*2*SS)
    def add_qk(h):
        j,u=divmod(h,2); d=vS[h%3]
        for s in range(8):
            f=vFR+4*(len(M)%NFR)
            c0=vNB if (cinit and h>=2) else "0"
            a,o=addr(vKA,KOFF(j)+u*512+s*32)
            M.append(dict(mfma=mfma32(d,f,vQ+4*s,c0 if s==0 else d),reads=[dsr128(f,a,o)],st=('K',j),id=('K',h,s)))
    def add_pv(h,dts,first=False):
        j,u=divmod(h,2)
        for tl in range(2):
            for dt in dts:
                one_pv(h,tl,dt)
    def one_pv(h,tl,dt):
        j,u=divmod(h,2); t=2*u+tl
        f=vFR+4*(len(M)%NFR)
        rds=[]
        for x in range(2):
            io=(t*4352+x*512+64*dt) if not lin else (x*8704+t*256+64*dt)
            a,o=addr(vVA,VOFF(j)-KSL+io) if j<7 else (vVA[2],io); rds.append(dsrtr(f+2*x,a,o))
        c="0" if (h==0 and tl==0) else vO+16*dt
        M.append(dict(mfma=mfma32(vO+16*dt,f,PL(h)+4*tl,c),reads=rds,st=('V',j),id=('V',h,tl,dt)))
    add_qk(0); add_qk(1)
    if head:
        add_qk(2); add_qk(3); add_pv(0,range(4)); add_pv(1,range(4))
    for i in range(2 if head else 1,7):
        dd=range(4)
        if i==6 and order==7: dd=(0,1)
        if i==6 and order==8: dd=(0,1,2)
        add_qk(2*i); add_pv(2*i-2,dd); add_qk(2*i+1); add_pv(2*i-1,dd)
    def pvt(j,dt):
        for h in (2*j,2*j+1):
            for tl in range(2): one_pv(h,tl,dt)
    if order==1:
        add_qk(14); add_qk(15)
        pvt(6,3); pvt(6,2); pvt(6,0); pvt(7,0); pvt(6,1); pvt(7,1); pvt(7,2); pvt(7,3)
    elif order==2:
        add_qk(14); add_pv(12,(3,2)); add_qk(15); add_pv(13,(3,2))
        pvt(6,0); pvt(6,1); pvt(7,0); pvt(7,1); pvt(7,2); pvt(7,3)
    elif order==3:
        add_qk(14); add_qk(15)
        pvt(6,3); pvt(6,0); pvt(6,2); pvt(7,0); pvt(6,1); pvt(7,1); pvt(7,2); pvt(7,3)
    elif order==4:
        add_qk(14); add_qk(15)
        pvt(6,0); pvt(6,1); pvt(7,0); pvt(7,1); pvt(6,2); pvt(7,2); pvt(6,3); pvt(7,3)
    elif order==5:
        add_qk(14); add_qk(15)
        pvt(6,0); pvt(6,1); pvt(6,2); add_pv(14,(0,1)); add_pv(15,(0,1)); pvt(7,2); pvt(6,3); pvt(7,3)
    elif order==7:
        add_qk(14); add_qk(15)
        pvt(6,0); pvt(6,1); pvt(7,0); pvt(7,1); pvt(5,2); pvt(6,2); pvt(7,2); pvt(5,3); pvt(6,3); pvt(7,3)
    elif order==8:
        add_qk(14); add_qk(15)
        pvt(6,0); pvt(6,1); pvt(7,0); pvt(7,1); pvt(6,2); pvt(7,2); pvt(5,3); pvt(6,3); pvt(7,3)
    elif order==9:
        add_qk(14); add_pv(12,(0,)); add_qk(15); add_pv(13,(0,))
        pvt(6,1); add_pv(14,(0,)); add_pv(12,(2,)); add_pv(15,(0,)); pvt(7,1); add_pv(13,(2,)); pvt(7,2); pvt(6,3); pvt(7,3)
    NM=len(M); assert NM==256
    pos={m['id']:i for i,m in enumerate(M)}
    first_use={}; last_use={}
    for i,m in enumerate(M):
        first_use.setdefault(m['st'],i); last_use[m['st']]=i
    for st,i in first_use.items(): M[i]['need']=(LK(st[1]) if st[0]=='K' else LV(st[1]), f"{st[0]}{st[1]}")
    if stag: del M[0]['need']
    for it in sig_iters:
        i0=max(last_use[('K',it)],last_use[('V',it-1)])
        if bar: M[i0+pf+1]['bar']=1
        else: M[i0]['sig']=2*it+4
    F=[]
    def addF(lst,avail,due):
        for x in lst: F.append([x,avail,due])
    def crosshalf(o,reg,tmp,op):
        o.append(valu("v_mov_b32",tmp,reg)); o.append(perm32(reg,tmp)); o.append(valu(op,reg,reg,tmp))
    def max_blk(src,dst,first):
        o=[valu("v_max3_f32",dst,src,src+1,src+2) if first else valu("v_max3_f32",dst,dst,src,src+1)]
        k=3 if first else 2
        while k+1<16: o.append(valu("v_max3_f32",dst,dst,src+k,src+k+1)); k+=2
        if k<16: o.append(valu("v_max_f32",dst,dst,src+k))
        return o
    def exp_blk(src,dstp,pre):
        seq=[]; n=16
        for i in range(n+3):
            if i<n and pre=='fma': seq.append(valu("v_fma_f32",src+i,src+i,sC,vNM))
            if i<n and pre=='add': seq.append(valu("v_add_f32",src+i,src+i,vNM))
            if 0<=i-1<n: seq.append(trans("v_exp_f32",src+i-1,src+i-1))
            if 0<=i-2<n:
                l=vLa if (i-2)%2==0 else vLb; seq.append(valu("v_add_f32",l,l,src+i-2))
            if i-3>=0 and (i-3)%2==1:
                k=(i-3)//2; seq.append(valu("v_cvt_pk_bf16_f32",dstp+k,src+2*k,src+2*k+1))
        return seq
    st=max_blk(vS[0],vMX,True); crosshalf(st,vMX,vT1,"v_max_f32")
    if cinit:
        st.append(valu("v_sub_f32",vNM,"0",vMX)); st+=[valu("v_sub_f32",vNB+i,"0",vMX) for i in range(16)]
        addF(st,8+HZ,16)
    else:
        st+=[valu("v_mul_f32",vNM,sC,vMX),valu("v_sub_f32",vNM,"0",vNM)]; addF(st,8+HZ,24)
    for h in range(16):
        pre=('add' if h<2 else None) if cinit else 'fma'
        av=pos[('K',h,7)]+1+HZ
        dueS=pos[('K',h+3,0)] if h+3<16 else NM
        for x in exp_blk(vS[h%3],PL(h),pre):
            a=av; d=dueS
            if x.text.startswith("v_cvt"):
                k=list(x.wr)[0]-PL(h); tl=k//4
                d=min(d,min(pos[('V',h,tl,dt)] for dt in range(4)))
                if h>=4 and PL(h)==PL(h-4): a=max(a,max(pos[('V',h-4,tl,dt)] for dt in range(4))+1)
            F.append([x,a,d])
    fin=[valu("v_add_f32",vLa,vLa,vLb)]; crosshalf(fin,vLa,vT1,"v_add_f32")
    fin.append(trans("v_rcp_f32",vRL,vLa))
    br="" if nomem else ("\n    s_cbranch_vccnz L_slow" if not forceslow else "\n    s_branch L_slow")
    fin.append(I(f"v_cmp_nge_f32 vcc, {sTHR}, v{vLa}"+br,'valu',rd=[vLa],sw=['vcc'],sr=[sTHR],cost=8))
    fin.append(valu("v_mov_b32",vRL+1,vRL))
    addF(fin,0,NM)
    def setvcc(s): return I(f"s_mov_b64 vcc, {s}",'salu')
    def epi(dt,pk=False,tmp=None):
        o=vO+16*dt; r=[]
        r+=[pkmul(o+2*k,o+2*k,vRL) for k in range(8)] if pk else [valu("v_mul_f32",o+k,o+k,vRL) for k in range(16)]
        r+=[valu("v_cvt_pk_bf16_f32",o+k,o+2*k,o+2*k+1) for k in range(8)]
        W=lambda k,e:o+2*k+e; X=lambda k,e:o+8+2*k+e
        g=[]
        g.append([setvcc(sEV)]+[cnd_dpp(X(k,e),W(k+1,e),W(k,e),"[1,0,3,2]") for k in (0,2) for e in range(2)])
        g.append([setvcc(sOD)]+[cnd_dpp(X(k+1,e),W(k,e),W(k+1,e),"[1,0,3,2]") for k in (0,2) for e in range(2)])
        g.append([setvcc(sLO)]+[cnd_dpp(W(k,e),X(k+2,e),X(k,e),"[2,3,0,1]") for k in (0,1) for e in range(2)])
        g.append([setvcc(sHI)]+[cnd_dpp(W(k+2,e),X(k,e),X(k+2,e),"[2,3,0,1]") for k in (0,1) for e in range(2)])
        for x in g: r+=x
        for j in range(2): r+=[perm32(o+4*j,o+4*j+2),perm32(o+4*j+1,o+4*j+3)]
        sts=[I(f"buffer_store_dwordx4 {vr(o+4*j,4)}, v{vOA}, s[32:35], 0 offen offset:{512*j+64*dt} {stflags}".rstrip(),'st4',rd=[vOA]+R(o+4*j,4),cost=stc) for j in range(2)]
        return r,sts
    lastdt={dt:max(i for i,m in enumerate(M) if m['id'][0]=='V' and m['id'][3]==dt) for dt in range(4)}
    dorder=sorted(range(4),key=lambda d:lastdt[d])
    held=[]
    for n,dt in enumerate(dorder[:3]):
        r,sts=epi(dt,pk=(pk2 and n==2))
        if pair:
            if n%2==0: held=sts; sts=[]
            else:
                assert dt//2==dorder[n-1]//2
                sts=[held[0],sts[0],held[1],sts[1]]; held=[]
        for x in sts[1:]: x.cost=0
        addF((stamp('e0') if dt==dorder[0] else [])+r+sts,(lastdt[dt]+1+HZ) if not (pk2 and n==2) else NM+5,NM+1)
    lastflag=max(i for i,m in enumerate(M) if 'need' in m)-pf
    assert lastflag<lastdt[dorder[0]]
    P=[]
    P+=([flag_read()]+flag_check("s46","q")) if not qbar else stamp('q')
    for s in range(8): P.append(dsr128(vQ+4*s,vT1,32*s))
    P+=[valu("v_mov_b32",vLa,"0"),valu("v_mov_b32",vLb,"0")]
    if cinit:
        P+=[valu("v_mov_b32",vRL,sC),valu("v_mov_b32",vRL+1,sC)]
        t=vS[2]
        for r in range(34):
            if r<32:
                a=t+2*(r%8); P+=[valu("v_lshlrev_b32",a,"16",vQ+r),valu("v_and_b32",a+1,"0xffff0000",vQ+r)]
            if 1<=r<33:
                b=t+2*((r-1)%8); P.append(pkmul(b,b,vRL))
            if r>=2:
                b=t+2*((r-2)%8); P.append(valu("v_cvt_pk_bf16_f32",vQ+r-2,b,b+1))
    fi=0; cost=0
    def issue_reads(i):
        nonlocal cost
        m=M[i]
        if 'need' in m:
            if not m.get('fr'): P.append(flag_read()); cost+=4
            P.extend(flag_check(*m['need'])); cost+=12
        P.extend(m['reads']); cost+=4*len(m['reads'])
        if 'sig' in m: P.extend(signal(m['sig'])); cost+=8
        if 'bar' in m and not nomem: P.append(raw("s_barrier")); cost+=4
    needs=[i for i in range(NM) if 'need' in M[i]]
    lates=[i for i in needs if M[i]['need'][1] in ('K1','V0')] if late else []
    def rg(i):
        g=i-pf
        for b in lates:
            if b<=i: g=max(g,b-late)
        return max(g,-1)
    by_gap={}
    for i in range(NM): by_gap.setdefault(rg(i),[]).append(i)
    fr_gap={}
    for a,b in zip([None]+needs[:-1],needs):
        g=rg(b)-fl
        if a is not None: g=max(g,rg(a))
        if 0<=g<rg(b): fr_gap[g]=b
    for i in by_gap[-1]: issue_reads(i)
    carry=0
    for g in range(NM):
        while fi<len(F) and any(F[k][2]<=g for k in range(fi,min(fi+150,len(F)))):
            assert F[fi][1]<=g+HZ, ("forced before avail",F[fi][0].text,F[fi][1],g)
            P.append(F[fi][0]); fi+=1
        cost=0
        if G>1 and g%G==0:
            ex=set()
            for k in range(1,G):
                if g+k<NM and rg(g+k)<g-1:
                    for r in M[g+k]['reads']: ex|=r.wr
            P.append(I("",'touch',rd=ex,cost=0))
        P.append(M[g]['mfma'])
        if slow and g%4==0: P.append(nop(slow-1))
        if (g+1)%G==0: cost+=4
        for i in by_gap.get(g,[]): issue_reads(i)
        if g in fr_gap:
            P.append(flag_read()); M[fr_gap[g]]['fr']=True; cost+=4
        b=budget if g<pos[('K',15,7)] else tailb
        lim=b+carry
        while fi<len(F) and F[fi][1]<=g+1 and cost+F[fi][0].cost<=lim:
            P.append(F[fi][0]); cost+=F[fi][0].cost; fi+=1
        carry=max(-8,min(4,lim-cost))
    while fi<len(F): P.append(F[fi][0]); fi+=1
    r,sts=epi(dorder[3],pk=True)
    if pair: sts=[held[0],sts[0],held[1],sts[1]]
    P+=stamp('e3')+r+sts+stamp('st')
    prog=insert_lgkm(P); prog=[x for x in prog if x.kind!='touch']
    prog,added=pad_hazards(prog,verbose)
    if dryt:
        mi=[i for i,x in enumerate(prog) if x.kind=='mfma']
        a=mi[dryt]; n=len(prog)-a
        cuts=[a+n*k//4 for k in range(4)]
        out=[]; i=0; q=0
        while i<len(prog):
            x=prog[i]
            if q<4 and i>=cuts[q] and x.kind!='st4':
                if q>0: out.append(raw("s_cbranch_execz L_drydone"))
                out.append(label(f"L_dq{q}")); q+=1
            if x.kind=='st4':
                j=i
                while j+1<len(prog) and prog[j+1].kind=='st4': j+=1
                last = all(y.kind!='st4' and y.kind!='valu' for y in prog[j+1:])
                out.append(raw("s_cbranch_execz L_drydone" if last else f"s_cbranch_execz L_sk{i}")); out+=prog[i:j+1]
                if not last: out.append(label(f"L_sk{i}"))
                i=j+1; continue
            out.append(x); i+=1
        prog=out
    nh=0
    if hop:
        out=[]; cnt=0
        step=len(prog)//hop+1
        nxt=step//2
        pts=[]
        for i,x in enumerate(prog):
            if i>=nxt and x.kind in ('mfma','valu') and nh<hop:
                tgt=f"L_hop{nh+4}" if nh+4<hop else "L_hopdone"
                out.append(label(f"L_hop{nh}")); out.append(raw(f"s_cbranch_execz {tgt}")); nh+=1; nxt+=step
            out.append(x)
        assert nh==hop,(nh,hop)
        prog=out
    k0=[i for i,x in enumerate(prog) if x.kind=='mfma'][0]
    sys.stderr.write(f"consumer: {len(prog)} instrs, nops {added}, est total {est_cycles(prog)} from-first-mfma {est_cycles(prog[k0:])}\n")

    S=[]; sa=vS[0]; kf=vS[1]; sp=vP[0]
    S+=[label("L_slow"), raw("s_waitcnt vmcnt(0) lgkmcnt(0)"), nop(15), nop(15)]
    S+=[valu("v_mov_b32",vMX,"0xff800000"), raw("s_mov_b32 s46, 0"), label("L_s1")]
    def kload():
        return [raw(f"buffer_load_dwordx4 {vr(kf+4*s,4)}, v{vGK}, s[20:23], s46 offen offset:{32*s}") for s in range(8)]+[raw("s_waitcnt vmcnt(0)")]
    S+=kload()+[mfma32(sa,kf+4*s,vQ+4*s,"0" if s==0 else sa) for s in range(8)]+max_blk(sa,vMX,False)
    S+=[raw("s_add_u32 s46, s46, 8192"),raw("s_cmp_lt_u32 s46, 131072"),raw("s_cbranch_scc1 L_s1")]
    crosshalf(S,vMX,vT1,"v_max_f32")
    S+=[valu("v_sub_f32",vNM,"0",vMX)] if cinit else [valu("v_mul_f32",vNM,sC,vMX),valu("v_sub_f32",vNM,"0",vNM)]
    S+=[valu("v_mov_b32",vLa,"0"),valu("v_mov_b32",vLb,"0")]+[valu("v_mov_b32",vO+i,"0") for i in range(64)]
    S+=[raw("s_mov_b32 s46, 0"), label("L_s2")]
    S+=kload()+[mfma32(sa,kf+4*s,vQ+4*s,"0" if s==0 else sa) for s in range(8)]
    S+=exp_blk(sa,sp,'add' if cinit else 'fma')
    for t in range(2):
        for u in range(2):
            S+=[raw("s_mov_b32 m0, s47"),raw(f"s_add_u32 s19, s46, {t*4096+u*2048}"),raw(f"buffer_load_dwordx4 v{vGV}, s[24:27], s19 offen lds"),
                raw(f"buffer_load_dwordx4 v{vGV}, s[24:27], s19 offen offset:1024 lds"),raw("s_waitcnt vmcnt(0)")]
            S+=[raw(f"ds_read_b64_tr_b16 {vr(kf+4*dt+2*u,2)}, v{vT2} offset:{64*dt}") for dt in range(4)]
            S.append(raw("s_waitcnt lgkmcnt(0)"))
        S+=[mfma32(vO+16*dt,kf+4*dt,sp+4*t,vO+16*dt) for dt in range(4)]
    S+=[nop(15),raw("s_add_u32 s46, s46, 8192"),raw("s_cmp_lt_u32 s46, 131072"),raw("s_cbranch_scc1 L_s2")]
    S.append(valu("v_add_f32",vLa,vLa,vLb)); crosshalf(S,vLa,vT1,"v_add_f32")
    S+=[trans("v_rcp_f32",vRL,vLa),nop(1)]
    for dt in range(4):
        r,sts=epi(dt); S+=r+sts
    S.append(raw("s_endpgm"))
    S,_=pad_hazards(S)

    H=[]; e=H.append
    e(f"; @launch grid=(256,1,1) block=({256+64*nload},1,1) lds={lds}")
    e('.amdgcn_target "amdgcn-amd-amdhsa--gfx950"')
    e(f".text\n.globl {KN}\n.p2align 8\n.type {KN},@function\n{KN}:")
    e("s_load_dwordx4 s[4:7], s[0:1], 0")
    e("s_load_dwordx4 s[8:11], s[0:1], 16")
    if stamps:
        e("s_load_dwordx2 s[12:13], s[0:1], 40")
        e("s_memrealtime s[96:97]\ns_memtime s[98:99]")
    if diag is not None: e("s_memrealtime s[96:97]")
    e("s_cmp_ge_u32 s2, 256\ns_cbranch_scc1 L_end")
    e("v_lshrrev_b32 v1, 6, v0\nv_and_b32 v2, 63, v0")
    if xmap==0: e("s_and_b32 s14, s2, 7\ns_lshr_b32 s15, s2, 4\ns_lshl_b32 s15, s15, 3\ns_add_u32 s14, s14, s15")
    else: e("s_and_b32 s14, s2, 7\ns_lshr_b32 s15, s2, 4\ns_lshl_b32 s14, s14, 4\ns_add_u32 s14, s14, s15")
    e("v_readfirstlane_b32 s16, v1")
    e("s_bfe_u32 s15, s2, 0x10003")
    e("s_lshl_b32 s17, s14, 17")
    e("s_lshl_b32 s18, s14, 16\ns_lshl_b32 s19, s15, 15\ns_add_u32 s18, s18, s19")
    e(f"v_lshlrev_b32 v{vSA}, 2, v0\nv_add_u32 v{vSA}, {FB}, v{vSA}\nv_mov_b32 v{vSG}, 0\nds_write_b32 v{vSA}, v{vSG}")
    e(f"s_cmp_ge_u32 s16, {nload}\ns_cbranch_scc1 L_consumer")
    if nomem==1: e("s_waitcnt lgkmcnt(0)\ns_barrier\ns_endpgm")
    if lprio: e(f"s_setprio {lprio}")
    e("s_getpc_b64 s[36:37]\nL_pc:")
    e("s_add_u32 s36, s36, L_table-L_pc\ns_addc_u32 s37, s37, 0\ns_mov_b32 s38, 128\ns_mov_b32 s39, 0x20000")
    e("v_lshrrev_b32 v3, 4, v2\nv_and_b32 v4, 15, v2\nv_lshlrev_b32 v4, 4, v4")
    e("s_lshl_b32 s44, s16, 8")
    e("v_add_u32 v4, s44, v4")
    e("v_lshl_add_u32 v6, v3, 12, v4\nv_lshl_add_u32 v7, v3, 10, v4")
    e("s_mul_i32 s42, s16, 1040\ns_mul_i32 s43, s16, 1088")
    if lin:
        assert nload==4
        e("s_mul_i32 s84, s16, 3120\ns_mul_i32 s43, s16, 4352\ns_lshl_b32 s85, s16, 12\ns_add_u32 s17, s17, s85\nv_lshlrev_b32 v5, 4, v2")
    e(f"s_add_u32 s44, s44, {FB}")
    e(f"s_add_u32 s46, s42, {QOFF[0]}")
    e("s_mov_b32 s30, 32768\ns_mov_b32 s31, 0x20000\ns_mov_b32 s22, 131072\ns_mov_b32 s23, 0x20000\ns_mov_b32 s26, 131072\ns_mov_b32 s27, 0x20000")
    if lin: e("s_sub_u32 s22, s22, s85\ns_sub_u32 s26, s26, s85")
    if lin==2: e("s_mov_b32 s23, 0x800000\ns_mov_b32 s27, 0x800000")
    e(f"s_movk_i32 s40, {nload*784}\ns_movk_i32 s41, {nload*832}")
    e("s_waitcnt lgkmcnt(0)")
    ldiag = diag if isinstance(diag,str) and diag.startswith('l') else None
    lst=[0]
    def lstamp(name):
        if ldiag==name: e("s_memrealtime s[60:61]")
        if stamps:
            i=lst[0]; lst[0]+=1; e(f"s_memtime s[{50+2*i}:{51+2*i}]")
    lstamp('l0')
    e("s_add_u32 s28, s4, s18\ns_addc_u32 s29, s5, 0")
    NI=16//nload
    def kq_stage(srd,m0base,soff):
        e(f"s_mov_b32 m0, {m0base}")
        for g in range(NI):
            if g==0: e("s_nop 0")
            e(f"buffer_load_dwordx4 v6, {srd}, {soff} offen offset:{g*nload*256} {ldflags} lds")
            if g<NI-1: e("s_add_u32 m0, m0, s40\ns_nop 0")
    def v_stage():
        e("s_add_u32 m0, s46, s43")
        per=4//nload
        for t in range(4):
            for rr in range(per):
                if t==0 and rr==0: e("s_nop 0")
                e(f"buffer_load_dwordx4 v7, s[24:27], s15 offen offset:{rr*nload*256} {ldflags} lds")
                if rr<per-1: e("s_add_u32 m0, m0, s41\ns_nop 0")
            if t<3: e(f"s_add_u32 m0, m0, {4352-(per-1)*nload*832}\ns_add_u32 s15, s15, 4096")
    if lin:
        _kq=kq_stage
        vo = "v5" if lin==1 else "off"; of = "offen " if lin==1 else ""
        def lin_stage(srd,soff,step):
            for g in range(4):
                if g==0: e("s_nop 0")
                e(f"buffer_load_dwordx4 {vo}, {srd}, {soff} {of}offset:{g*1024} {ldflags} lds")
                if g<3: e(f"s_add_u32 m0, m0, {step}\ns_nop 0")
        def kq_stage(srd,m0base,soff):
            if srd=="s[28:31]": return _kq(srd,m0base,soff)
            e(f"s_add_u32 m0, {m0base}, s84"); lin_stage(srd,soff,16)
        def v_stage():
            e("s_add_u32 m0, s46, s43"); lin_stage("s[24:27]","s15",64)
    def lflag(soff): e(f"s_mov_b32 m0, s44\ns_nop 0\nbuffer_load_dword v{vSG}, s[36:39], {soff} offen lds" if lin<2 else f"s_mov_b32 m0, s44\ns_nop 0\nbuffer_load_dword off, s[36:39], {soff} lds")
    if ini:
        e("s_add_u32 s20, s6, s17\ns_addc_u32 s21, s7, 0\ns_add_u32 s24, s8, s17\ns_addc_u32 s25, s9, 0")
        e(f"s_add_u32 s43, s43, {KSL}")
        for n,stg in enumerate(ini):
            k,j=stg[0],int(stg[1])
            if n==depth: e("s_barrier")
            if n>=depth: e(f"s_waitcnt vmcnt({(NI+1)*(depth-1)})")
            if k=='Q':
                e(f"s_add_u32 s47, s42, {QOFF[j]}\ns_mov_b32 s45, {j*16384}"); kq_stage("s[28:31]","s47","s45")
            elif k=='K':
                e(f"s_add_u32 s47, s42, {KOFF(j)}\ns_mov_b32 s45, {j*16384}"); kq_stage("s[20:23]","s47","s45")
            else:
                e(f"s_mov_b32 s46, {VOFF(j)-KSL}\ns_mov_b32 s15, {j*16384}"); v_stage()
            lflag(str(4*(n+1)))
            if n==0: lstamp('l1')
    elif not stag:
        kq_stage("s[28:31]","s46","0")
        if not qbar: lflag("4")
        lstamp('l1')
        e(f"s_add_u32 s46, s42, {QOFF[1]}\ns_movk_i32 s45, 16384")
        kq_stage("s[28:31]","s46","s45")
        if not qbar: lflag("8")
        e("s_add_u32 s20, s6, s17\ns_addc_u32 s21, s7, 0")
        if lin==2: e("s_or_b32 s21, s21, 0x100000")
        kq_stage("s[20:23]","s42","0"); lflag("12")
    else:
        e("s_add_u32 s20, s6, s17\ns_addc_u32 s21, s7, 0")
        kq_stage("s[28:31]","s46","0")
        lstamp('l1')
        kq_stage("s[20:23]","s42","0"); lflag("8")
        e(f"s_add_u32 s47, s42, {SS}\ns_movk_i32 s45, 16384")
        kq_stage("s[20:23]","s47","s45"); lflag("12")
    lstamp('l2')
    e("s_add_u32 s24, s8, s17\ns_addc_u32 s25, s9, 0")
    if lin==2: e("s_or_b32 s25, s25, 0x100000")
    e(f"v_and_b32 v3, 3, v2\nv_lshlrev_b32 v3, 8, v3\nv_lshl_add_u32 v{vFA}, v2, 2, v3\nv_add_u32 v{vFA}, {FB+256*nload}, v{vFA}")
    i0=(len(ini)-1)//2 if ini else 1
    if ini: e(f"s_mov_b32 s46, {(i0%4)*SS}\ns_mov_b32 s49, {8*i0+8}\ns_mov_b32 s45, {i0*16384}")
    else: e(f"s_mov_b32 s46, {SS}\ns_mov_b32 s49, 16\ns_add_u32 s43, s43, {KSL}")
    def need_for(i):
        if i<4: return 0
        req=6 if i in (4,8) else 2*(i-4)+4
        return min(2*it+4 for it in sig_iters if 2*it+4>=req)
    packed=0
    seen=0
    for i in range(1,9):
        n=need_for(i)
        if n>seen: packed|=n<<(4*(i-1)); seen=n
    packed>>=4*(i0-1)
    e(f"s_mov_b32 s48, {packed:#x}")
    if ini: pass
    elif not qbar: e("s_barrier")
    else:
        assert not stag
        e(f"s_add_u32 s47, s46, s42\ns_waitcnt vmcnt({2*NI+1})")
        kq_stage("s[20:23]","s47","s45"); lflag("16")
        e(f"s_lshr_b32 s48, s48, 4\ns_mov_b32 s15, 0\ns_mov_b32 s49, 20\ns_waitcnt vmcnt({2*NI+2})\ns_barrier\ns_branch L_lv")
    if d0<depth: e(f"s_waitcnt vmcnt({(NI+1)*(d0-1)})")
    W=(NI+1)*(depth-1)
    if stag:
        e(f"s_add_u32 s47, s42, {QOFF[1]}\ns_waitcnt vmcnt({W})")
        kq_stage("s[28:31]","s47","s45"); lflag("16")
        e("s_lshr_b32 s48, s48, 4\ns_mov_b32 s15, 0\ns_mov_b32 s49, 20\ns_branch L_lv")
    e("L_lloop:")
    if not nomem:
        e("s_and_b32 s14, s48, 15\ns_cbranch_scc0 L_lgo")
        if bar: e("s_barrier\nL_lgo:")
        else: e(f"s_branch L_lx\nL_lw:\ns_sleep {lsleep}\nL_lx:\nds_read_b32 v8, v{vFA}\ns_waitcnt lgkmcnt(0)\nv_cmp_gt_u32 vcc, s14, v8\ns_cbranch_vccnz L_lw\nL_lgo:")
    e("s_lshr_b32 s48, s48, 4\ns_sub_u32 s15, s45, 16384")
    e(f"s_cmp_eq_u32 s49, 72\ns_cselect_b32 s46, {XB-KSL}, s46\ns_cbranch_scc1 L_lv")
    e("s_add_u32 s47, s46, s42")
    e(f"s_waitcnt vmcnt({W})")
    kq_stage("s[20:23]","s47","s45"); lflag("s49")
    e("s_add_u32 s49, s49, 4")
    e("L_lv:")
    e(f"s_waitcnt vmcnt({W})")
    v_stage(); lflag("s49")
    e(f"s_add_u32 s49, s49, 4\ns_add_u32 s45, s45, 16384\ns_add_u32 s46, s46, {SS}\ns_cmp_eq_u32 s46, {4*SS}\ns_cselect_b32 s46, 0, s46")
    e("s_cmp_lt_u32 s49, 76\ns_cbranch_scc1 L_lloop")
    lstamp('l3')
    e("s_waitcnt vmcnt(0)")
    lstamp('l4')
    if stamps:
        e("s_memrealtime s[94:95]\ns_waitcnt lgkmcnt(0)")
        e("s_mov_b32 s36, s12\ns_mov_b32 s37, s13\ns_mov_b32 s38, 0x1000000\ns_mov_b32 s39, 0x20000")
        e("s_cmp_lg_u32 s16, 0\ns_cbranch_scc1 L_end")
        e("s_lshl_b32 s45, s2, 8\ns_add_u32 s45, s45, 65536\nv_mov_b32 v7, s45")
        for i,r in enumerate([96,98]+[50+2*min(i,lst[0]-1) for i in range(scnt[0]+1)]+[94]):
            e(f"v_mov_b32 v8, s{r}\nbuffer_store_dword v8, v7, s[36:39], 0 offen offset:{4*i}\ns_nop 1")
    if ldiag:
        e(f"s_memrealtime s[62:63]\ns_waitcnt lgkmcnt(0)\ns_sub_u32 s67, s60, s96\ns_mul_i32 s67, s67, {dk}\ns_add_u32 s67, s67, 500\ns_min_u32 s67, s67, 100000\nL_lspin:\ns_memrealtime s[64:65]\ns_waitcnt lgkmcnt(0)\ns_sub_u32 s66, s64, s62\ns_cmp_lt_u32 s66, s67\ns_cbranch_scc1 L_lspin")
    e("L_end:\ns_endpgm")
    e(".p2align 7\nL_table:\n"+"\n".join(f".long {i}" for i in range(32)))
    e("L_consumer:")
    if cprio: e(f"s_setprio {cprio}")
    e(f"s_sub_u32 s16, s16, {nload}")
    e(f"v_and_b32 v3, {nload-1}, v2\nv_lshlrev_b32 v3, 8, v3\nv_lshl_add_u32 v{vFA}, v2, 2, v3")
    if codepf:
        e("s_getpc_b64 s[36:37]\nL_pc2:\ns_add_u32 s36, s36, L_main-L_pc2\ns_addc_u32 s37, s37, 0\ns_mov_b32 s38, L_slow-L_main\ns_mov_b32 s39, 0x20000")
        e("s_lshr_b32 s45, s2, 3\ns_lshl_b32 s45, s45, 2\ns_add_u32 s45, s45, s16\ns_lshl_b32 s45, s45, 7\nv_mov_b32 v9, 0\nbuffer_load_dword v31, v9, s[36:39], s45 offen")
    if hop:
        e("s_mov_b64 exec, 0\ns_cmp_eq_u32 s16, 0\ns_cbranch_scc1 L_hop0\ns_cmp_eq_u32 s16, 1\ns_cbranch_scc1 L_hop1\ns_cmp_eq_u32 s16, 2\ns_cbranch_scc1 L_hop2\ns_branch L_hop3\nL_hopdone:\ns_mov_b64 exec, -1")
    e(f"v_add_u32 v{vFA}, {FB}, v{vFA}")
    e("v_lshrrev_b32 v4, 5, v2\nv_and_b32 v5, 15, v2\nv_bfe_u32 v6, v2, 4, 1")
    e(f"v_mul_u32_u24 v{vKA[0]}, 1040, v5\nv_lshl_add_u32 v{vKA[0]}, v6, 8, v{vKA[0]}\nv_lshl_add_u32 v{vKA[0]}, v4, 4, v{vKA[0]}\nv_add_u32 v{vKA[1]}, {2*SS}, v{vKA[0]}")
    e("v_lshrrev_b32 v7, 2, v5\nv_and_b32 v8, 3, v5")
    e("v_lshlrev_b32 v3, 8, v4\nv_lshl_add_u32 v3, v6, 5, v3\nv_lshl_add_u32 v3, v8, 3, v3")
    if lin: e("v_mul_u32_u24 v3, 4352, v4\nv_lshl_add_u32 v3, v6, 5, v3\nv_lshl_add_u32 v3, v8, 3, v3")
    e(f"v_mul_u32_u24 v{vT2}, 1088, v7\nv_add_u32 v{vT2}, v{vT2}, v3")
    e(f"v_add_u32 v{vVA[0]}, {KSL}, v{vT2}\nv_add_u32 v{vVA[1]}, {KSL+2*SS}, v{vT2}\nv_add_u32 v{vVA[2]}, {XB}, v{vT2}")
    e(f"s_mul_i32 s47, s16, {STG}\ns_add_u32 s47, s47, {SB}")
    e(f"v_lshlrev_b32 v{vT2}, 10, v4\nv_lshl_add_u32 v{vT2}, v7, 8, v{vT2}\nv_lshl_add_u32 v{vT2}, v6, 5, v{vT2}\nv_lshl_add_u32 v{vT2}, v8, 3, v{vT2}\nv_add_u32 v{vT2}, s47, v{vT2}")
    e(f"v_and_b32 v3, 31, v2\nv_lshlrev_b32 v{vGK}, 8, v3\nv_lshl_add_u32 v{vGK}, v4, 4, v{vGK}")
    e(f"v_lshlrev_b32 v{vGV}, 4, v2")
    e(f"s_lshl_b32 s45, s16, 13\nv_bfe_u32 v3, v2, 2, 3\nv_lshlrev_b32 v{vOA}, 10, v3\nv_lshl_add_u32 v{vOA}, v4, 8, v{vOA}\nv_lshl_add_u32 v{vOA}, v8, 4, v{vOA}\nv_add_u32 v{vOA}, s45, v{vOA}")
    e(f"s_mov_b32 {sC}, {f2u(C_SCALE):#x}\ns_mov_b32 {sTHR}, {f2u(lthr):#x}")
    e("s_mov_b32 s76, 0x55555555\ns_mov_b32 s77, s76\ns_not_b64 s[78:79], s[76:77]\ns_mov_b32 s80, 0x33333333\ns_mov_b32 s81, s80\ns_not_b64 s[82:83], s[80:81]")
    e(f"s_lshr_b32 s46, s16, 1\ns_mov_b32 s45, {QOFF[0]}\ns_cmp_eq_u32 s46, 0\ns_cselect_b32 s45, s45, {QOFF[1]}\ns_and_b32 s19, s16, 1\ns_lshl_b32 s19, s19, 9\ns_add_u32 s45, s45, s19\ns_add_u32 s46, s46, 1")
    if stag: e("s_lshl_b32 s46, s46, 1")
    if ini: e(f"s_cmp_eq_u32 s46, 1\ns_cselect_b32 s46, {ini.index('Q0')+1}, {ini.index('Q1')+1}")
    e(f"v_add_u32 v{vT1}, s45, v{vKA[0]}")
    if dryt:
        for r in range(vFR,vFR+4*NFR): e(f"v_mov_b32 v{r}, 0")
        e(f"v_mov_b32 v9, v{vT1}")
        e("s_mov_b64 exec, 0\ns_cmp_eq_u32 s16, 0\ns_cbranch_scc1 L_dq0\ns_cmp_eq_u32 s16, 1\ns_cbranch_scc1 L_dq1\ns_cmp_eq_u32 s16, 2\ns_cbranch_scc1 L_dq2\ns_branch L_dq3\nL_drydone:\ns_mov_b64 exec, -1")
        e(f"v_mov_b32 v{vT1}, v9")
        if stamps: e("s_memtime s[72:73]")
    e("s_waitcnt lgkmcnt(0)")
    e("s_add_u32 s32, s10, s18\ns_addc_u32 s33, s11, 0\ns_mov_b32 s34, 32768\ns_mov_b32 s35, 0x20000")
    e("s_add_u32 s20, s6, s17\ns_addc_u32 s21, s7, 0\ns_mov_b32 s22, 131072\ns_mov_b32 s23, 0x20000")
    e("s_add_u32 s24, s8, s17\ns_addc_u32 s25, s9, 0\ns_mov_b32 s26, 131072\ns_mov_b32 s27, 0x20000")
    e("s_barrier")
    if stamps: e("s_mov_b32 s74, 0\ns_mov_b32 s75, 0")
    e("s_branch L_main")
    e(text(rare))
    e(".p2align 3\nL_main:")
    e(text(prog))
    if stamps:
        ns=scnt[0]
        e("s_waitcnt vmcnt(0)")
        e(f"s_memtime s[{50+2*ns}:{51+2*ns}]\ns_memrealtime s[{52+2*ns}:{53+2*ns}]\ns_waitcnt lgkmcnt(0)")
        e("s_mov_b32 s36, s12\ns_mov_b32 s37, s13\ns_mov_b32 s38, 0x1000000\ns_mov_b32 s39, 0x20000")
        e("s_cmp_lg_u32 s16, 3\ns_cbranch_scc1 L_end2")
        e("s_lshl_b32 s45, s2, 8\nv_mov_b32 v7, s45")
        regs=[96,98]+[50+2*i for i in range(ns+2)]
        assert regs[-1]<74
        regs+=[74,75]
        if dryt: regs[2]=72
        for i,r in enumerate(regs):
            e(f"v_mov_b32 v8, s{r}\nbuffer_store_dword v8, v7, s[36:39], 0 offen offset:{4*i}\ns_nop 1")
        sys.stderr.write(f"nstamps={len(regs)}\n")
        e("L_end2:")
    if diag is not None and not ldiag:
        e("s_waitcnt vmcnt(0)")
        if diag=='end': e("s_memrealtime s[60:61]")
        e(f"s_memrealtime s[62:63]\ns_waitcnt lgkmcnt(0)\ns_sub_u32 s67, s60, s96\ns_mul_i32 s67, s67, {dk}\ns_min_u32 s67, s67, 100000\nL_spin:\ns_memrealtime s[64:65]\ns_waitcnt lgkmcnt(0)\ns_sub_u32 s66, s64, s62\ns_cmp_lt_u32 s66, s67\ns_cbranch_scc1 L_spin")
    e("s_endpgm")
    e(text(S))
    e(f'.section .rodata,"a"\n.p2align 6\n.amdhsa_kernel {KN}')
    e(f"  .amdhsa_next_free_vgpr 256\n  .amdhsa_next_free_sgpr 102\n  .amdhsa_accum_offset 256\n  .amdhsa_group_segment_fixed_size 0\n  .amdhsa_kernarg_size 48\n  .amdhsa_user_sgpr_count 2\n  .amdhsa_user_sgpr_kernarg_segment_ptr 1\n  .amdhsa_system_sgpr_workgroup_id_x 1\n.end_amdhsa_kernel")
    return "\n".join(H)+"\n"

if __name__=="__main__":
    name=sys.argv[1]; kw={}
    for a in sys.argv[2:]:
        k,v=a.split("=",1)
        try: v=int(v)
        except:
            try: v=float(v)
            except: pass
        kw[k]=v
    open(name,"w").write(gen(**kw))
```

```python
import sys, math, struct
from asmlib import *

KN="standalone__gqa_softmax__near_ridge_kernel"
C_SCALE = math.log2(math.e)/math.sqrt(128.0)
def f2u(x): return struct.unpack("<I",struct.pack("<f",x))[0]

KSL=16640; VSL=17408; SS=KSL+VSL
XB=4*SS; FB=XB+VSL; SB=FB+2048; STG=2048
assert SB+4*STG<=163840
def KOFF(j): return (j%4)*SS
def VOFF(j): return XB if j==7 else ((j+1)%4)*SS+KSL
QOFF=[VOFF(3),XB]

def pkmul(d,a,b):
    return I(f"v_pk_mul_f32 {vr(d,2)}, {vr(a,2)}, {vr(b,2)}",'valu',rd=R(a,2)+R(b,2),wr=R(d,2),cost=6)
def cnd_dpp(d,s0,s1,qp):
    return I(f"v_cndmask_b32_dpp v{d}, v{s0}, v{s1}, vcc quad_perm:{qp} row_mask:0xf bank_mask:0xf",'dpp',rd=[s0,s1],wr=[d])

def gen(depth=3, ldflags="nt", stflags="nt", stamps=0, pf=6, G=2, lthr=2.0**24, budget=24, fl=4, lprio=0, cprio=0,
        verbose=0, diag=None, dk=1, nomem=0, lds=163840, xmap=0, NFR=8, lsleep=4,
        cinit=1, forceslow=0, HZ=2, d0=3, tailb=40, order=1, stc=24, sigs="1,3", bar=0, hop=0, codepf=1, stset='q,K0,K1,K3,K5,K7,V7,e0,e3,st', nosig=0, pair=1, nload=4, stag=0, head=0, late=0, slow=0, lin=0, qsleep=0, pk2=0, osleep=0, qbar=0, dryt=0, init='', wstag=0, scout=0, vsk=1, swait=1, ebar=0):
    vKA=[10,11]; vVA=[12,13,30]
    vFA,vSA=14,15
    vNM,vLa,vLb,vMX,vT1,vOA=16,17,18,19,20,21
    vRL=22
    vF=[24,25]; vSG=26; vGK=27; vGV=28; vT2=29
    vQ=32; vFR=64
    vNB=vFR+4*NFR
    vS=[vNB+16+16*i for i in range(3)]
    vP=[vS[2]+16+8*i for i in range(4)]
    vO=vP[3]+8
    assert vO+64<=256
    sC="s40"; sTHR="s41"
    sEV,sOD,sLO,sHI="s[76:77]","s[78:79]","s[80:81]","s[82:83]"
    LK=(lambda j: 3 if j==0 else 2*j+2) if not stag else (lambda j: {0:1,1:3}.get(j,2*j+2))
    LV=lambda j: 2*j+5 if j<7 else 18
    ini=init.split(',') if init else []
    q4=False; voff=0
    if ini:
        assert not stag and not qbar
        q4='W0' in ini; voff=2 if q4 else 0
        assert (len(ini)-voff) in (5,7,9)
        _LK,_LV=LK,LV
        LK=lambda j: ini.index(f"K{j}")+1 if f"K{j}" in ini else _LK(j)+voff
        LV=lambda j: ini.index(f"V{j}")+1 if f"V{j}" in ini else _LV(j)+voff
    sig_iters=[int(x) for x in str(sigs).split(",")]
    rare=[]; scnt=[0]
    def stamp(name):
        o=[]
        if diag==name: o.append(raw("s_memrealtime s[60:61]"))
        if stamps and name in stset.split(','):
            i=scnt[0]; scnt[0]+=1; o.append(raw(f"s_memtime s[{50+2*i}:{51+2*i}]"))
        return o
    cn=[0]
    def flag_read():
        r=vF[cn[0]%2]; return I(f"ds_read_b32 v{r}, v{vFA}",'dsr',rd=[vFA],wr=[r])
    def flag_check(val,name):
        r=vF[cn[0]%2]; cn[0]+=1
        if nomem: return stamp(name)
        if stamps: rare.extend([label(f"L_spin{name}"), raw(f"s_bitset1_b32 s75, {cn[0]-1}"), raw("s_add_u32 s74, s74, 1")])
        rare.extend(([] if stamps else [label(f"L_spin{name}")])+([raw(f"s_sleep {qsleep}")] if (qsleep and name=='q') else [])+([raw(f"s_sleep {osleep}")] if (osleep and name!='q') else [])+[ raw(f"ds_read_b32 v{r}, v{vFA}"), raw("s_waitcnt lgkmcnt(0)"),
                     raw(f"v_cmp_gt_u32 vcc, {val}, v{r}"), raw(f"s_cbranch_vccnz L_spin{name}"), raw(f"s_branch L_back{name}")])
        return [I(f"v_cmp_gt_u32 vcc, {val}, v{r}\n    s_cbranch_vccnz L_spin{name}\nL_back{name}:",'valu',rd=[r],sw=['vcc'],cost=8,tag='vcc')]+stamp(name)
    def signal(val): return [] if nosig else [valu("v_mov_b32",vSG,str(val)), I(f"ds_write_b32 v{vSA}, v{vSG}",'dsw',rd=[vSA,vSG])]

    M=[]
    def PL(h): return vS[h%3] if (order in (7,8) and h>=14) else vP[h%4]
    def addr(base,off):
        ss=off//SS; return (base[ss//2], off-(ss//2)*2*SS)
    def add_qk(h):
        j,u=divmod(h,2); d=vS[h%3]
        for s in range(8):
            f=vFR+4*(len(M)%NFR)
            c0=vNB if (cinit and h>=2) else "0"
            a,o=addr(vKA,KOFF(j)+u*512+s*32)
            M.append(dict(mfma=mfma32(d,f,vQ+4*s,c0 if s==0 else d),reads=[dsr128(f,a,o)],st=('K',j),id=('K',h,s)))
    def add_pv(h,dts,first=False):
        j,u=divmod(h,2)
        for tl in range(2):
            for dt in dts:
                one_pv(h,tl,dt)
    def one_pv(h,tl,dt):
        j,u=divmod(h,2); t=2*u+tl
        f=vFR+4*(len(M)%NFR)
        rds=[]
        for x in range(2):
            io=(t*4352+x*512+64*dt) if not lin else (x*8704+t*256+64*dt)
            a,o=addr(vVA,VOFF(j)-KSL+io) if j<7 else (vVA[2],io); rds.append(dsrtr(f+2*x,a,o))
        c="0" if (h==0 and tl==0) else vO+16*dt
        M.append(dict(mfma=mfma32(vO+16*dt,f,PL(h)+4*tl,c),reads=rds,st=('V',j),id=('V',h,tl,dt)))
    add_qk(0); add_qk(1)
    if head:
        add_qk(2); add_qk(3); add_pv(0,range(4)); add_pv(1,range(4))
    for i in range(2 if head else 1,7):
        dd=range(4)
        if i==6 and order==7: dd=(0,1)
        if i==6 and order==8: dd=(0,1,2)
        add_qk(2*i); add_pv(2*i-2,dd); add_qk(2*i+1); add_pv(2*i-1,dd)
    def pvt(j,dt):
        for h in (2*j,2*j+1):
            for tl in range(2): one_pv(h,tl,dt)
    if order==1:
        add_qk(14); add_qk(15)
        pvt(6,3); pvt(6,2); pvt(6,0); pvt(7,0); pvt(6,1); pvt(7,1); pvt(7,2); pvt(7,3)
    elif order==2:
        add_qk(14); add_pv(12,(3,2)); add_qk(15); add_pv(13,(3,2))
        pvt(6,0); pvt(6,1); pvt(7,0); pvt(7,1); pvt(7,2); pvt(7,3)
    elif order==3:
        add_qk(14); add_qk(15)
        pvt(6,3); pvt(6,0); pvt(6,2); pvt(7,0); pvt(6,1); pvt(7,1); pvt(7,2); pvt(7,3)
    elif order==4:
        add_qk(14); add_qk(15)
        pvt(6,0); pvt(6,1); pvt(7,0); pvt(7,1); pvt(6,2); pvt(7,2); pvt(6,3); pvt(7,3)
    elif order==5:
        add_qk(14); add_qk(15)
        pvt(6,0); pvt(6,1); pvt(6,2); add_pv(14,(0,1)); add_pv(15,(0,1)); pvt(7,2); pvt(6,3); pvt(7,3)
    elif order==7:
        add_qk(14); add_qk(15)
        pvt(6,0); pvt(6,1); pvt(7,0); pvt(7,1); pvt(5,2); pvt(6,2); pvt(7,2); pvt(5,3); pvt(6,3); pvt(7,3)
    elif order==8:
        add_qk(14); add_qk(15)
        pvt(6,0); pvt(6,1); pvt(7,0); pvt(7,1); pvt(6,2); pvt(7,2); pvt(5,3); pvt(6,3); pvt(7,3)
    elif order==9:
        add_qk(14); add_pv(12,(0,)); add_qk(15); add_pv(13,(0,))
        pvt(6,1); add_pv(14,(0,)); add_pv(12,(2,)); add_pv(15,(0,)); pvt(7,1); add_pv(13,(2,)); pvt(7,2); pvt(6,3); pvt(7,3)
    NM=len(M); assert NM==256
    pos={m['id']:i for i,m in enumerate(M)}
    first_use={}; last_use={}
    for i,m in enumerate(M):
        first_use.setdefault(m['st'],i); last_use[m['st']]=i
    for st,i in first_use.items(): M[i]['need']=(LK(st[1]) if st[0]=='K' else LV(st[1]), f"{st[0]}{st[1]}")
    if stag: del M[0]['need']
    for it in sig_iters:
        i0=max(last_use[('K',it)],last_use[('V',it-1)])
        if bar: M[i0+pf+1]['bar']=1
        else: M[i0]['sig']=2*it+4
    F=[]
    def addF(lst,avail,due):
        for x in lst: F.append([x,avail,due])
    def crosshalf(o,reg,tmp,op):
        o.append(valu("v_mov_b32",tmp,reg)); o.append(perm32(reg,tmp)); o.append(valu(op,reg,reg,tmp))
    def max_blk(src,dst,first):
        o=[valu("v_max3_f32",dst,src,src+1,src+2) if first else valu("v_max3_f32",dst,dst,src,src+1)]
        k=3 if first else 2
        while k+1<16: o.append(valu("v_max3_f32",dst,dst,src+k,src+k+1)); k+=2
        if k<16: o.append(valu("v_max_f32",dst,dst,src+k))
        return o
    def exp_blk(src,dstp,pre):
        seq=[]; n=16
        for i in range(n+3):
            if i<n and pre=='fma': seq.append(valu("v_fma_f32",src+i,src+i,sC,vNM))
            if i<n and pre=='add': seq.append(valu("v_add_f32",src+i,src+i,vNM))
            if 0<=i-1<n: seq.append(trans("v_exp_f32",src+i-1,src+i-1))
            if 0<=i-2<n:
                l=vLa if (i-2)%2==0 else vLb; seq.append(valu("v_add_f32",l,l,src+i-2))
            if i-3>=0 and (i-3)%2==1:
                k=(i-3)//2; seq.append(valu("v_cvt_pk_bf16_f32",dstp+k,src+2*k,src+2*k+1))
        return seq
    st=max_blk(vS[0],vMX,True); crosshalf(st,vMX,vT1,"v_max_f32")
    if cinit:
        st.append(valu("v_sub_f32",vNM,"0",vMX)); st+=[valu("v_sub_f32",vNB+i,"0",vMX) for i in range(16)]
        addF(st,8+HZ,16)
    else:
        st+=[valu("v_mul_f32",vNM,sC,vMX),valu("v_sub_f32",vNM,"0",vNM)]; addF(st,8+HZ,24)
    for h in range(16):
        pre=('add' if h<2 else None) if cinit else 'fma'
        av=pos[('K',h,7)]+1+HZ
        dueS=pos[('K',h+3,0)] if h+3<16 else NM
        for x in exp_blk(vS[h%3],PL(h),pre):
            a=av; d=dueS
            if x.text.startswith("v_cvt"):
                k=list(x.wr)[0]-PL(h); tl=k//4
                d=min(d,min(pos[('V',h,tl,dt)] for dt in range(4)))
                if h>=4 and PL(h)==PL(h-4): a=max(a,max(pos[('V',h-4,tl,dt)] for dt in range(4))+1)
            F.append([x,a,d])
    fin=[valu("v_add_f32",vLa,vLa,vLb)]; crosshalf(fin,vLa,vT1,"v_add_f32")
    fin.append(trans("v_rcp_f32",vRL,vLa))
    br="" if nomem else ("\n    s_cbranch_vccnz L_slow" if not forceslow else "\n    s_branch L_slow")
    fin.append(I(f"v_cmp_nge_f32 vcc, {sTHR}, v{vLa}"+br,'valu',rd=[vLa],sw=['vcc'],sr=[sTHR],cost=8))
    fin.append(valu("v_mov_b32",vRL+1,vRL))
    addF(fin,0,NM)
    def setvcc(s): return I(f"s_mov_b64 vcc, {s}",'salu')
    def epi(dt,pk=False,tmp=None):
        o=vO+16*dt; r=[]
        r+=[pkmul(o+2*k,o+2*k,vRL) for k in range(8)] if pk else [valu("v_mul_f32",o+k,o+k,vRL) for k in range(16)]
        r+=[valu("v_cvt_pk_bf16_f32",o+k,o+2*k,o+2*k+1) for k in range(8)]
        W=lambda k,e:o+2*k+e; X=lambda k,e:o+8+2*k+e
        g=[]
        g.append([setvcc(sEV)]+[cnd_dpp(X(k,e),W(k+1,e),W(k,e),"[1,0,3,2]") for k in (0,2) for e in range(2)])
        g.append([setvcc(sOD)]+[cnd_dpp(X(k+1,e),W(k,e),W(k+1,e),"[1,0,3,2]") for k in (0,2) for e in range(2)])
        g.append([setvcc(sLO)]+[cnd_dpp(W(k,e),X(k+2,e),X(k,e),"[2,3,0,1]") for k in (0,1) for e in range(2)])
        g.append([setvcc(sHI)]+[cnd_dpp(W(k+2,e),X(k,e),X(k+2,e),"[2,3,0,1]") for k in (0,1) for e in range(2)])
        for x in g: r+=x
        for j in range(2): r+=[perm32(o+4*j,o+4*j+2),perm32(o+4*j+1,o+4*j+3)]
        sts=[I(f"buffer_store_dwordx4 {vr(o+4*j,4)}, v{vOA}, s[32:35], 0 offen offset:{512*j+64*dt} {stflags}".rstrip(),'st4',rd=[vOA]+R(o+4*j,4),cost=stc) for j in range(2)]
        return r,sts
    lastdt={dt:max(i for i,m in enumerate(M) if m['id'][0]=='V' and m['id'][3]==dt) for dt in range(4)}
    dorder=sorted(range(4),key=lambda d:lastdt[d])
    held=[]
    for n,dt in enumerate(dorder[:3]):
        r,sts=epi(dt,pk=(pk2 and n==2))
        if pair:
            if n%2==0: held=sts; sts=[]
            else:
                assert dt//2==dorder[n-1]//2
                sts=[held[0],sts[0],held[1],sts[1]]; held=[]
        for x in sts[1:]: x.cost=0
        addF((stamp('e0') if dt==dorder[0] else [])+r+sts,(lastdt[dt]+1+HZ) if not (pk2 and n==2) else NM+5,NM+1)
    lastflag=max(i for i,m in enumerate(M) if 'need' in m)-pf
    assert lastflag<lastdt[dorder[0]]
    P=[]
    P+=([flag_read()]+flag_check("s46","q")) if not qbar else stamp('q')
    for s in range(8): P.append(dsr128(vQ+4*s,vT1,32*s))
    P+=[valu("v_mov_b32",vLa,"0"),valu("v_mov_b32",vLb,"0")]
    if cinit:
        P+=[valu("v_mov_b32",vRL,sC),valu("v_mov_b32",vRL+1,sC)]
        t=vS[2]
        for r in range(34):
            if r<32:
                a=t+2*(r%8); P+=[valu("v_lshlrev_b32",a,"16",vQ+r),valu("v_and_b32",a+1,"0xffff0000",vQ+r)]
            if 1<=r<33:
                b=t+2*((r-1)%8); P.append(pkmul(b,b,vRL))
            if r>=2:
                b=t+2*((r-2)%8); P.append(valu("v_cvt_pk_bf16_f32",vQ+r-2,b,b+1))
    fi=0; cost=0
    def issue_reads(i):
        nonlocal cost
        m=M[i]
        if 'need' in m:
            if not m.get('fr'): P.append(flag_read()); cost+=4
            P.extend(flag_check(*m['need'])); cost+=12
        P.extend(m['reads']); cost+=4*len(m['reads'])
        if 'sig' in m: P.extend(signal(m['sig'])); cost+=8
        if 'bar' in m and not nomem: P.append(raw("s_barrier")); cost+=4
    needs=[i for i in range(NM) if 'need' in M[i]]
    lates=[i for i in needs if M[i]['need'][1] in ('K1','V0')] if late else []
    def rg(i):
        g=i-pf
        for b in lates:
            if b<=i: g=max(g,b-late)
        return max(g,-1)
    by_gap={}
    for i in range(NM): by_gap.setdefault(rg(i),[]).append(i)
    fr_gap={}
    for a,b in zip([None]+needs[:-1],needs):
        g=rg(b)-fl
        if a is not None: g=max(g,rg(a))
        if 0<=g<rg(b): fr_gap[g]=b
    for i in by_gap[-1]: issue_reads(i)
    carry=0
    for g in range(NM):
        while fi<len(F) and any(F[k][2]<=g for k in range(fi,min(fi+150,len(F)))):
            assert F[fi][1]<=g+HZ, ("forced before avail",F[fi][0].text,F[fi][1],g)
            P.append(F[fi][0]); fi+=1
        cost=0
        if G>1 and g%G==0:
            ex=set()
            for k in range(1,G):
                if g+k<NM and rg(g+k)<g-1:
                    for r in M[g+k]['reads']: ex|=r.wr
            P.append(I("",'touch',rd=ex,cost=0))
        P.append(M[g]['mfma'])
        if slow and g%4==0: P.append(nop(slow-1))
        if (g+1)%G==0: cost+=4
        for i in by_gap.get(g,[]): issue_reads(i)
        if g in fr_gap:
            P.append(flag_read()); M[fr_gap[g]]['fr']=True; cost+=4
        b=budget if g<pos[('K',15,7)] else tailb
        lim=b+carry
        while fi<len(F) and F[fi][1]<=g+1 and cost+F[fi][0].cost<=lim:
            P.append(F[fi][0]); cost+=F[fi][0].cost; fi+=1
        carry=max(-8,min(4,lim-cost))
    while fi<len(F): P.append(F[fi][0]); fi+=1
    r,sts=epi(dorder[3],pk=True)
    if pair: sts=[held[0],sts[0],held[1],sts[1]]
    P+=stamp('e3')+r+sts+stamp('st')
    prog=insert_lgkm(P); prog=[x for x in prog if x.kind!='touch']
    prog,added=pad_hazards(prog,verbose)
    if dryt:
        mi=[i for i,x in enumerate(prog) if x.kind=='mfma']
        a=mi[dryt]; n=len(prog)-a
        cuts=[a+n*k//4 for k in range(4)]
        out=[]; i=0; q=0
        while i<len(prog):
            x=prog[i]
            if q<4 and i>=cuts[q] and x.kind!='st4':
                if q>0: out.append(raw("s_cbranch_execz L_drydone"))
                out.append(label(f"L_dq{q}")); q+=1
            if x.kind=='st4':
                j=i
                while j+1<len(prog) and prog[j+1].kind=='st4': j+=1
                last = all(y.kind!='st4' and y.kind!='valu' for y in prog[j+1:])
                out.append(raw("s_cbranch_execz L_drydone" if last else f"s_cbranch_execz L_sk{i}")); out+=prog[i:j+1]
                if not last: out.append(label(f"L_sk{i}"))
                i=j+1; continue
            out.append(x); i+=1
        prog=out
    if scout:
        cuts=[len(prog)*k//scout for k in range(1,scout)]
        out=[]; i=0; q=0
        while i<len(prog):
            x=prog[i]
            if q<len(cuts) and i>=cuts[q] and x.kind=='mfma':
                out.append(raw("s_cbranch_execz L_sdone")); out.append(label(f"L_sq{q+1}")); q+=1
            if x.kind=='st4' or x.text=='s_barrier':
                j=i
                while j+1<len(prog) and prog[j+1].kind=='st4': j+=1
                last = all(y.kind not in('st4','valu','dpp') for y in prog[j+1:])
                out.append(raw("s_cbranch_execz L_sdone" if last else f"s_cbranch_execz L_sk{i}")); out+=prog[i:j+1]
                if not last: out.append(label(f"L_sk{i}"))
                i=j+1; continue
            out.append(x); i+=1
        prog=out
    nh=0
    if hop:
        out=[]; cnt=0
        step=len(prog)//hop+1
        nxt=step//2
        pts=[]
        for i,x in enumerate(prog):
            if i>=nxt and x.kind in ('mfma','valu') and nh<hop:
                tgt=f"L_hop{nh+4}" if nh+4<hop else "L_hopdone"
                out.append(label(f"L_hop{nh}")); out.append(raw(f"s_cbranch_execz {tgt}")); nh+=1; nxt+=step
            out.append(x)
        assert nh==hop,(nh,hop)
        prog=out
    k0=[i for i,x in enumerate(prog) if x.kind=='mfma'][0]
    sys.stderr.write(f"consumer: {len(prog)} instrs, nops {added}, est total {est_cycles(prog)} from-first-mfma {est_cycles(prog[k0:])}\n")

    S=[]; sa=vS[0]; kf=vS[1]; sp=vP[0]
    S+=[label("L_slow"), raw("s_waitcnt vmcnt(0) lgkmcnt(0)"), nop(15), nop(15)]
    S+=[valu("v_mov_b32",vMX,"0xff800000"), raw("s_mov_b32 s46, 0"), label("L_s1")]
    def kload():
        return [raw(f"buffer_load_dwordx4 {vr(kf+4*s,4)}, v{vGK}, s[20:23], s46 offen offset:{32*s}") for s in range(8)]+[raw("s_waitcnt vmcnt(0)")]
    S+=kload()+[mfma32(sa,kf+4*s,vQ+4*s,"0" if s==0 else sa) for s in range(8)]+max_blk(sa,vMX,False)
    S+=[raw("s_add_u32 s46, s46, 8192"),raw("s_cmp_lt_u32 s46, 131072"),raw("s_cbranch_scc1 L_s1")]
    crosshalf(S,vMX,vT1,"v_max_f32")
    S+=[valu("v_sub_f32",vNM,"0",vMX)] if cinit else [valu("v_mul_f32",vNM,sC,vMX),valu("v_sub_f32",vNM,"0",vNM)]
    S+=[valu("v_mov_b32",vLa,"0"),valu("v_mov_b32",vLb,"0")]+[valu("v_mov_b32",vO+i,"0") for i in range(64)]
    S+=[raw("s_mov_b32 s46, 0"), label("L_s2")]
    S+=kload()+[mfma32(sa,kf+4*s,vQ+4*s,"0" if s==0 else sa) for s in range(8)]
    S+=exp_blk(sa,sp,'add' if cinit else 'fma')
    for t in range(2):
        for u in range(2):
            S+=[raw("s_mov_b32 m0, s47"),raw(f"s_add_u32 s19, s46, {t*4096+u*2048}"),raw(f"buffer_load_dwordx4 v{vGV}, s[24:27], s19 offen lds"),
                raw(f"buffer_load_dwordx4 v{vGV}, s[24:27], s19 offen offset:1024 lds"),raw("s_waitcnt vmcnt(0)")]
            S+=[raw(f"ds_read_b64_tr_b16 {vr(kf+4*dt+2*u,2)}, v{vT2} offset:{64*dt}") for dt in range(4)]
            S.append(raw("s_waitcnt lgkmcnt(0)"))
        S+=[mfma32(vO+16*dt,kf+4*dt,sp+4*t,vO+16*dt) for dt in range(4)]
    S+=[nop(15),raw("s_add_u32 s46, s46, 8192"),raw("s_cmp_lt_u32 s46, 131072"),raw("s_cbranch_scc1 L_s2")]
    S.append(valu("v_add_f32",vLa,vLa,vLb)); crosshalf(S,vLa,vT1,"v_add_f32")
    S+=[trans("v_rcp_f32",vRL,vLa),nop(1)]
    for dt in range(4):
        r,sts=epi(dt); S+=r+sts
    S.append(raw("s_endpgm"))
    S,_=pad_hazards(S)

    H=[]; e=H.append
    e(f"; @launch grid=(256,1,1) block=({256+64*(nload+scout)},1,1) lds={lds}")
    e('.amdgcn_target "amdgcn-amd-amdhsa--gfx950"')
    e(f".text\n.globl {KN}\n.p2align 8\n.type {KN},@function\n{KN}:")
    e("s_load_dwordx4 s[4:7], s[0:1], 0")
    e("s_load_dwordx4 s[8:11], s[0:1], 16")
    if stamps:
        e("s_load_dwordx2 s[12:13], s[0:1], 40")
        e("s_memrealtime s[96:97]\ns_memtime s[98:99]")
    if diag is not None: e("s_memrealtime s[96:97]")
    e("s_cmp_ge_u32 s2, 256\ns_cbranch_scc1 L_end")
    e("v_lshrrev_b32 v1, 6, v0\nv_and_b32 v2, 63, v0")
    if xmap==0: e("s_and_b32 s14, s2, 7\ns_lshr_b32 s15, s2, 4\ns_lshl_b32 s15, s15, 3\ns_add_u32 s14, s14, s15")
    else: e("s_and_b32 s14, s2, 7\ns_lshr_b32 s15, s2, 4\ns_lshl_b32 s14, s14, 4\ns_add_u32 s14, s14, s15")
    e("v_readfirstlane_b32 s16, v1")
    e("s_bfe_u32 s15, s2, 0x10003")
    e("s_lshl_b32 s17, s14, 17")
    e("s_lshl_b32 s18, s14, 16\ns_lshl_b32 s19, s15, 15\ns_add_u32 s18, s18, s19")
    e(f"v_lshlrev_b32 v{vSA}, 2, v0\nv_add_u32 v{vSA}, {FB}, v{vSA}\nv_mov_b32 v{vSG}, 0\nds_write_b32 v{vSA}, v{vSG}")
    if ebar==1: e("s_waitcnt lgkmcnt(0)\ns_barrier")
    e(f"s_cmp_ge_u32 s16, {nload}\ns_cbranch_scc1 L_consumer")
    assert not (ebar and (qbar or ini or stag))
    assert not (scout and (qbar or dryt))
    if nomem==1: e("s_waitcnt lgkmcnt(0)\ns_barrier\ns_endpgm")
    if lprio: e(f"s_setprio {lprio}")
    e("s_getpc_b64 s[36:37]\nL_pc:")
    e("s_add_u32 s36, s36, L_table-L_pc\ns_addc_u32 s37, s37, 0\ns_mov_b32 s38, 128\ns_mov_b32 s39, 0x20000")
    e("v_lshrrev_b32 v3, 4, v2\nv_and_b32 v4, 15, v2\nv_lshlrev_b32 v4, 4, v4")
    e("s_lshl_b32 s44, s16, 8")
    e("v_add_u32 v4, s44, v4")
    e("v_lshl_add_u32 v6, v3, 12, v4\nv_lshl_add_u32 v7, v3, 10, v4")
    e("s_mul_i32 s42, s16, 1040\ns_mul_i32 s43, s16, 1088")
    if lin:
        e(f"s_mul_i32 s84, s16, {1040*(16//nload-1)}\ns_mul_i32 s43, s16, {1088*16//nload}\ns_mul_i32 s85, s16, {16384//nload}\ns_add_u32 s17, s17, s85\nv_lshlrev_b32 v5, 4, v2")
    e(f"s_add_u32 s44, s44, {FB}")
    e(f"s_add_u32 s46, s42, {QOFF[0]}")
    e("s_mov_b32 s30, 32768\ns_mov_b32 s31, 0x20000\ns_mov_b32 s22, 131072\ns_mov_b32 s23, 0x20000\ns_mov_b32 s26, 131072\ns_mov_b32 s27, 0x20000")
    if lin: e("s_sub_u32 s22, s22, s85\ns_sub_u32 s26, s26, s85")
    if lin==2: e("s_mov_b32 s23, 0x800000\ns_mov_b32 s27, 0x800000")
    e(f"s_movk_i32 s40, {nload*784}\ns_movk_i32 s41, {nload*832}")
    e("s_waitcnt lgkmcnt(0)")
    ldiag = diag if isinstance(diag,str) and diag.startswith('l') else None
    lst=[0]
    def lstamp(name):
        if ldiag==name: e("s_memrealtime s[60:61]")
        if stamps:
            i=lst[0]; lst[0]+=1; e(f"s_memtime s[{50+2*i}:{51+2*i}]")
    lstamp('l0')
    e("s_add_u32 s28, s4, s18\ns_addc_u32 s29, s5, 0")
    NI=16//nload
    def kq_stage(srd,m0base,soff):
        e(f"s_mov_b32 m0, {m0base}")
        for g in range(NI):
            if g==0: e("s_nop 0")
            e(f"buffer_load_dwordx4 v6, {srd}, {soff} offen offset:{g*nload*256} {ldflags} lds")
            if g<NI-1: e("s_add_u32 m0, m0, s40\ns_nop 0")
    def v_stage():
        e("s_add_u32 m0, s46, s43")
        per=4//nload
        for t in range(4):
            for rr in range(per):
                if t==0 and rr==0: e("s_nop 0")
                e(f"buffer_load_dwordx4 v7, s[24:27], s15 offen offset:{rr*nload*256} {ldflags} lds")
                if rr<per-1: e("s_add_u32 m0, m0, s41\ns_nop 0")
            if t<3: e(f"s_add_u32 m0, m0, {4352-(per-1)*nload*832}\ns_add_u32 s15, s15, 4096")
    if lin:
        _kq=kq_stage
        vo = "v5" if lin==1 else "off"; of = "offen " if lin==1 else ""
        def lin_stage(srd,soff,step):
            cur=soff
            for g in range(NI):
                if g==0: e("s_nop 0")
                e(f"buffer_load_dwordx4 {vo}, {srd}, {cur} {of}offset:{(g%4)*1024} {ldflags} lds")
                if g<NI-1:
                    if g%4==3:
                        e(f"s_add_u32 m0, m0, {4096+step}\ns_add_u32 s86, {cur}, 4096"); cur="s86"
                    else: e(f"s_add_u32 m0, m0, {step}\ns_nop 0")
        def kq_stage(srd,m0base,soff):
            if srd=="s[28:31]": return _kq(srd,m0base,soff)
            e(f"s_add_u32 m0, {m0base}, s84"); lin_stage(srd,soff,16)
        def v_stage():
            e("s_add_u32 m0, s46, s43"); lin_stage("s[24:27]","s15",64)
    def lflag(soff): e(f"s_mov_b32 m0, s44\ns_nop 0\nbuffer_load_dword v{vSG}, s[36:39], {soff} offen lds" if lin<2 else f"s_mov_b32 m0, s44\ns_nop 0\nbuffer_load_dword off, s[36:39], {soff} lds")
    if ini:
        e("s_add_u32 s20, s6, s17\ns_addc_u32 s21, s7, 0\ns_add_u32 s24, s8, s17\ns_addc_u32 s25, s9, 0")
        e(f"s_add_u32 s43, s43, {KSL}")
        cnts=[]; barred=False
        if q4: e("v_lshl_add_u32 v7, v3, 11, v4")
        for n,stg in enumerate(ini):
            k,j=stg[0],int(stg[1])
            c=3 if k=='W' else NI+1
            lim=(NI+1)*depth
            if sum(cnts)+c>lim:
                if not barred: e("s_barrier"); barred=True
                keep=0
                for x in reversed(cnts):
                    if keep+x+c<=lim: keep+=x
                    else: break
                e(f"s_waitcnt vmcnt({keep})")
            if k=='Q':
                e(f"s_add_u32 s47, s42, {QOFF[j]}\ns_mov_b32 s45, {j*16384}"); kq_stage("s[28:31]","s47","s45")
            elif k=='W':
                e(f"s_add_u32 m0, s42, {QOFF[j//2]+(j%2)*8320}\ns_mov_b32 s45, {j*8192}")
                e(f"buffer_load_dwordx4 v7, s[28:31], s45 offen {ldflags} lds\ns_add_u32 m0, m0, s40\ns_nop 0")
                e(f"buffer_load_dwordx4 v7, s[28:31], s45 offen offset:1024 {ldflags} lds")
            elif k=='K':
                e(f"s_add_u32 s47, s42, {KOFF(j)}\ns_mov_b32 s45, {j*16384}"); kq_stage("s[20:23]","s47","s45")
            else:
                e(f"s_mov_b32 s46, {VOFF(j)-KSL}\ns_mov_b32 s15, {j*16384}"); v_stage()
            lflag(str(4*(n+1))); cnts.append(c)
            if n==0: lstamp('l1')
        assert barred
    elif not stag:
        kq_stage("s[28:31]","s46","0")
        if not qbar: lflag("4")
        lstamp('l1')
        if wstag>=1: e("s_bitcmp1_b32 s2, 4\ns_cbranch_scc0 L_ws1\ns_waitcnt vmcnt(0)\nL_ws1:")
        e(f"s_add_u32 s46, s42, {QOFF[1]}\ns_movk_i32 s45, 16384")
        kq_stage("s[28:31]","s46","s45")
        if not qbar: lflag("8")
        if wstag>=2: e("s_bitcmp1_b32 s2, 4\ns_cbranch_scc0 L_ws2\ns_waitcnt vmcnt(0)\nL_ws2:")
        e("s_add_u32 s20, s6, s17\ns_addc_u32 s21, s7, 0")
        if lin==2: e("s_or_b32 s21, s21, 0x100000")
        kq_stage("s[20:23]","s42","0"); lflag("12")
    else:
        e("s_add_u32 s20, s6, s17\ns_addc_u32 s21, s7, 0")
        kq_stage("s[28:31]","s46","0")
        lstamp('l1')
        kq_stage("s[20:23]","s42","0"); lflag("8")
        e(f"s_add_u32 s47, s42, {SS}\ns_movk_i32 s45, 16384")
        kq_stage("s[20:23]","s47","s45"); lflag("12")
    lstamp('l2')
    e("s_add_u32 s24, s8, s17\ns_addc_u32 s25, s9, 0")
    if lin==2: e("s_or_b32 s25, s25, 0x100000")
    e(f"v_and_b32 v3, 3, v2\nv_lshlrev_b32 v3, 8, v3\nv_lshl_add_u32 v{vFA}, v2, 2, v3\nv_add_u32 v{vFA}, {FB+256*(nload+scout)}, v{vFA}")
    i0=(len(ini)-voff-1)//2 if ini else 1
    if ini: e(f"s_mov_b32 s46, {(i0%4)*SS}\ns_mov_b32 s49, {8*i0+8+4*voff}\ns_mov_b32 s45, {i0*16384}")
    else: e(f"s_mov_b32 s46, {SS}\ns_mov_b32 s49, 16\ns_add_u32 s43, s43, {KSL}")
    def need_for(i):
        if i<4: return 0
        req=6 if i in (4,8) else 2*(i-4)+4
        return min(2*it+4 for it in sig_iters if 2*it+4>=req)
    packed=0
    seen=0
    for i in range(1,9):
        n=need_for(i)
        if n>seen: packed|=n<<(4*(i-1)); seen=n
    packed>>=4*(i0-1)
    e(f"s_mov_b32 s48, {packed:#x}")
    if ini: pass
    elif ebar: pass
    elif not qbar: e("s_barrier")
    else:
        assert not stag
        e(f"s_add_u32 s47, s46, s42\ns_waitcnt vmcnt({2*NI+1})")
        if wstag>=3: e("s_bitcmp1_b32 s2, 4\ns_cbranch_scc0 L_ws3\ns_waitcnt vmcnt(0)\nL_ws3:")
        kq_stage("s[20:23]","s47","s45"); lflag("16")
        e(f"s_lshr_b32 s48, s48, 4\ns_mov_b32 s15, 0\ns_mov_b32 s49, 20\ns_waitcnt vmcnt({2*NI+2})\ns_barrier\ns_branch L_lv")
    if d0<depth: e(f"s_waitcnt vmcnt({(NI+1)*(d0-1)})")
    W=(NI+1)*(depth-1)
    if stag:
        e(f"s_add_u32 s47, s42, {QOFF[1]}\ns_waitcnt vmcnt({W})")
        kq_stage("s[28:31]","s47","s45"); lflag("16")
        e("s_lshr_b32 s48, s48, 4\ns_mov_b32 s15, 0\ns_mov_b32 s49, 20\ns_branch L_lv")
    e("L_lloop:")
    if not nomem:
        e("s_and_b32 s14, s48, 15\ns_cbranch_scc0 L_lgo")
        if bar: e("s_barrier\nL_lgo:")
        else: e(f"s_branch L_lx\nL_lw:\ns_sleep {lsleep}\nL_lx:\nds_read_b32 v8, v{vFA}\ns_waitcnt lgkmcnt(0)\nv_cmp_gt_u32 vcc, s14, v8\ns_cbranch_vccnz L_lw\nL_lgo:")
    e("s_lshr_b32 s48, s48, 4\ns_sub_u32 s15, s45, 16384")
    e(f"s_cmp_eq_u32 s49, {72+4*voff}\ns_cselect_b32 s46, {XB-KSL}, s46\ns_cbranch_scc1 L_lv")
    e("s_add_u32 s47, s46, s42")
    e(f"s_waitcnt vmcnt({W})")
    kq_stage("s[20:23]","s47","s45"); lflag("s49")
    e("s_add_u32 s49, s49, 4")
    e("L_lv:")
    e(f"s_waitcnt vmcnt({W})")
    v_stage(); lflag("s49")
    e(f"s_add_u32 s49, s49, 4\ns_add_u32 s45, s45, 16384\ns_add_u32 s46, s46, {SS}\ns_cmp_eq_u32 s46, {4*SS}\ns_cselect_b32 s46, 0, s46")
    e(f"s_cmp_lt_u32 s49, {76+4*voff}\ns_cbranch_scc1 L_lloop")
    lstamp('l3')
    e("s_waitcnt vmcnt(0)")
    lstamp('l4')
    if stamps:
        e("s_memrealtime s[94:95]\ns_waitcnt lgkmcnt(0)")
        e("s_mov_b32 s36, s12\ns_mov_b32 s37, s13\ns_mov_b32 s38, 0x1000000\ns_mov_b32 s39, 0x20000")
        e("s_cmp_lg_u32 s16, 0\ns_cbranch_scc1 L_end")
        e("s_lshl_b32 s45, s2, 8\ns_add_u32 s45, s45, 65536\nv_mov_b32 v7, s45")
        for i,r in enumerate([96,98]+[50+2*min(i,lst[0]-1) for i in range(scnt[0]+1)]+[94]):
            e(f"v_mov_b32 v8, s{r}\nbuffer_store_dword v8, v7, s[36:39], 0 offen offset:{4*i}\ns_nop 1")
    if ldiag:
        e(f"s_memrealtime s[62:63]\ns_waitcnt lgkmcnt(0)\ns_sub_u32 s67, s60, s96\ns_mul_i32 s67, s67, {dk}\ns_add_u32 s67, s67, 500\ns_min_u32 s67, s67, 100000\nL_lspin:\ns_memrealtime s[64:65]\ns_waitcnt lgkmcnt(0)\ns_sub_u32 s66, s64, s62\ns_cmp_lt_u32 s66, s67\ns_cbranch_scc1 L_lspin")
    e("L_end:\ns_endpgm")
    e(".p2align 7\nL_table:\n"+"\n".join(f".long {i}" for i in range(32)))
    e("L_consumer:")
    if cprio: e(f"s_setprio {cprio}")
    if scout:
        e(f"s_cmp_ge_u32 s16, {nload+scout}\ns_cbranch_scc1 L_cons2")
        if not ebar: e("s_waitcnt lgkmcnt(0)\ns_barrier")
        e("s_mov_b64 exec, 0\ns_mov_b64 vcc, 0")
        if vsk: e("s_setvskip -1, 0")
        e("s_nop 3")
        for k in range(1,scout): e(f"s_cmp_eq_u32 s16, {nload+k}\ns_cbranch_scc1 L_sq{k}")
        e("s_branch L_main\nL_sdone:")
        if vsk: e("s_setvskip 0, 0")
        e("s_endpgm\nL_cons2:")
    e(f"s_sub_u32 s16, s16, {nload+scout}")
    e(f"v_and_b32 v3, {nload-1}, v2\nv_lshlrev_b32 v3, 8, v3\nv_lshl_add_u32 v{vFA}, v2, 2, v3")
    if codepf:
        e("s_getpc_b64 s[36:37]\nL_pc2:\ns_add_u32 s36, s36, L_main-L_pc2\ns_addc_u32 s37, s37, 0\ns_mov_b32 s38, L_slow-L_main\ns_mov_b32 s39, 0x20000")
        e("s_lshr_b32 s45, s2, 3\ns_lshl_b32 s45, s45, 2\ns_add_u32 s45, s45, s16\ns_lshl_b32 s45, s45, 7\nv_mov_b32 v9, 0\nbuffer_load_dword v31, v9, s[36:39], s45 offen")
    if hop:
        e("s_mov_b64 exec, 0\ns_cmp_eq_u32 s16, 0\ns_cbranch_scc1 L_hop0\ns_cmp_eq_u32 s16, 1\ns_cbranch_scc1 L_hop1\ns_cmp_eq_u32 s16, 2\ns_cbranch_scc1 L_hop2\ns_branch L_hop3\nL_hopdone:\ns_mov_b64 exec, -1")
    e(f"v_add_u32 v{vFA}, {FB}, v{vFA}")
    e("v_lshrrev_b32 v4, 5, v2\nv_and_b32 v5, 15, v2\nv_bfe_u32 v6, v2, 4, 1")
    e(f"v_mul_u32_u24 v{vKA[0]}, 1040, v5\nv_lshl_add_u32 v{vKA[0]}, v6, 8, v{vKA[0]}\nv_lshl_add_u32 v{vKA[0]}, v4, 4, v{vKA[0]}\nv_add_u32 v{vKA[1]}, {2*SS}, v{vKA[0]}")
    e("v_lshrrev_b32 v7, 2, v5\nv_and_b32 v8, 3, v5")
    e("v_lshlrev_b32 v3, 8, v4\nv_lshl_add_u32 v3, v6, 5, v3\nv_lshl_add_u32 v3, v8, 3, v3")
    if lin: e("v_mul_u32_u24 v3, 4352, v4\nv_lshl_add_u32 v3, v6, 5, v3\nv_lshl_add_u32 v3, v8, 3, v3")
    e(f"v_mul_u32_u24 v{vT2}, 1088, v7\nv_add_u32 v{vT2}, v{vT2}, v3")
    e(f"v_add_u32 v{vVA[0]}, {KSL}, v{vT2}\nv_add_u32 v{vVA[1]}, {KSL+2*SS}, v{vT2}\nv_add_u32 v{vVA[2]}, {XB}, v{vT2}")
    e(f"s_mul_i32 s47, s16, {STG}\ns_add_u32 s47, s47, {SB}")
    e(f"v_lshlrev_b32 v{vT2}, 10, v4\nv_lshl_add_u32 v{vT2}, v7, 8, v{vT2}\nv_lshl_add_u32 v{vT2}, v6, 5, v{vT2}\nv_lshl_add_u32 v{vT2}, v8, 3, v{vT2}\nv_add_u32 v{vT2}, s47, v{vT2}")
    e(f"v_and_b32 v3, 31, v2\nv_lshlrev_b32 v{vGK}, 8, v3\nv_lshl_add_u32 v{vGK}, v4, 4, v{vGK}")
    e(f"v_lshlrev_b32 v{vGV}, 4, v2")
    e(f"s_lshl_b32 s45, s16, 13\nv_bfe_u32 v3, v2, 2, 3\nv_lshlrev_b32 v{vOA}, 10, v3\nv_lshl_add_u32 v{vOA}, v4, 8, v{vOA}\nv_lshl_add_u32 v{vOA}, v8, 4, v{vOA}\nv_add_u32 v{vOA}, s45, v{vOA}")
    e(f"s_mov_b32 {sC}, {f2u(C_SCALE):#x}\ns_mov_b32 {sTHR}, {f2u(lthr):#x}")
    e("s_mov_b32 s76, 0x55555555\ns_mov_b32 s77, s76\ns_not_b64 s[78:79], s[76:77]\ns_mov_b32 s80, 0x33333333\ns_mov_b32 s81, s80\ns_not_b64 s[82:83], s[80:81]")
    e(f"s_lshr_b32 s46, s16, 1\ns_mov_b32 s45, {QOFF[0]}\ns_cmp_eq_u32 s46, 0\ns_cselect_b32 s45, s45, {QOFF[1]}\ns_and_b32 s19, s16, 1\ns_lshl_b32 s19, s19, 9\ns_add_u32 s45, s45, s19\ns_add_u32 s46, s46, 1")
    if stag: e("s_lshl_b32 s46, s46, 1")
    if ini and not q4: e(f"s_cmp_eq_u32 s46, 1\ns_cselect_b32 s46, {ini.index('Q0')+1}, {ini.index('Q1')+1}")
    e(f"v_add_u32 v{vT1}, s45, v{vKA[0]}")
    if q4:
        pk=sum((ini.index(f"W{w}")+1)<<(8*w) for w in range(4))
        e(f"s_lshl_b32 s46, s16, 3\ns_lshr_b32 s46, {pk:#x}, s46\ns_and_b32 s46, s46, 255")
        e(f"s_sub_u32 s45, s45, s19\ns_and_b32 s19, s16, 1\ns_mul_i32 s19, s19, 8320\ns_add_u32 s45, s45, s19")
        e(f"v_and_b32 v3, 7, v2\nv_mul_u32_u24 v{vT1}, 1040, v3\nv_bfe_u32 v3, v2, 3, 2\nv_lshl_add_u32 v{vT1}, v3, 8, v{vT1}\nv_lshl_add_u32 v{vT1}, v4, 4, v{vT1}\nv_add_u32 v{vT1}, s45, v{vT1}")
    if dryt:
        for r in range(vFR,vFR+4*NFR): e(f"v_mov_b32 v{r}, 0")
        e(f"v_mov_b32 v9, v{vT1}")
        e("s_mov_b64 exec, 0\ns_cmp_eq_u32 s16, 0\ns_cbranch_scc1 L_dq0\ns_cmp_eq_u32 s16, 1\ns_cbranch_scc1 L_dq1\ns_cmp_eq_u32 s16, 2\ns_cbranch_scc1 L_dq2\ns_branch L_dq3\nL_drydone:\ns_mov_b64 exec, -1")
        e(f"v_mov_b32 v{vT1}, v9")
        if stamps: e("s_memtime s[72:73]")
    e("s_waitcnt lgkmcnt(0)")
    e("s_add_u32 s32, s10, s18\ns_addc_u32 s33, s11, 0\ns_mov_b32 s34, 32768\ns_mov_b32 s35, 0x20000")
    e("s_add_u32 s20, s6, s17\ns_addc_u32 s21, s7, 0\ns_mov_b32 s22, 131072\ns_mov_b32 s23, 0x20000")
    e("s_add_u32 s24, s8, s17\ns_addc_u32 s25, s9, 0\ns_mov_b32 s26, 131072\ns_mov_b32 s27, 0x20000")
    if not ebar: e("s_barrier")
    if stamps: e("s_mov_b32 s74, 0\ns_mov_b32 s75, 0")
    e("s_branch L_main")
    e(text(rare))
    e(".p2align 3\nL_main:")
    e(text(prog))
    if stamps:
        ns=scnt[0]
        e("s_waitcnt vmcnt(0)")
        e(f"s_memtime s[{50+2*ns}:{51+2*ns}]\ns_memrealtime s[{52+2*ns}:{53+2*ns}]\ns_waitcnt lgkmcnt(0)")
        e("s_mov_b32 s36, s12\ns_mov_b32 s37, s13\ns_mov_b32 s38, 0x1000000\ns_mov_b32 s39, 0x20000")
        e("s_cmp_lg_u32 s16, 3\ns_cbranch_scc1 L_end2")
        e("s_lshl_b32 s45, s2, 8\nv_mov_b32 v7, s45")
        regs=[96,98]+[50+2*i for i in range(ns+2)]
        assert regs[-1]<74
        regs+=[74,75]
        if dryt: regs[2]=72
        for i,r in enumerate(regs):
            e(f"v_mov_b32 v8, s{r}\nbuffer_store_dword v8, v7, s[36:39], 0 offen offset:{4*i}\ns_nop 1")
        sys.stderr.write(f"nstamps={len(regs)}\n")
        e("L_end2:")
    if diag is not None and not ldiag:
        e("s_waitcnt vmcnt(0)")
        if diag=='end': e("s_memrealtime s[60:61]")
        e(f"s_memrealtime s[62:63]\ns_waitcnt lgkmcnt(0)\ns_sub_u32 s67, s60, s96\ns_mul_i32 s67, s67, {dk}\ns_min_u32 s67, s67, 100000\nL_spin:\ns_memrealtime s[64:65]\ns_waitcnt lgkmcnt(0)\ns_sub_u32 s66, s64, s62\ns_cmp_lt_u32 s66, s67\ns_cbranch_scc1 L_spin")
    e("s_endpgm")
    e(text(S))
    e(f'.section .rodata,"a"\n.p2align 6\n.amdhsa_kernel {KN}')
    e(f"  .amdhsa_next_free_vgpr 256\n  .amdhsa_next_free_sgpr 102\n  .amdhsa_accum_offset 256\n  .amdhsa_group_segment_fixed_size 0\n  .amdhsa_kernarg_size 48\n  .amdhsa_user_sgpr_count 2\n  .amdhsa_user_sgpr_kernarg_segment_ptr 1\n  .amdhsa_system_sgpr_workgroup_id_x 1\n.end_amdhsa_kernel")
    return "\n".join(H)+"\n"

if __name__=="__main__":
    name=sys.argv[1]; kw={}
    for a in sys.argv[2:]:
        k,v=a.split("=",1)
        try: v=int(v)
        except:
            try: v=float(v)
            except: pass
        kw[k]=v
    open(name,"w").write(gen(**kw))
```

```python
import sys, math, struct
from asmlib import *

KN="standalone__gqa_softmax__near_ridge_kernel"
C_SCALE = math.log2(math.e)/math.sqrt(128.0)
def f2u(x): return struct.unpack("<I",struct.pack("<f",x))[0]

KSL=16640; VSL=17408; SS=KSL+VSL
XB=4*SS; FB=XB+VSL; SB=FB+2048; STG=2048
assert SB+4*STG<=163840
def KOFF(j): return (j%4)*SS
def VOFF(j): return XB if j==7 else ((j+1)%4)*SS+KSL
QOFF=[VOFF(3),XB]

def pkmul(d,a,b):
    return I(f"v_pk_mul_f32 {vr(d,2)}, {vr(a,2)}, {vr(b,2)}",'valu',rd=R(a,2)+R(b,2),wr=R(d,2),cost=6)
def cnd_dpp(d,s0,s1,qp):
    return I(f"v_cndmask_b32_dpp v{d}, v{s0}, v{s1}, vcc quad_perm:{qp} row_mask:0xf bank_mask:0xf",'dpp',rd=[s0,s1],wr=[d])

def gen(depth=3, ldflags="nt", stflags="nt", stamps=0, pf=6, G=2, lthr=2.0**24, budget=24, fl=4, lprio=0, cprio=0,
        verbose=0, diag=None, dk=1, nomem=0, lds=163840, xmap=0, NFR=8, lsleep=4,
        cinit=1, forceslow=0, HZ=2, d0=3, tailb=40, order=1, stc=24, sigs="1,3", bar=0, hop=0, codepf=1, stset='q,K0,K1,K3,K5,K7,V7,e0,e3,st', nosig=0, pair=1, nload=4, stag=0, head=0, late=0, slow=0, lin=0, qsleep=0, pk2=0, osleep=0, qbar=0, dryt=0, init='', wstag=0, scout=0, vsk=1, swait=1, ebar=0, rt=0, slo0=0, slo1=256, wv=-1):
    vKA=[10,11]; vVA=[12,13,30]
    vFA,vSA=14,15
    vNM,vLa,vLb,vMX,vT1,vOA=16,17,18,19,20,21
    vRL=22
    vF=[24,25]; vSG=26; vGK=27; vGV=28; vT2=29
    vQ=32; vFR=64
    vNB=vFR+4*NFR
    vS=[vNB+16+16*i for i in range(3)]
    vP=[vS[2]+16+8*i for i in range(4)]
    vO=vP[3]+8
    assert vO+64<=256
    sC="s40"; sTHR="s41"
    sEV,sOD,sLO,sHI="s[76:77]","s[78:79]","s[80:81]","s[82:83]"
    LK=(lambda j: 3 if j==0 else 2*j+2) if not stag else (lambda j: {0:1,1:3}.get(j,2*j+2))
    LV=lambda j: 2*j+5 if j<7 else 18
    ini=init.split(',') if init else []
    q4=False; voff=0
    if ini:
        assert not stag and not qbar
        q4='W0' in ini; voff=2 if q4 else 0
        assert (len(ini)-voff) in (5,7,9)
        _LK,_LV=LK,LV
        LK=lambda j: ini.index(f"K{j}")+1 if f"K{j}" in ini else _LK(j)+voff
        LV=lambda j: ini.index(f"V{j}")+1 if f"V{j}" in ini else _LV(j)+voff
    sig_iters=[int(x) for x in str(sigs).split(",")]
    rare=[]; scnt=[0]
    def stamp(name):
        o=[]
        if diag==name: o.append(raw("s_memrealtime s[60:61]"))
        if stamps and name in stset.split(','):
            i=scnt[0]; scnt[0]+=1; o.append(raw(f"s_memtime s[{50+2*i}:{51+2*i}]"))
            if rt: i=scnt[0]; scnt[0]+=1; o.append(raw(f"s_memrealtime s[{50+2*i}:{51+2*i}]"))
        return o
    cn=[0]
    def flag_read():
        r=vF[cn[0]%2]; return I(f"ds_read_b32 v{r}, v{vFA}",'dsr',rd=[vFA],wr=[r])
    def flag_check(val,name):
        r=vF[cn[0]%2]; cn[0]+=1
        if nomem: return stamp(name)
        if stamps: rare.extend([label(f"L_spin{name}"), raw(f"s_bitset1_b32 s75, {cn[0]-1}"), raw("s_add_u32 s74, s74, 1")])
        rare.extend(([] if stamps else [label(f"L_spin{name}")])+([raw(f"s_sleep {qsleep}")] if (qsleep and name=='q') else [])+([raw(f"s_sleep {osleep}")] if (osleep and name!='q') else [])+[ raw(f"ds_read_b32 v{r}, v{vFA}"), raw("s_waitcnt lgkmcnt(0)"),
                     raw(f"v_cmp_gt_u32 vcc, {val}, v{r}"), raw(f"s_cbranch_vccnz L_spin{name}"), raw(f"s_branch L_back{name}")])
        return [I(f"v_cmp_gt_u32 vcc, {val}, v{r}\n    s_cbranch_vccnz L_spin{name}\nL_back{name}:",'valu',rd=[r],sw=['vcc'],cost=8,tag='vcc')]+stamp(name)
    def signal(val): return [] if nosig else [valu("v_mov_b32",vSG,str(val)), I(f"ds_write_b32 v{vSA}, v{vSG}",'dsw',rd=[vSA,vSG])]

    M=[]
    def PL(h): return vS[h%3] if (order in (7,8) and h>=14) else vP[h%4]
    def addr(base,off):
        ss=off//SS; return (base[ss//2], off-(ss//2)*2*SS)
    def add_qk(h):
        j,u=divmod(h,2); d=vS[h%3]
        for s in range(8):
            f=vFR+4*(len(M)%NFR)
            c0=vNB if (cinit and h>=2) else "0"
            a,o=addr(vKA,KOFF(j)+u*512+s*32)
            M.append(dict(mfma=mfma32(d,f,vQ+4*s,c0 if s==0 else d),reads=[dsr128(f,a,o)],st=('K',j),id=('K',h,s)))
    def add_pv(h,dts,first=False):
        j,u=divmod(h,2)
        for tl in range(2):
            for dt in dts:
                one_pv(h,tl,dt)
    def one_pv(h,tl,dt):
        j,u=divmod(h,2); t=2*u+tl
        f=vFR+4*(len(M)%NFR)
        rds=[]
        for x in range(2):
            io=(t*4352+x*512+64*dt) if not lin else (x*8704+t*256+64*dt)
            a,o=addr(vVA,VOFF(j)-KSL+io) if j<7 else (vVA[2],io); rds.append(dsrtr(f+2*x,a,o))
        c="0" if (h==0 and tl==0) else vO+16*dt
        M.append(dict(mfma=mfma32(vO+16*dt,f,PL(h)+4*tl,c),reads=rds,st=('V',j),id=('V',h,tl,dt)))
    add_qk(0); add_qk(1)
    if head:
        add_qk(2); add_qk(3); add_pv(0,range(4)); add_pv(1,range(4))
    for i in range(2 if head else 1,7):
        dd=range(4)
        if i==6 and order==7: dd=(0,1)
        if i==6 and order==8: dd=(0,1,2)
        add_qk(2*i); add_pv(2*i-2,dd); add_qk(2*i+1); add_pv(2*i-1,dd)
    def pvt(j,dt):
        for h in (2*j,2*j+1):
            for tl in range(2): one_pv(h,tl,dt)
    if order==1:
        add_qk(14); add_qk(15)
        pvt(6,3); pvt(6,2); pvt(6,0); pvt(7,0); pvt(6,1); pvt(7,1); pvt(7,2); pvt(7,3)
    elif order==2:
        add_qk(14); add_pv(12,(3,2)); add_qk(15); add_pv(13,(3,2))
        pvt(6,0); pvt(6,1); pvt(7,0); pvt(7,1); pvt(7,2); pvt(7,3)
    elif order==3:
        add_qk(14); add_qk(15)
        pvt(6,3); pvt(6,0); pvt(6,2); pvt(7,0); pvt(6,1); pvt(7,1); pvt(7,2); pvt(7,3)
    elif order==4:
        add_qk(14); add_qk(15)
        pvt(6,0); pvt(6,1); pvt(7,0); pvt(7,1); pvt(6,2); pvt(7,2); pvt(6,3); pvt(7,3)
    elif order==5:
        add_qk(14); add_qk(15)
        pvt(6,0); pvt(6,1); pvt(6,2); add_pv(14,(0,1)); add_pv(15,(0,1)); pvt(7,2); pvt(6,3); pvt(7,3)
    elif order==7:
        add_qk(14); add_qk(15)
        pvt(6,0); pvt(6,1); pvt(7,0); pvt(7,1); pvt(5,2); pvt(6,2); pvt(7,2); pvt(5,3); pvt(6,3); pvt(7,3)
    elif order==8:
        add_qk(14); add_qk(15)
        pvt(6,0); pvt(6,1); pvt(7,0); pvt(7,1); pvt(6,2); pvt(7,2); pvt(5,3); pvt(6,3); pvt(7,3)
    elif order==9:
        add_qk(14); add_pv(12,(0,)); add_qk(15); add_pv(13,(0,))
        pvt(6,1); add_pv(14,(0,)); add_pv(12,(2,)); add_pv(15,(0,)); pvt(7,1); add_pv(13,(2,)); pvt(7,2); pvt(6,3); pvt(7,3)
    NM=len(M); assert NM==256
    pos={m['id']:i for i,m in enumerate(M)}
    first_use={}; last_use={}
    for i,m in enumerate(M):
        first_use.setdefault(m['st'],i); last_use[m['st']]=i
    for st,i in first_use.items(): M[i]['need']=(LK(st[1]) if st[0]=='K' else LV(st[1]), f"{st[0]}{st[1]}")
    if stag: del M[0]['need']
    for it in sig_iters:
        i0=max(last_use[('K',it)],last_use[('V',it-1)])
        if bar: M[i0+pf+1]['bar']=1
        else: M[i0]['sig']=2*it+4
    F=[]
    def addF(lst,avail,due):
        for x in lst: F.append([x,avail,due])
    def crosshalf(o,reg,tmp,op):
        o.append(valu("v_mov_b32",tmp,reg)); o.append(perm32(reg,tmp)); o.append(valu(op,reg,reg,tmp))
    def max_blk(src,dst,first):
        o=[valu("v_max3_f32",dst,src,src+1,src+2) if first else valu("v_max3_f32",dst,dst,src,src+1)]
        k=3 if first else 2
        while k+1<16: o.append(valu("v_max3_f32",dst,dst,src+k,src+k+1)); k+=2
        if k<16: o.append(valu("v_max_f32",dst,dst,src+k))
        return o
    def exp_blk(src,dstp,pre):
        seq=[]; n=16
        for i in range(n+3):
            if i<n and pre=='fma': seq.append(valu("v_fma_f32",src+i,src+i,sC,vNM))
            if i<n and pre=='add': seq.append(valu("v_add_f32",src+i,src+i,vNM))
            if 0<=i-1<n: seq.append(trans("v_exp_f32",src+i-1,src+i-1))
            if 0<=i-2<n:
                l=vLa if (i-2)%2==0 else vLb; seq.append(valu("v_add_f32",l,l,src+i-2))
            if i-3>=0 and (i-3)%2==1:
                k=(i-3)//2; seq.append(valu("v_cvt_pk_bf16_f32",dstp+k,src+2*k,src+2*k+1))
        return seq
    st=max_blk(vS[0],vMX,True); crosshalf(st,vMX,vT1,"v_max_f32")
    if cinit:
        st.append(valu("v_sub_f32",vNM,"0",vMX)); st+=[valu("v_sub_f32",vNB+i,"0",vMX) for i in range(16)]
        addF(st,8+HZ,16)
    else:
        st+=[valu("v_mul_f32",vNM,sC,vMX),valu("v_sub_f32",vNM,"0",vNM)]; addF(st,8+HZ,24)
    for h in range(16):
        pre=('add' if h<2 else None) if cinit else 'fma'
        av=pos[('K',h,7)]+1+HZ
        dueS=pos[('K',h+3,0)] if h+3<16 else NM
        for x in exp_blk(vS[h%3],PL(h),pre):
            a=av; d=dueS
            if x.text.startswith("v_cvt"):
                k=list(x.wr)[0]-PL(h); tl=k//4
                d=min(d,min(pos[('V',h,tl,dt)] for dt in range(4)))
                if h>=4 and PL(h)==PL(h-4): a=max(a,max(pos[('V',h-4,tl,dt)] for dt in range(4))+1)
            F.append([x,a,d])
    fin=[valu("v_add_f32",vLa,vLa,vLb)]; crosshalf(fin,vLa,vT1,"v_add_f32")
    fin.append(trans("v_rcp_f32",vRL,vLa))
    br="" if nomem else ("\n    s_cbranch_vccnz L_slow" if not forceslow else "\n    s_branch L_slow")
    fin.append(I(f"v_cmp_nge_f32 vcc, {sTHR}, v{vLa}"+br,'valu',rd=[vLa],sw=['vcc'],sr=[sTHR],cost=8))
    fin.append(valu("v_mov_b32",vRL+1,vRL))
    addF(fin,0,NM)
    def setvcc(s): return I(f"s_mov_b64 vcc, {s}",'salu')
    def epi(dt,pk=False,tmp=None):
        o=vO+16*dt; r=[]
        r+=[pkmul(o+2*k,o+2*k,vRL) for k in range(8)] if pk else [valu("v_mul_f32",o+k,o+k,vRL) for k in range(16)]
        r+=[valu("v_cvt_pk_bf16_f32",o+k,o+2*k,o+2*k+1) for k in range(8)]
        W=lambda k,e:o+2*k+e; X=lambda k,e:o+8+2*k+e
        g=[]
        g.append([setvcc(sEV)]+[cnd_dpp(X(k,e),W(k+1,e),W(k,e),"[1,0,3,2]") for k in (0,2) for e in range(2)])
        g.append([setvcc(sOD)]+[cnd_dpp(X(k+1,e),W(k,e),W(k+1,e),"[1,0,3,2]") for k in (0,2) for e in range(2)])
        g.append([setvcc(sLO)]+[cnd_dpp(W(k,e),X(k+2,e),X(k,e),"[2,3,0,1]") for k in (0,1) for e in range(2)])
        g.append([setvcc(sHI)]+[cnd_dpp(W(k+2,e),X(k,e),X(k+2,e),"[2,3,0,1]") for k in (0,1) for e in range(2)])
        for x in g: r+=x
        for j in range(2): r+=[perm32(o+4*j,o+4*j+2),perm32(o+4*j+1,o+4*j+3)]
        sts=[I(f"buffer_store_dwordx4 {vr(o+4*j,4)}, v{vOA}, s[32:35], 0 offen offset:{512*j+64*dt} {stflags}".rstrip(),'st4',rd=[vOA]+R(o+4*j,4),cost=stc) for j in range(2)]
        return r,sts
    lastdt={dt:max(i for i,m in enumerate(M) if m['id'][0]=='V' and m['id'][3]==dt) for dt in range(4)}
    dorder=sorted(range(4),key=lambda d:lastdt[d])
    held=[]
    for n,dt in enumerate(dorder[:3]):
        r,sts=epi(dt,pk=(pk2 and n==2))
        if pair:
            if n%2==0: held=sts; sts=[]
            else:
                assert dt//2==dorder[n-1]//2
                sts=[held[0],sts[0],held[1],sts[1]]; held=[]
        for x in sts[1:]: x.cost=0
        addF((stamp('e0') if dt==dorder[0] else [])+r+sts,(lastdt[dt]+1+HZ) if not (pk2 and n==2) else NM+5,NM+1)
    lastflag=max(i for i,m in enumerate(M) if 'need' in m)-pf
    assert lastflag<lastdt[dorder[0]]
    P=[]
    P+=([flag_read()]+flag_check("s46","q")) if not qbar else stamp('q')
    for s in range(8): P.append(dsr128(vQ+4*s,vT1,32*s))
    P+=[valu("v_mov_b32",vLa,"0"),valu("v_mov_b32",vLb,"0")]
    if cinit:
        P+=[valu("v_mov_b32",vRL,sC),valu("v_mov_b32",vRL+1,sC)]
        t=vS[2]
        for r in range(34):
            if r<32:
                a=t+2*(r%8); P+=[valu("v_lshlrev_b32",a,"16",vQ+r),valu("v_and_b32",a+1,"0xffff0000",vQ+r)]
            if 1<=r<33:
                b=t+2*((r-1)%8); P.append(pkmul(b,b,vRL))
            if r>=2:
                b=t+2*((r-2)%8); P.append(valu("v_cvt_pk_bf16_f32",vQ+r-2,b,b+1))
    fi=0; cost=0
    def issue_reads(i):
        nonlocal cost
        m=M[i]
        if 'need' in m:
            if not m.get('fr'): P.append(flag_read()); cost+=4
            P.extend(flag_check(*m['need'])); cost+=12
        P.extend(m['reads']); cost+=4*len(m['reads'])
        if 'sig' in m: P.extend(signal(m['sig'])); cost+=8
        if 'bar' in m and not nomem: P.append(raw("s_barrier")); cost+=4
    needs=[i for i in range(NM) if 'need' in M[i]]
    lates=[i for i in needs if M[i]['need'][1] in ('K1','V0')] if late else []
    def rg(i):
        g=i-pf
        for b in lates:
            if b<=i: g=max(g,b-late)
        return max(g,-1)
    by_gap={}
    for i in range(NM): by_gap.setdefault(rg(i),[]).append(i)
    fr_gap={}
    for a,b in zip([None]+needs[:-1],needs):
        g=rg(b)-fl
        if a is not None: g=max(g,rg(a))
        if 0<=g<rg(b): fr_gap[g]=b
    for i in by_gap[-1]: issue_reads(i)
    carry=0
    for g in range(NM):
        while fi<len(F) and any(F[k][2]<=g for k in range(fi,min(fi+150,len(F)))):
            assert F[fi][1]<=g+HZ, ("forced before avail",F[fi][0].text,F[fi][1],g)
            P.append(F[fi][0]); fi+=1
        cost=0
        if G>1 and g%G==0:
            ex=set()
            for k in range(1,G):
                if g+k<NM and rg(g+k)<g-1:
                    for r in M[g+k]['reads']: ex|=r.wr
            P.append(I("",'touch',rd=ex,cost=0))
        P.append(M[g]['mfma'])
        if slow and g%4==0 and slo0<=g<slo1: P.append(nop(slow-1))
        if (g+1)%G==0: cost+=4
        for i in by_gap.get(g,[]): issue_reads(i)
        if g in fr_gap:
            P.append(flag_read()); M[fr_gap[g]]['fr']=True; cost+=4
        b=budget if g<pos[('K',15,7)] else tailb
        lim=b+carry
        while fi<len(F) and F[fi][1]<=g+1 and cost+F[fi][0].cost<=lim:
            P.append(F[fi][0]); cost+=F[fi][0].cost; fi+=1
        carry=max(-8,min(4,lim-cost))
    while fi<len(F): P.append(F[fi][0]); fi+=1
    r,sts=epi(dorder[3],pk=True)
    if pair: sts=[held[0],sts[0],held[1],sts[1]]
    P+=stamp('e3')+r+sts+stamp('st')
    prog=insert_lgkm(P); prog=[x for x in prog if x.kind!='touch']
    prog,added=pad_hazards(prog,verbose)
    if dryt:
        mi=[i for i,x in enumerate(prog) if x.kind=='mfma']
        a=mi[dryt]; n=len(prog)-a
        cuts=[a+n*k//4 for k in range(4)]
        out=[]; i=0; q=0
        while i<len(prog):
            x=prog[i]
            if q<4 and i>=cuts[q] and x.kind!='st4':
                if q>0: out.append(raw("s_cbranch_execz L_drydone"))
                out.append(label(f"L_dq{q}")); q+=1
            if x.kind=='st4':
                j=i
                while j+1<len(prog) and prog[j+1].kind=='st4': j+=1
                last = all(y.kind!='st4' and y.kind!='valu' for y in prog[j+1:])
                out.append(raw("s_cbranch_execz L_drydone" if last else f"s_cbranch_execz L_sk{i}")); out+=prog[i:j+1]
                if not last: out.append(label(f"L_sk{i}"))
                i=j+1; continue
            out.append(x); i+=1
        prog=out
    if scout:
        cuts=[len(prog)*k//scout for k in range(1,scout)]
        out=[]; i=0; q=0
        while i<len(prog):
            x=prog[i]
            if q<len(cuts) and i>=cuts[q] and x.kind=='mfma':
                out.append(raw("s_cbranch_execz L_sdone")); out.append(label(f"L_sq{q+1}")); q+=1
            if x.kind=='st4' or x.text=='s_barrier':
                j=i
                while j+1<len(prog) and prog[j+1].kind=='st4': j+=1
                last = all(y.kind not in('st4','valu','dpp') for y in prog[j+1:])
                out.append(raw("s_cbranch_execz L_sdone" if last else f"s_cbranch_execz L_sk{i}")); out+=prog[i:j+1]
                if not last: out.append(label(f"L_sk{i}"))
                i=j+1; continue
            out.append(x); i+=1
        prog=out
    nh=0
    if hop:
        out=[]; cnt=0
        step=len(prog)//hop+1
        nxt=step//2
        pts=[]
        for i,x in enumerate(prog):
            if i>=nxt and x.kind in ('mfma','valu') and nh<hop:
                tgt=f"L_hop{nh+4}" if nh+4<hop else "L_hopdone"
                out.append(label(f"L_hop{nh}")); out.append(raw(f"s_cbranch_execz {tgt}")); nh+=1; nxt+=step
            out.append(x)
        assert nh==hop,(nh,hop)
        prog=out
    k0=[i for i,x in enumerate(prog) if x.kind=='mfma'][0]
    sys.stderr.write(f"consumer: {len(prog)} instrs, nops {added}, est total {est_cycles(prog)} from-first-mfma {est_cycles(prog[k0:])}\n")

    S=[]; sa=vS[0]; kf=vS[1]; sp=vP[0]
    S+=[label("L_slow"), raw("s_waitcnt vmcnt(0) lgkmcnt(0)"), nop(15), nop(15)]
    S+=[valu("v_mov_b32",vMX,"0xff800000"), raw("s_mov_b32 s46, 0"), label("L_s1")]
    def kload():
        return [raw(f"buffer_load_dwordx4 {vr(kf+4*s,4)}, v{vGK}, s[20:23], s46 offen offset:{32*s}") for s in range(8)]+[raw("s_waitcnt vmcnt(0)")]
    S+=kload()+[mfma32(sa,kf+4*s,vQ+4*s,"0" if s==0 else sa) for s in range(8)]+max_blk(sa,vMX,False)
    S+=[raw("s_add_u32 s46, s46, 8192"),raw("s_cmp_lt_u32 s46, 131072"),raw("s_cbranch_scc1 L_s1")]
    crosshalf(S,vMX,vT1,"v_max_f32")
    S+=[valu("v_sub_f32",vNM,"0",vMX)] if cinit else [valu("v_mul_f32",vNM,sC,vMX),valu("v_sub_f32",vNM,"0",vNM)]
    S+=[valu("v_mov_b32",vLa,"0"),valu("v_mov_b32",vLb,"0")]+[valu("v_mov_b32",vO+i,"0") for i in range(64)]
    S+=[raw("s_mov_b32 s46, 0"), label("L_s2")]
    S+=kload()+[mfma32(sa,kf+4*s,vQ+4*s,"0" if s==0 else sa) for s in range(8)]
    S+=exp_blk(sa,sp,'add' if cinit else 'fma')
    for t in range(2):
        for u in range(2):
            S+=[raw("s_mov_b32 m0, s47"),raw(f"s_add_u32 s19, s46, {t*4096+u*2048}"),raw(f"buffer_load_dwordx4 v{vGV}, s[24:27], s19 offen lds"),
                raw(f"buffer_load_dwordx4 v{vGV}, s[24:27], s19 offen offset:1024 lds"),raw("s_waitcnt vmcnt(0)")]
            S+=[raw(f"ds_read_b64_tr_b16 {vr(kf+4*dt+2*u,2)}, v{vT2} offset:{64*dt}") for dt in range(4)]
            S.append(raw("s_waitcnt lgkmcnt(0)"))
        S+=[mfma32(vO+16*dt,kf+4*dt,sp+4*t,vO+16*dt) for dt in range(4)]
    S+=[nop(15),raw("s_add_u32 s46, s46, 8192"),raw("s_cmp_lt_u32 s46, 131072"),raw("s_cbranch_scc1 L_s2")]
    S.append(valu("v_add_f32",vLa,vLa,vLb)); crosshalf(S,vLa,vT1,"v_add_f32")
    S+=[trans("v_rcp_f32",vRL,vLa),nop(1)]
    for dt in range(4):
        r,sts=epi(dt); S+=r+sts
    S.append(raw("s_endpgm"))
    S,_=pad_hazards(S)

    H=[]; e=H.append
    e(f"; @launch grid=(256,1,1) block=({256+64*(nload+scout)},1,1) lds={lds}")
    e('.amdgcn_target "amdgcn-amd-amdhsa--gfx950"')
    e(f".text\n.globl {KN}\n.p2align 8\n.type {KN},@function\n{KN}:")
    e("s_load_dwordx4 s[4:7], s[0:1], 0")
    e("s_load_dwordx4 s[8:11], s[0:1], 16")
    if stamps:
        e("s_load_dwordx2 s[12:13], s[0:1], 40")
        e("s_memrealtime s[96:97]\ns_memtime s[98:99]")
    if diag is not None: e("s_memrealtime s[96:97]")
    e("s_cmp_ge_u32 s2, 256\ns_cbranch_scc1 L_end")
    e("v_lshrrev_b32 v1, 6, v0\nv_and_b32 v2, 63, v0")
    if xmap==0: e("s_and_b32 s14, s2, 7\ns_lshr_b32 s15, s2, 4\ns_lshl_b32 s15, s15, 3\ns_add_u32 s14, s14, s15")
    else: e("s_and_b32 s14, s2, 7\ns_lshr_b32 s15, s2, 4\ns_lshl_b32 s14, s14, 4\ns_add_u32 s14, s14, s15")
    e("v_readfirstlane_b32 s16, v1")
    e("s_bfe_u32 s15, s2, 0x10003")
    e("s_lshl_b32 s17, s14, 17")
    e("s_lshl_b32 s18, s14, 16\ns_lshl_b32 s19, s15, 15\ns_add_u32 s18, s18, s19")
    e(f"v_lshlrev_b32 v{vSA}, 2, v0\nv_add_u32 v{vSA}, {FB}, v{vSA}\nv_mov_b32 v{vSG}, 0\nds_write_b32 v{vSA}, v{vSG}")
    if ebar==1: e("s_waitcnt lgkmcnt(0)\ns_barrier")
    e(f"s_cmp_ge_u32 s16, {nload}\ns_cbranch_scc1 L_consumer")
    assert not (ebar and (qbar or ini or stag))
    assert not (scout and (qbar or dryt))
    if nomem==1: e("s_waitcnt lgkmcnt(0)\ns_barrier\ns_endpgm")
    if lprio: e(f"s_setprio {lprio}")
    e("s_getpc_b64 s[36:37]\nL_pc:")
    e("s_add_u32 s36, s36, L_table-L_pc\ns_addc_u32 s37, s37, 0\ns_mov_b32 s38, 128\ns_mov_b32 s39, 0x20000")
    e("v_lshrrev_b32 v3, 4, v2\nv_and_b32 v4, 15, v2\nv_lshlrev_b32 v4, 4, v4")
    e("s_lshl_b32 s44, s16, 8")
    e("v_add_u32 v4, s44, v4")
    e("v_lshl_add_u32 v6, v3, 12, v4\nv_lshl_add_u32 v7, v3, 10, v4")
    e("s_mul_i32 s42, s16, 1040\ns_mul_i32 s43, s16, 1088")
    if lin:
        e(f"s_mul_i32 s84, s16, {1040*(16//nload-1)}\ns_mul_i32 s43, s16, {1088*16//nload}\ns_mul_i32 s85, s16, {16384//nload}\ns_add_u32 s17, s17, s85\nv_lshlrev_b32 v5, 4, v2")
    e(f"s_add_u32 s44, s44, {FB}")
    e(f"s_add_u32 s46, s42, {QOFF[0]}")
    e("s_mov_b32 s30, 32768\ns_mov_b32 s31, 0x20000\ns_mov_b32 s22, 131072\ns_mov_b32 s23, 0x20000\ns_mov_b32 s26, 131072\ns_mov_b32 s27, 0x20000")
    if lin: e("s_sub_u32 s22, s22, s85\ns_sub_u32 s26, s26, s85")
    if lin==2: e("s_mov_b32 s23, 0x800000\ns_mov_b32 s27, 0x800000")
    e(f"s_movk_i32 s40, {nload*784}\ns_movk_i32 s41, {nload*832}")
    e("s_waitcnt lgkmcnt(0)")
    ldiag = diag if isinstance(diag,str) and diag.startswith('l') else None
    lst=[0]
    def lstamp(name):
        if ldiag==name: e("s_memrealtime s[60:61]")
        if stamps:
            i=lst[0]; lst[0]+=1; e(f"s_memtime s[{50+2*i}:{51+2*i}]")
    lstamp('l0')
    e("s_add_u32 s28, s4, s18\ns_addc_u32 s29, s5, 0")
    NI=16//nload
    def kq_stage(srd,m0base,soff):
        e(f"s_mov_b32 m0, {m0base}")
        for g in range(NI):
            if g==0: e("s_nop 0")
            e(f"buffer_load_dwordx4 v6, {srd}, {soff} offen offset:{g*nload*256} {ldflags} lds")
            if g<NI-1: e("s_add_u32 m0, m0, s40\ns_nop 0")
    def v_stage():
        e("s_add_u32 m0, s46, s43")
        per=4//nload
        for t in range(4):
            for rr in range(per):
                if t==0 and rr==0: e("s_nop 0")
                e(f"buffer_load_dwordx4 v7, s[24:27], s15 offen offset:{rr*nload*256} {ldflags} lds")
                if rr<per-1: e("s_add_u32 m0, m0, s41\ns_nop 0")
            if t<3: e(f"s_add_u32 m0, m0, {4352-(per-1)*nload*832}\ns_add_u32 s15, s15, 4096")
    if lin:
        _kq=kq_stage
        vo = "v5" if lin==1 else "off"; of = "offen " if lin==1 else ""
        def lin_stage(srd,soff,step):
            cur=soff
            for g in range(NI):
                if g==0: e("s_nop 0")
                e(f"buffer_load_dwordx4 {vo}, {srd}, {cur} {of}offset:{(g%4)*1024} {ldflags} lds")
                if g<NI-1:
                    if g%4==3:
                        e(f"s_add_u32 m0, m0, {4096+step}\ns_add_u32 s86, {cur}, 4096"); cur="s86"
                    else: e(f"s_add_u32 m0, m0, {step}\ns_nop 0")
        def kq_stage(srd,m0base,soff):
            if srd=="s[28:31]": return _kq(srd,m0base,soff)
            e(f"s_add_u32 m0, {m0base}, s84"); lin_stage(srd,soff,16)
        def v_stage():
            e("s_add_u32 m0, s46, s43"); lin_stage("s[24:27]","s15",64)
    def lflag(soff): e(f"s_mov_b32 m0, s44\ns_nop 0\nbuffer_load_dword v{vSG}, s[36:39], {soff} offen lds" if lin<2 else f"s_mov_b32 m0, s44\ns_nop 0\nbuffer_load_dword off, s[36:39], {soff} lds")
    if ini:
        e("s_add_u32 s20, s6, s17\ns_addc_u32 s21, s7, 0\ns_add_u32 s24, s8, s17\ns_addc_u32 s25, s9, 0")
        e(f"s_add_u32 s43, s43, {KSL}")
        cnts=[]; barred=False
        if q4: e("v_lshl_add_u32 v7, v3, 11, v4")
        for n,stg in enumerate(ini):
            k,j=stg[0],int(stg[1])
            c=NI//2+1 if k=='W' else NI+1
            lim=(NI+1)*depth
            if sum(cnts)+c>lim:
                if not barred: e("s_barrier"); barred=True
                keep=0
                for x in reversed(cnts):
                    if keep+x+c<=lim: keep+=x
                    else: break
                e(f"s_waitcnt vmcnt({keep})")
            if k=='Q':
                e(f"s_add_u32 s47, s42, {QOFF[j]}\ns_mov_b32 s45, {j*16384}"); kq_stage("s[28:31]","s47","s45")
            elif k=='W':
                e(f"s_add_u32 m0, s42, {QOFF[j//2]+(j%2)*8320}\ns_mov_b32 s45, {j*8192}")
                for g in range(8//nload):
                    e(f"buffer_load_dwordx4 v7, s[28:31], s45 offen offset:{g*nload*256} {ldflags} lds")
                    if g<8//nload-1: e("s_add_u32 m0, m0, s40\ns_nop 0")
            elif k=='K':
                e(f"s_add_u32 s47, s42, {KOFF(j)}\ns_mov_b32 s45, {j*16384}"); kq_stage("s[20:23]","s47","s45")
            else:
                e(f"s_mov_b32 s46, {VOFF(j)-KSL}\ns_mov_b32 s15, {j*16384}"); v_stage()
            lflag(str(4*(n+1))); cnts.append(c)
            if n==0: lstamp('l1')
        assert barred
    elif not stag:
        kq_stage("s[28:31]","s46","0")
        if not qbar: lflag("4")
        lstamp('l1')
        if wstag>=1: e("s_bitcmp1_b32 s2, 4\ns_cbranch_scc0 L_ws1\ns_waitcnt vmcnt(0)\nL_ws1:")
        e(f"s_add_u32 s46, s42, {QOFF[1]}\ns_movk_i32 s45, 16384")
        kq_stage("s[28:31]","s46","s45")
        if not qbar: lflag("8")
        if wstag>=2: e("s_bitcmp1_b32 s2, 4\ns_cbranch_scc0 L_ws2\ns_waitcnt vmcnt(0)\nL_ws2:")
        e("s_add_u32 s20, s6, s17\ns_addc_u32 s21, s7, 0")
        if lin==2: e("s_or_b32 s21, s21, 0x100000")
        kq_stage("s[20:23]","s42","0"); lflag("12")
    else:
        e("s_add_u32 s20, s6, s17\ns_addc_u32 s21, s7, 0")
        kq_stage("s[28:31]","s46","0")
        lstamp('l1')
        kq_stage("s[20:23]","s42","0"); lflag("8")
        e(f"s_add_u32 s47, s42, {SS}\ns_movk_i32 s45, 16384")
        kq_stage("s[20:23]","s47","s45"); lflag("12")
    lstamp('l2')
    e("s_add_u32 s24, s8, s17\ns_addc_u32 s25, s9, 0")
    if lin==2: e("s_or_b32 s25, s25, 0x100000")
    e(f"v_and_b32 v3, 3, v2\nv_lshlrev_b32 v3, 8, v3\nv_lshl_add_u32 v{vFA}, v2, 2, v3\nv_add_u32 v{vFA}, {FB+256*(nload+scout)}, v{vFA}")
    i0=(len(ini)-voff-1)//2 if ini else 1
    if ini: e(f"s_mov_b32 s46, {(i0%4)*SS}\ns_mov_b32 s49, {8*i0+8+4*voff}\ns_mov_b32 s45, {i0*16384}")
    else: e(f"s_mov_b32 s46, {SS}\ns_mov_b32 s49, 16\ns_add_u32 s43, s43, {KSL}")
    def need_for(i):
        if i<4: return 0
        req=6 if i in (4,8) else 2*(i-4)+4
        return min(2*it+4 for it in sig_iters if 2*it+4>=req)
    packed=0
    seen=0
    for i in range(1,9):
        n=need_for(i)
        if n>seen: packed|=n<<(4*(i-1)); seen=n
    packed>>=4*(i0-1)
    e(f"s_mov_b32 s48, {packed:#x}")
    if ini: pass
    elif ebar: pass
    elif not qbar: e("s_barrier")
    else:
        assert not stag
        e(f"s_add_u32 s47, s46, s42\ns_waitcnt vmcnt({2*NI+1})")
        if wstag>=3: e("s_bitcmp1_b32 s2, 4\ns_cbranch_scc0 L_ws3\ns_waitcnt vmcnt(0)\nL_ws3:")
        kq_stage("s[20:23]","s47","s45"); lflag("16")
        e(f"s_lshr_b32 s48, s48, 4\ns_mov_b32 s15, 0\ns_mov_b32 s49, 20\ns_waitcnt vmcnt({2*NI+2})\ns_barrier\ns_branch L_lv")
    if d0<depth: e(f"s_waitcnt vmcnt({(NI+1)*(d0-1)})")
    W=(NI+1)*(depth-1)
    if wv>=0: W=wv
    if stag:
        e(f"s_add_u32 s47, s42, {QOFF[1]}\ns_waitcnt vmcnt({W})")
        kq_stage("s[28:31]","s47","s45"); lflag("16")
        e("s_lshr_b32 s48, s48, 4\ns_mov_b32 s15, 0\ns_mov_b32 s49, 20\ns_branch L_lv")
    e("L_lloop:")
    if not nomem:
        e("s_and_b32 s14, s48, 15\ns_cbranch_scc0 L_lgo")
        if bar: e("s_barrier\nL_lgo:")
        else: e(f"s_branch L_lx\nL_lw:\ns_sleep {lsleep}\nL_lx:\nds_read_b32 v8, v{vFA}\ns_waitcnt lgkmcnt(0)\nv_cmp_gt_u32 vcc, s14, v8\ns_cbranch_vccnz L_lw\nL_lgo:")
    e("s_lshr_b32 s48, s48, 4\ns_sub_u32 s15, s45, 16384")
    e(f"s_cmp_eq_u32 s49, {72+4*voff}\ns_cselect_b32 s46, {XB-KSL}, s46\ns_cbranch_scc1 L_lv")
    e("s_add_u32 s47, s46, s42")
    e(f"s_waitcnt vmcnt({W})")
    kq_stage("s[20:23]","s47","s45"); lflag("s49")
    e("s_add_u32 s49, s49, 4")
    e("L_lv:")
    e(f"s_waitcnt vmcnt({W})")
    v_stage(); lflag("s49")
    e(f"s_add_u32 s49, s49, 4\ns_add_u32 s45, s45, 16384\ns_add_u32 s46, s46, {SS}\ns_cmp_eq_u32 s46, {4*SS}\ns_cselect_b32 s46, 0, s46")
    e(f"s_cmp_lt_u32 s49, {76+4*voff}\ns_cbranch_scc1 L_lloop")
    lstamp('l3')
    e("s_waitcnt vmcnt(0)")
    lstamp('l4')
    if stamps:
        e("s_memrealtime s[94:95]\ns_waitcnt lgkmcnt(0)")
        e("s_mov_b32 s36, s12\ns_mov_b32 s37, s13\ns_mov_b32 s38, 0x1000000\ns_mov_b32 s39, 0x20000")
        e("s_cmp_lg_u32 s16, 0\ns_cbranch_scc1 L_end")
        e("s_lshl_b32 s45, s2, 8\ns_add_u32 s45, s45, 65536\nv_mov_b32 v7, s45")
        for i,r in enumerate([96,98]+[50+2*min(i,lst[0]-1) for i in range(scnt[0]+1)]+[94]):
            e(f"v_mov_b32 v8, s{r}\nbuffer_store_dword v8, v7, s[36:39], 0 offen offset:{4*i}\ns_nop 1")
    if ldiag:
        e(f"s_memrealtime s[62:63]\ns_waitcnt lgkmcnt(0)\ns_sub_u32 s67, s60, s96\ns_mul_i32 s67, s67, {dk}\ns_add_u32 s67, s67, 500\ns_min_u32 s67, s67, 100000\nL_lspin:\ns_memrealtime s[64:65]\ns_waitcnt lgkmcnt(0)\ns_sub_u32 s66, s64, s62\ns_cmp_lt_u32 s66, s67\ns_cbranch_scc1 L_lspin")
    e("L_end:\ns_endpgm")
    e(".p2align 7\nL_table:\n"+"\n".join(f".long {i}" for i in range(32)))
    e("L_consumer:")
    if cprio: e(f"s_setprio {cprio}")
    if scout:
        e(f"s_cmp_ge_u32 s16, {nload+scout}\ns_cbranch_scc1 L_cons2")
        if not ebar: e("s_waitcnt lgkmcnt(0)\ns_barrier")
        e("s_mov_b64 exec, 0\ns_mov_b64 vcc, 0")
        if vsk: e("s_setvskip -1, 0")
        e("s_nop 3")
        for k in range(1,scout): e(f"s_cmp_eq_u32 s16, {nload+k}\ns_cbranch_scc1 L_sq{k}")
        e("s_branch L_main\nL_sdone:")
        if vsk: e("s_setvskip 0, 0")
        e("s_endpgm\nL_cons2:")
    e(f"s_sub_u32 s16, s16, {nload+scout}")
    e(f"v_and_b32 v3, {nload-1}, v2\nv_lshlrev_b32 v3, 8, v3\nv_lshl_add_u32 v{vFA}, v2, 2, v3")
    if codepf:
        e("s_getpc_b64 s[36:37]\nL_pc2:\ns_add_u32 s36, s36, L_main-L_pc2\ns_addc_u32 s37, s37, 0\ns_mov_b32 s38, L_slow-L_main\ns_mov_b32 s39, 0x20000")
        e("s_lshr_b32 s45, s2, 3\ns_lshl_b32 s45, s45, 2\ns_add_u32 s45, s45, s16\ns_lshl_b32 s45, s45, 7\nv_mov_b32 v9, 0\nbuffer_load_dword v31, v9, s[36:39], s45 offen")
    if hop:
        e("s_mov_b64 exec, 0\ns_cmp_eq_u32 s16, 0\ns_cbranch_scc1 L_hop0\ns_cmp_eq_u32 s16, 1\ns_cbranch_scc1 L_hop1\ns_cmp_eq_u32 s16, 2\ns_cbranch_scc1 L_hop2\ns_branch L_hop3\nL_hopdone:\ns_mov_b64 exec, -1")
    e(f"v_add_u32 v{vFA}, {FB}, v{vFA}")
    e("v_lshrrev_b32 v4, 5, v2\nv_and_b32 v5, 15, v2\nv_bfe_u32 v6, v2, 4, 1")
    e(f"v_mul_u32_u24 v{vKA[0]}, 1040, v5\nv_lshl_add_u32 v{vKA[0]}, v6, 8, v{vKA[0]}\nv_lshl_add_u32 v{vKA[0]}, v4, 4, v{vKA[0]}\nv_add_u32 v{vKA[1]}, {2*SS}, v{vKA[0]}")
    e("v_lshrrev_b32 v7, 2, v5\nv_and_b32 v8, 3, v5")
    e("v_lshlrev_b32 v3, 8, v4\nv_lshl_add_u32 v3, v6, 5, v3\nv_lshl_add_u32 v3, v8, 3, v3")
    if lin: e("v_mul_u32_u24 v3, 4352, v4\nv_lshl_add_u32 v3, v6, 5, v3\nv_lshl_add_u32 v3, v8, 3, v3")
    e(f"v_mul_u32_u24 v{vT2}, 1088, v7\nv_add_u32 v{vT2}, v{vT2}, v3")
    e(f"v_add_u32 v{vVA[0]}, {KSL}, v{vT2}\nv_add_u32 v{vVA[1]}, {KSL+2*SS}, v{vT2}\nv_add_u32 v{vVA[2]}, {XB}, v{vT2}")
    e(f"s_mul_i32 s47, s16, {STG}\ns_add_u32 s47, s47, {SB}")
    e(f"v_lshlrev_b32 v{vT2}, 10, v4\nv_lshl_add_u32 v{vT2}, v7, 8, v{vT2}\nv_lshl_add_u32 v{vT2}, v6, 5, v{vT2}\nv_lshl_add_u32 v{vT2}, v8, 3, v{vT2}\nv_add_u32 v{vT2}, s47, v{vT2}")
    e(f"v_and_b32 v3, 31, v2\nv_lshlrev_b32 v{vGK}, 8, v3\nv_lshl_add_u32 v{vGK}, v4, 4, v{vGK}")
    e(f"v_lshlrev_b32 v{vGV}, 4, v2")
    e(f"s_lshl_b32 s45, s16, 13\nv_bfe_u32 v3, v2, 2, 3\nv_lshlrev_b32 v{vOA}, 10, v3\nv_lshl_add_u32 v{vOA}, v4, 8, v{vOA}\nv_lshl_add_u32 v{vOA}, v8, 4, v{vOA}\nv_add_u32 v{vOA}, s45, v{vOA}")
    e(f"s_mov_b32 {sC}, {f2u(C_SCALE):#x}\ns_mov_b32 {sTHR}, {f2u(lthr):#x}")
    e("s_mov_b32 s76, 0x55555555\ns_mov_b32 s77, s76\ns_not_b64 s[78:79], s[76:77]\ns_mov_b32 s80, 0x33333333\ns_mov_b32 s81, s80\ns_not_b64 s[82:83], s[80:81]")
    e(f"s_lshr_b32 s46, s16, 1\ns_mov_b32 s45, {QOFF[0]}\ns_cmp_eq_u32 s46, 0\ns_cselect_b32 s45, s45, {QOFF[1]}\ns_and_b32 s19, s16, 1\ns_lshl_b32 s19, s19, 9\ns_add_u32 s45, s45, s19\ns_add_u32 s46, s46, 1")
    if stag: e("s_lshl_b32 s46, s46, 1")
    if ini and not q4: e(f"s_cmp_eq_u32 s46, 1\ns_cselect_b32 s46, {ini.index('Q0')+1}, {ini.index('Q1')+1}")
    e(f"v_add_u32 v{vT1}, s45, v{vKA[0]}")
    if q4:
        pk=sum((ini.index(f"W{w}")+1)<<(8*w) for w in range(4))
        e(f"s_lshl_b32 s46, s16, 3\ns_lshr_b32 s46, {pk:#x}, s46\ns_and_b32 s46, s46, 255")
        e(f"s_sub_u32 s45, s45, s19\ns_and_b32 s19, s16, 1\ns_mul_i32 s19, s19, 8320\ns_add_u32 s45, s45, s19")
        e(f"v_and_b32 v3, 7, v2\nv_mul_u32_u24 v{vT1}, 1040, v3\nv_bfe_u32 v3, v2, 3, 2\nv_lshl_add_u32 v{vT1}, v3, 8, v{vT1}\nv_lshl_add_u32 v{vT1}, v4, 4, v{vT1}\nv_add_u32 v{vT1}, s45, v{vT1}")
    if dryt:
        for r in range(vFR,vFR+4*NFR): e(f"v_mov_b32 v{r}, 0")
        e(f"v_mov_b32 v9, v{vT1}")
        e("s_mov_b64 exec, 0\ns_cmp_eq_u32 s16, 0\ns_cbranch_scc1 L_dq0\ns_cmp_eq_u32 s16, 1\ns_cbranch_scc1 L_dq1\ns_cmp_eq_u32 s16, 2\ns_cbranch_scc1 L_dq2\ns_branch L_dq3\nL_drydone:\ns_mov_b64 exec, -1")
        e(f"v_mov_b32 v{vT1}, v9")
        if stamps: e("s_memtime s[72:73]")
    e("s_waitcnt lgkmcnt(0)")
    e("s_add_u32 s32, s10, s18\ns_addc_u32 s33, s11, 0\ns_mov_b32 s34, 32768\ns_mov_b32 s35, 0x20000")
    e("s_add_u32 s20, s6, s17\ns_addc_u32 s21, s7, 0\ns_mov_b32 s22, 131072\ns_mov_b32 s23, 0x20000")
    e("s_add_u32 s24, s8, s17\ns_addc_u32 s25, s9, 0\ns_mov_b32 s26, 131072\ns_mov_b32 s27, 0x20000")
    if not ebar: e("s_barrier")
    if stamps: e("s_mov_b32 s74, 0\ns_mov_b32 s75, 0")
    e("s_branch L_main")
    e(text(rare))
    e(".p2align 3\nL_main:")
    e(text(prog))
    if stamps:
        ns=scnt[0]
        e("s_waitcnt vmcnt(0)")
        e(f"s_memtime s[{50+2*ns}:{51+2*ns}]\ns_memrealtime s[{52+2*ns}:{53+2*ns}]\ns_waitcnt lgkmcnt(0)")
        e("s_mov_b32 s36, s12\ns_mov_b32 s37, s13\ns_mov_b32 s38, 0x1000000\ns_mov_b32 s39, 0x20000")
        e("s_cmp_lg_u32 s16, 3\ns_cbranch_scc1 L_end2")
        e("s_lshl_b32 s45, s2, 8\nv_mov_b32 v7, s45")
        regs=[96,98]+[50+2*i for i in range(ns+2)]
        assert regs[-1]<74
        regs+=[74,75]
        if dryt: regs[2]=72
        for i,r in enumerate(regs):
            e(f"v_mov_b32 v8, s{r}\nbuffer_store_dword v8, v7, s[36:39], 0 offen offset:{4*i}\ns_nop 1")
        sys.stderr.write(f"nstamps={len(regs)}\n")
        e("L_end2:")
    if diag is not None and not ldiag:
        e("s_waitcnt vmcnt(0)")
        if diag=='end': e("s_memrealtime s[60:61]")
        e(f"s_memrealtime s[62:63]\ns_waitcnt lgkmcnt(0)\ns_sub_u32 s67, s60, s96\ns_mul_i32 s67, s67, {dk}\ns_min_u32 s67, s67, 100000\nL_spin:\ns_memrealtime s[64:65]\ns_waitcnt lgkmcnt(0)\ns_sub_u32 s66, s64, s62\ns_cmp_lt_u32 s66, s67\ns_cbranch_scc1 L_spin")
    e("s_endpgm")
    e(text(S))
    e(f'.section .rodata,"a"\n.p2align 6\n.amdhsa_kernel {KN}')
    e(f"  .amdhsa_next_free_vgpr 256\n  .amdhsa_next_free_sgpr 102\n  .amdhsa_accum_offset 256\n  .amdhsa_group_segment_fixed_size 0\n  .amdhsa_kernarg_size 48\n  .amdhsa_user_sgpr_count 2\n  .amdhsa_user_sgpr_kernarg_segment_ptr 1\n  .amdhsa_system_sgpr_workgroup_id_x 1\n.end_amdhsa_kernel")
    return "\n".join(H)+"\n"

if __name__=="__main__":
    name=sys.argv[1]; kw={}
    for a in sys.argv[2:]:
        k,v=a.split("=",1)
        try: v=int(v)
        except:
            try: v=float(v)
            except: pass
        kw[k]=v
    open(name,"w").write(gen(**kw))
```

```python
import sys, math, struct
from asmlib import *

KN="standalone__gqa_softmax__near_ridge_kernel"
C_SCALE = math.log2(math.e)/math.sqrt(128.0)
def f2u(x): return struct.unpack("<I",struct.pack("<f",x))[0]

KSL=16640; VSL=17408; SS=KSL+VSL
XB=4*SS; FB=XB+VSL; SB=FB+2048; STG=2048
assert SB+4*STG<=163840
def KOFF(j): return (j%4)*SS
def VOFF(j): return XB if j==7 else ((j+1)%4)*SS+KSL
QOFF=[VOFF(3),XB]

def pkmul(d,a,b):
    return I(f"v_pk_mul_f32 {vr(d,2)}, {vr(a,2)}, {vr(b,2)}",'valu',rd=R(a,2)+R(b,2),wr=R(d,2),cost=6)
def cnd_dpp(d,s0,s1,qp):
    return I(f"v_cndmask_b32_dpp v{d}, v{s0}, v{s1}, vcc quad_perm:{qp} row_mask:0xf bank_mask:0xf",'dpp',rd=[s0,s1],wr=[d])

def gen(depth=3, ldflags="nt", stflags="nt", stamps=0, pf=6, G=2, lthr=2.0**24, budget=24, fl=4, lprio=0, cprio=0,
        verbose=0, diag=None, dk=1, nomem=0, lds=163840, xmap=0, NFR=8, lsleep=4,
        cinit=1, forceslow=0, HZ=2, d0=3, tailb=40, order=1, stc=24, sigs="1,3", bar=0, hop=0, codepf=1, stset='q,K0,K1,K3,K5,K7,V7,e0,e3,st', nosig=0, pair=1, nload=4, stag=0, head=0, late=0, slow=0, lin=0, qsleep=0, pk2=0, osleep=0, qbar=0, dryt=0, init='', wstag=0, scout=0, vsk=1, swait=1, ebar=0, rt=0, slo0=0, slo1=256, wv=-1, v7e=0):
    vKA=[10,11]; vVA=[12,13,30]
    vFA,vSA=14,15
    vNM,vLa,vLb,vMX,vT1,vOA=16,17,18,19,20,21
    vRL=22
    vF=[24,25]; vSG=26; vGK=27; vGV=28; vT2=29
    vQ=32; vFR=64
    vNB=vFR+4*NFR
    vS=[vNB+16+16*i for i in range(3)]
    vP=[vS[2]+16+8*i for i in range(4)]
    vO=vP[3]+8
    assert vO+64<=256
    sC="s40"; sTHR="s41"
    sEV,sOD,sLO,sHI="s[76:77]","s[78:79]","s[80:81]","s[82:83]"
    LK=(lambda j: 3 if j==0 else 2*j+2) if not stag else (lambda j: {0:1,1:3}.get(j,2*j+2))
    LV=lambda j: 2*j+5 if j<7 else 18
    ini=init.split(',') if init else []
    q4=False; voff=0
    if ini:
        assert not stag and not qbar
        q4='W0' in ini; voff=2 if q4 else 0
        assert (len(ini)-voff) in (5,7,9)
        _LK,_LV=LK,LV
        LK=lambda j: ini.index(f"K{j}")+1 if f"K{j}" in ini else _LK(j)+voff
        LV=lambda j: ini.index(f"V{j}")+1 if f"V{j}" in ini else _LV(j)+voff
    sig_iters=[int(x) for x in str(sigs).split(",")]
    rare=[]; scnt=[0]
    def stamp(name):
        o=[]
        if diag==name: o.append(raw("s_memrealtime s[60:61]"))
        if stamps and name in stset.split(','):
            i=scnt[0]; scnt[0]+=1; o.append(raw(f"s_memtime s[{50+2*i}:{51+2*i}]"))
            if rt: i=scnt[0]; scnt[0]+=1; o.append(raw(f"s_memrealtime s[{50+2*i}:{51+2*i}]"))
        return o
    cn=[0]
    def flag_read():
        r=vF[cn[0]%2]; return I(f"ds_read_b32 v{r}, v{vFA}",'dsr',rd=[vFA],wr=[r])
    def flag_check(val,name):
        r=vF[cn[0]%2]; cn[0]+=1
        if nomem: return stamp(name)
        if stamps: rare.extend([label(f"L_spin{name}"), raw(f"s_bitset1_b32 s75, {cn[0]-1}"), raw("s_add_u32 s74, s74, 1")])
        rare.extend(([] if stamps else [label(f"L_spin{name}")])+([raw(f"s_sleep {qsleep}")] if (qsleep and name=='q') else [])+([raw(f"s_sleep {osleep}")] if (osleep and name!='q') else [])+[ raw(f"ds_read_b32 v{r}, v{vFA}"), raw("s_waitcnt lgkmcnt(0)"),
                     raw(f"v_cmp_gt_u32 vcc, {val}, v{r}"), raw(f"s_cbranch_vccnz L_spin{name}"), raw(f"s_branch L_back{name}")])
        return [I(f"v_cmp_gt_u32 vcc, {val}, v{r}\n    s_cbranch_vccnz L_spin{name}\nL_back{name}:",'valu',rd=[r],sw=['vcc'],cost=8,tag='vcc')]+stamp(name)
    def signal(val): return [] if nosig else [valu("v_mov_b32",vSG,str(val)), I(f"ds_write_b32 v{vSA}, v{vSG}",'dsw',rd=[vSA,vSG])]

    M=[]
    def PL(h): return vS[h%3] if (order in (7,8) and h>=14) else vP[h%4]
    def addr(base,off):
        ss=off//SS; return (base[ss//2], off-(ss//2)*2*SS)
    def add_qk(h):
        j,u=divmod(h,2); d=vS[h%3]
        for s in range(8):
            f=vFR+4*(len(M)%NFR)
            c0=vNB if (cinit and h>=2) else "0"
            a,o=addr(vKA,KOFF(j)+u*512+s*32)
            M.append(dict(mfma=mfma32(d,f,vQ+4*s,c0 if s==0 else d),reads=[dsr128(f,a,o)],st=('K',j),id=('K',h,s)))
    def add_pv(h,dts,first=False):
        j,u=divmod(h,2)
        for tl in range(2):
            for dt in dts:
                one_pv(h,tl,dt)
    def one_pv(h,tl,dt):
        j,u=divmod(h,2); t=2*u+tl
        f=vFR+4*(len(M)%NFR)
        rds=[]
        for x in range(2):
            io=(t*4352+x*512+64*dt) if not lin else (x*8704+t*256+64*dt)
            a,o=addr(vVA,VOFF(j)-KSL+io) if j<7 else (vVA[2],io); rds.append(dsrtr(f+2*x,a,o))
        c="0" if (h==0 and tl==0) else vO+16*dt
        M.append(dict(mfma=mfma32(vO+16*dt,f,PL(h)+4*tl,c),reads=rds,st=('V',j),id=('V',h,tl,dt)))
    add_qk(0); add_qk(1)
    if head:
        add_qk(2); add_qk(3); add_pv(0,range(4)); add_pv(1,range(4))
    for i in range(2 if head else 1,7):
        dd=range(4)
        if i==6 and order==7: dd=(0,1)
        if i==6 and order==8: dd=(0,1,2)
        add_qk(2*i); add_pv(2*i-2,dd); add_qk(2*i+1); add_pv(2*i-1,dd)
    def pvt(j,dt):
        for h in (2*j,2*j+1):
            for tl in range(2): one_pv(h,tl,dt)
    if order==1:
        add_qk(14); add_qk(15)
        pvt(6,3); pvt(6,2); pvt(6,0); pvt(7,0); pvt(6,1); pvt(7,1); pvt(7,2); pvt(7,3)
    elif order==2:
        add_qk(14); add_pv(12,(3,2)); add_qk(15); add_pv(13,(3,2))
        pvt(6,0); pvt(6,1); pvt(7,0); pvt(7,1); pvt(7,2); pvt(7,3)
    elif order==3:
        add_qk(14); add_qk(15)
        pvt(6,3); pvt(6,0); pvt(6,2); pvt(7,0); pvt(6,1); pvt(7,1); pvt(7,2); pvt(7,3)
    elif order==4:
        add_qk(14); add_qk(15)
        pvt(6,0); pvt(6,1); pvt(7,0); pvt(7,1); pvt(6,2); pvt(7,2); pvt(6,3); pvt(7,3)
    elif order==5:
        add_qk(14); add_qk(15)
        pvt(6,0); pvt(6,1); pvt(6,2); add_pv(14,(0,1)); add_pv(15,(0,1)); pvt(7,2); pvt(6,3); pvt(7,3)
    elif order==7:
        add_qk(14); add_qk(15)
        pvt(6,0); pvt(6,1); pvt(7,0); pvt(7,1); pvt(5,2); pvt(6,2); pvt(7,2); pvt(5,3); pvt(6,3); pvt(7,3)
    elif order==8:
        add_qk(14); add_qk(15)
        pvt(6,0); pvt(6,1); pvt(7,0); pvt(7,1); pvt(6,2); pvt(7,2); pvt(5,3); pvt(6,3); pvt(7,3)
    elif order==9:
        add_qk(14); add_pv(12,(0,)); add_qk(15); add_pv(13,(0,))
        pvt(6,1); add_pv(14,(0,)); add_pv(12,(2,)); add_pv(15,(0,)); pvt(7,1); add_pv(13,(2,)); pvt(7,2); pvt(6,3); pvt(7,3)
    NM=len(M); assert NM==256
    pos={m['id']:i for i,m in enumerate(M)}
    first_use={}; last_use={}
    for i,m in enumerate(M):
        first_use.setdefault(m['st'],i); last_use[m['st']]=i
    for st,i in first_use.items(): M[i]['need']=(LK(st[1]) if st[0]=='K' else LV(st[1]), f"{st[0]}{st[1]}")
    if stag: del M[0]['need']
    if v7e: del M[first_use[('V',7)]]['need']
    for it in sig_iters:
        i0=max(last_use[('K',it)],last_use[('V',it-1)])
        if bar: M[i0+pf+1]['bar']=1
        else: M[i0]['sig']=2*it+4
    F=[]
    def addF(lst,avail,due):
        for x in lst: F.append([x,avail,due])
    def crosshalf(o,reg,tmp,op):
        o.append(valu("v_mov_b32",tmp,reg)); o.append(perm32(reg,tmp)); o.append(valu(op,reg,reg,tmp))
    def max_blk(src,dst,first):
        o=[valu("v_max3_f32",dst,src,src+1,src+2) if first else valu("v_max3_f32",dst,dst,src,src+1)]
        k=3 if first else 2
        while k+1<16: o.append(valu("v_max3_f32",dst,dst,src+k,src+k+1)); k+=2
        if k<16: o.append(valu("v_max_f32",dst,dst,src+k))
        return o
    def exp_blk(src,dstp,pre):
        seq=[]; n=16
        for i in range(n+3):
            if i<n and pre=='fma': seq.append(valu("v_fma_f32",src+i,src+i,sC,vNM))
            if i<n and pre=='add': seq.append(valu("v_add_f32",src+i,src+i,vNM))
            if 0<=i-1<n: seq.append(trans("v_exp_f32",src+i-1,src+i-1))
            if 0<=i-2<n:
                l=vLa if (i-2)%2==0 else vLb; seq.append(valu("v_add_f32",l,l,src+i-2))
            if i-3>=0 and (i-3)%2==1:
                k=(i-3)//2; seq.append(valu("v_cvt_pk_bf16_f32",dstp+k,src+2*k,src+2*k+1))
        return seq
    st=max_blk(vS[0],vMX,True); crosshalf(st,vMX,vT1,"v_max_f32")
    if cinit:
        st.append(valu("v_sub_f32",vNM,"0",vMX)); st+=[valu("v_sub_f32",vNB+i,"0",vMX) for i in range(16)]
        addF(st,8+HZ,16)
    else:
        st+=[valu("v_mul_f32",vNM,sC,vMX),valu("v_sub_f32",vNM,"0",vNM)]; addF(st,8+HZ,24)
    for h in range(16):
        pre=('add' if h<2 else None) if cinit else 'fma'
        av=pos[('K',h,7)]+1+HZ
        dueS=pos[('K',h+3,0)] if h+3<16 else NM
        for x in exp_blk(vS[h%3],PL(h),pre):
            a=av; d=dueS
            if x.text.startswith("v_cvt"):
                k=list(x.wr)[0]-PL(h); tl=k//4
                d=min(d,min(pos[('V',h,tl,dt)] for dt in range(4)))
                if h>=4 and PL(h)==PL(h-4): a=max(a,max(pos[('V',h-4,tl,dt)] for dt in range(4))+1)
            F.append([x,a,d])
    fin=[valu("v_add_f32",vLa,vLa,vLb)]; crosshalf(fin,vLa,vT1,"v_add_f32")
    fin.append(trans("v_rcp_f32",vRL,vLa))
    br="" if nomem else ("\n    s_cbranch_vccnz L_slow" if not forceslow else "\n    s_branch L_slow")
    fin.append(I(f"v_cmp_nge_f32 vcc, {sTHR}, v{vLa}"+br,'valu',rd=[vLa],sw=['vcc'],sr=[sTHR],cost=8))
    fin.append(valu("v_mov_b32",vRL+1,vRL))
    addF(fin,0,NM)
    def setvcc(s): return I(f"s_mov_b64 vcc, {s}",'salu')
    def epi(dt,pk=False,tmp=None):
        o=vO+16*dt; r=[]
        r+=[pkmul(o+2*k,o+2*k,vRL) for k in range(8)] if pk else [valu("v_mul_f32",o+k,o+k,vRL) for k in range(16)]
        r+=[valu("v_cvt_pk_bf16_f32",o+k,o+2*k,o+2*k+1) for k in range(8)]
        W=lambda k,e:o+2*k+e; X=lambda k,e:o+8+2*k+e
        g=[]
        g.append([setvcc(sEV)]+[cnd_dpp(X(k,e),W(k+1,e),W(k,e),"[1,0,3,2]") for k in (0,2) for e in range(2)])
        g.append([setvcc(sOD)]+[cnd_dpp(X(k+1,e),W(k,e),W(k+1,e),"[1,0,3,2]") for k in (0,2) for e in range(2)])
        g.append([setvcc(sLO)]+[cnd_dpp(W(k,e),X(k+2,e),X(k,e),"[2,3,0,1]") for k in (0,1) for e in range(2)])
        g.append([setvcc(sHI)]+[cnd_dpp(W(k+2,e),X(k,e),X(k+2,e),"[2,3,0,1]") for k in (0,1) for e in range(2)])
        for x in g: r+=x
        for j in range(2): r+=[perm32(o+4*j,o+4*j+2),perm32(o+4*j+1,o+4*j+3)]
        sts=[I(f"buffer_store_dwordx4 {vr(o+4*j,4)}, v{vOA}, s[32:35], 0 offen offset:{512*j+64*dt} {stflags}".rstrip(),'st4',rd=[vOA]+R(o+4*j,4),cost=stc) for j in range(2)]
        return r,sts
    lastdt={dt:max(i for i,m in enumerate(M) if m['id'][0]=='V' and m['id'][3]==dt) for dt in range(4)}
    dorder=sorted(range(4),key=lambda d:lastdt[d])
    held=[]
    for n,dt in enumerate(dorder[:3]):
        r,sts=epi(dt,pk=(pk2 and n==2))
        if pair:
            if n%2==0: held=sts; sts=[]
            else:
                assert dt//2==dorder[n-1]//2
                sts=[held[0],sts[0],held[1],sts[1]]; held=[]
        for x in sts[1:]: x.cost=0
        addF((stamp('e0') if dt==dorder[0] else [])+r+sts,(lastdt[dt]+1+HZ) if not (pk2 and n==2) else NM+5,NM+1)
    lastflag=max(i for i,m in enumerate(M) if 'need' in m)-pf
    assert lastflag<lastdt[dorder[0]]
    P=[]
    P+=([flag_read()]+flag_check("s46","q")) if not qbar else stamp('q')
    for s in range(8): P.append(dsr128(vQ+4*s,vT1,32*s))
    P+=[valu("v_mov_b32",vLa,"0"),valu("v_mov_b32",vLb,"0")]
    if cinit:
        P+=[valu("v_mov_b32",vRL,sC),valu("v_mov_b32",vRL+1,sC)]
        t=vS[2]
        for r in range(34):
            if r<32:
                a=t+2*(r%8); P+=[valu("v_lshlrev_b32",a,"16",vQ+r),valu("v_and_b32",a+1,"0xffff0000",vQ+r)]
            if 1<=r<33:
                b=t+2*((r-1)%8); P.append(pkmul(b,b,vRL))
            if r>=2:
                b=t+2*((r-2)%8); P.append(valu("v_cvt_pk_bf16_f32",vQ+r-2,b,b+1))
    fi=0; cost=0
    def issue_reads(i):
        nonlocal cost
        m=M[i]
        if 'need' in m:
            if not m.get('fr'): P.append(flag_read()); cost+=4
            P.extend(flag_check(*m['need'])); cost+=12
        P.extend(m['reads']); cost+=4*len(m['reads'])
        if 'sig' in m: P.extend(signal(m['sig'])); cost+=8
        if 'bar' in m and not nomem: P.append(raw("s_barrier")); cost+=4
    needs=[i for i in range(NM) if 'need' in M[i]]
    lates=[i for i in needs if M[i]['need'][1] in ('K1','V0')] if late else []
    def rg(i):
        g=i-pf
        for b in lates:
            if b<=i: g=max(g,b-late)
        return max(g,-1)
    by_gap={}
    for i in range(NM): by_gap.setdefault(rg(i),[]).append(i)
    fr_gap={}
    for a,b in zip([None]+needs[:-1],needs):
        g=rg(b)-fl
        if a is not None: g=max(g,rg(a))
        if 0<=g<rg(b): fr_gap[g]=b
    for i in by_gap[-1]: issue_reads(i)
    carry=0
    for g in range(NM):
        while fi<len(F) and any(F[k][2]<=g for k in range(fi,min(fi+150,len(F)))):
            assert F[fi][1]<=g+HZ, ("forced before avail",F[fi][0].text,F[fi][1],g)
            P.append(F[fi][0]); fi+=1
        cost=0
        if G>1 and g%G==0:
            ex=set()
            for k in range(1,G):
                if g+k<NM and rg(g+k)<g-1:
                    for r in M[g+k]['reads']: ex|=r.wr
            P.append(I("",'touch',rd=ex,cost=0))
        P.append(M[g]['mfma'])
        if slow and g%4==0 and slo0<=g<slo1: P.append(nop(slow-1))
        if (g+1)%G==0: cost+=4
        for i in by_gap.get(g,[]): issue_reads(i)
        if g in fr_gap:
            P.append(flag_read()); M[fr_gap[g]]['fr']=True; cost+=4
        b=budget if g<pos[('K',15,7)] else tailb
        lim=b+carry
        while fi<len(F) and F[fi][1]<=g+1 and cost+F[fi][0].cost<=lim:
            P.append(F[fi][0]); cost+=F[fi][0].cost; fi+=1
        carry=max(-8,min(4,lim-cost))
    while fi<len(F): P.append(F[fi][0]); fi+=1
    r,sts=epi(dorder[3],pk=True)
    if pair: sts=[held[0],sts[0],held[1],sts[1]]
    P+=stamp('e3')+r+sts+stamp('st')
    prog=insert_lgkm(P); prog=[x for x in prog if x.kind!='touch']
    prog,added=pad_hazards(prog,verbose)
    if dryt:
        mi=[i for i,x in enumerate(prog) if x.kind=='mfma']
        a=mi[dryt]; n=len(prog)-a
        cuts=[a+n*k//4 for k in range(4)]
        out=[]; i=0; q=0
        while i<len(prog):
            x=prog[i]
            if q<4 and i>=cuts[q] and x.kind!='st4':
                if q>0: out.append(raw("s_cbranch_execz L_drydone"))
                out.append(label(f"L_dq{q}")); q+=1
            if x.kind=='st4':
                j=i
                while j+1<len(prog) and prog[j+1].kind=='st4': j+=1
                last = all(y.kind!='st4' and y.kind!='valu' for y in prog[j+1:])
                out.append(raw("s_cbranch_execz L_drydone" if last else f"s_cbranch_execz L_sk{i}")); out+=prog[i:j+1]
                if not last: out.append(label(f"L_sk{i}"))
                i=j+1; continue
            out.append(x); i+=1
        prog=out
    if scout:
        cuts=[len(prog)*k//scout for k in range(1,scout)]
        out=[]; i=0; q=0
        while i<len(prog):
            x=prog[i]
            if q<len(cuts) and i>=cuts[q] and x.kind=='mfma':
                out.append(raw("s_cbranch_execz L_sdone")); out.append(label(f"L_sq{q+1}")); q+=1
            if x.kind=='st4' or x.text=='s_barrier':
                j=i
                while j+1<len(prog) and prog[j+1].kind=='st4': j+=1
                last = all(y.kind not in('st4','valu','dpp') for y in prog[j+1:])
                out.append(raw("s_cbranch_execz L_sdone" if last else f"s_cbranch_execz L_sk{i}")); out+=prog[i:j+1]
                if not last: out.append(label(f"L_sk{i}"))
                i=j+1; continue
            out.append(x); i+=1
        prog=out
    nh=0
    if hop:
        out=[]; cnt=0
        step=len(prog)//hop+1
        nxt=step//2
        pts=[]
        for i,x in enumerate(prog):
            if i>=nxt and x.kind in ('mfma','valu') and nh<hop:
                tgt=f"L_hop{nh+4}" if nh+4<hop else "L_hopdone"
                out.append(label(f"L_hop{nh}")); out.append(raw(f"s_cbranch_execz {tgt}")); nh+=1; nxt+=step
            out.append(x)
        assert nh==hop,(nh,hop)
        prog=out
    k0=[i for i,x in enumerate(prog) if x.kind=='mfma'][0]
    sys.stderr.write(f"consumer: {len(prog)} instrs, nops {added}, est total {est_cycles(prog)} from-first-mfma {est_cycles(prog[k0:])}\n")

    S=[]; sa=vS[0]; kf=vS[1]; sp=vP[0]
    S+=[label("L_slow")]+([raw("s_cbranch_execz L_sdone")] if scout else [])+[raw("s_waitcnt vmcnt(0) lgkmcnt(0)"), nop(15), nop(15)]
    S+=[valu("v_mov_b32",vMX,"0xff800000"), raw("s_mov_b32 s46, 0"), label("L_s1")]
    def kload():
        return [raw(f"buffer_load_dwordx4 {vr(kf+4*s,4)}, v{vGK}, s[20:23], s46 offen offset:{32*s}") for s in range(8)]+[raw("s_waitcnt vmcnt(0)")]
    S+=kload()+[mfma32(sa,kf+4*s,vQ+4*s,"0" if s==0 else sa) for s in range(8)]+max_blk(sa,vMX,False)
    S+=[raw("s_add_u32 s46, s46, 8192"),raw("s_cmp_lt_u32 s46, 131072"),raw("s_cbranch_scc1 L_s1")]
    crosshalf(S,vMX,vT1,"v_max_f32")
    S+=[valu("v_sub_f32",vNM,"0",vMX)] if cinit else [valu("v_mul_f32",vNM,sC,vMX),valu("v_sub_f32",vNM,"0",vNM)]
    S+=[valu("v_mov_b32",vLa,"0"),valu("v_mov_b32",vLb,"0")]+[valu("v_mov_b32",vO+i,"0") for i in range(64)]
    S+=[raw("s_mov_b32 s46, 0"), label("L_s2")]
    S+=kload()+[mfma32(sa,kf+4*s,vQ+4*s,"0" if s==0 else sa) for s in range(8)]
    S+=exp_blk(sa,sp,'add' if cinit else 'fma')
    for t in range(2):
        for u in range(2):
            S+=[raw("s_mov_b32 m0, s47"),raw(f"s_add_u32 s19, s46, {t*4096+u*2048}"),raw(f"buffer_load_dwordx4 v{vGV}, s[24:27], s19 offen lds"),
                raw(f"buffer_load_dwordx4 v{vGV}, s[24:27], s19 offen offset:1024 lds"),raw("s_waitcnt vmcnt(0)")]
            S+=[raw(f"ds_read_b64_tr_b16 {vr(kf+4*dt+2*u,2)}, v{vT2} offset:{64*dt}") for dt in range(4)]
            S.append(raw("s_waitcnt lgkmcnt(0)"))
        S+=[mfma32(vO+16*dt,kf+4*dt,sp+4*t,vO+16*dt) for dt in range(4)]
    S+=[nop(15),raw("s_add_u32 s46, s46, 8192"),raw("s_cmp_lt_u32 s46, 131072"),raw("s_cbranch_scc1 L_s2")]
    S.append(valu("v_add_f32",vLa,vLa,vLb)); crosshalf(S,vLa,vT1,"v_add_f32")
    S+=[trans("v_rcp_f32",vRL,vLa),nop(1)]
    for dt in range(4):
        r,sts=epi(dt); S+=r+sts
    S.append(raw("s_endpgm"))
    S,_=pad_hazards(S)

    H=[]; e=H.append
    e(f"; @launch grid=(256,1,1) block=({256+64*(nload+scout)},1,1) lds={lds}")
    e('.amdgcn_target "amdgcn-amd-amdhsa--gfx950"')
    e(f".text\n.globl {KN}\n.p2align 8\n.type {KN},@function\n{KN}:")
    e("s_load_dwordx4 s[4:7], s[0:1], 0")
    e("s_load_dwordx4 s[8:11], s[0:1], 16")
    if stamps:
        e("s_load_dwordx2 s[12:13], s[0:1], 40")
        e("s_memrealtime s[96:97]\ns_memtime s[98:99]")
    if diag is not None: e("s_memrealtime s[96:97]")
    e("s_cmp_ge_u32 s2, 256\ns_cbranch_scc1 L_end")
    e("v_lshrrev_b32 v1, 6, v0\nv_and_b32 v2, 63, v0")
    if xmap==0: e("s_and_b32 s14, s2, 7\ns_lshr_b32 s15, s2, 4\ns_lshl_b32 s15, s15, 3\ns_add_u32 s14, s14, s15")
    else: e("s_and_b32 s14, s2, 7\ns_lshr_b32 s15, s2, 4\ns_lshl_b32 s14, s14, 4\ns_add_u32 s14, s14, s15")
    e("v_readfirstlane_b32 s16, v1")
    e("s_bfe_u32 s15, s2, 0x10003")
    e("s_lshl_b32 s17, s14, 17")
    e("s_lshl_b32 s18, s14, 16\ns_lshl_b32 s19, s15, 15\ns_add_u32 s18, s18, s19")
    e(f"v_lshlrev_b32 v{vSA}, 2, v0\nv_add_u32 v{vSA}, {FB}, v{vSA}\nv_mov_b32 v{vSG}, 0\nds_write_b32 v{vSA}, v{vSG}")
    if ebar==1: e("s_waitcnt lgkmcnt(0)\ns_barrier")
    e(f"s_cmp_ge_u32 s16, {nload}\ns_cbranch_scc1 L_consumer")
    assert not (ebar and (qbar or ini or stag))
    assert not (scout and (qbar or dryt))
    if nomem==1: e("s_waitcnt lgkmcnt(0)\ns_barrier\ns_endpgm")
    if lprio: e(f"s_setprio {lprio}")
    e("s_getpc_b64 s[36:37]\nL_pc:")
    e("s_add_u32 s36, s36, L_table-L_pc\ns_addc_u32 s37, s37, 0\ns_mov_b32 s38, 128\ns_mov_b32 s39, 0x20000")
    e("v_lshrrev_b32 v3, 4, v2\nv_and_b32 v4, 15, v2\nv_lshlrev_b32 v4, 4, v4")
    e("s_lshl_b32 s44, s16, 8")
    e("v_add_u32 v4, s44, v4")
    e("v_lshl_add_u32 v6, v3, 12, v4\nv_lshl_add_u32 v7, v3, 10, v4")
    e("s_mul_i32 s42, s16, 1040\ns_mul_i32 s43, s16, 1088")
    if lin:
        e(f"s_mul_i32 s84, s16, {1040*(16//nload-1)}\ns_mul_i32 s43, s16, {1088*16//nload}\ns_mul_i32 s85, s16, {16384//nload}\ns_add_u32 s17, s17, s85\nv_lshlrev_b32 v5, 4, v2")
    e(f"s_add_u32 s44, s44, {FB}")
    e(f"s_add_u32 s46, s42, {QOFF[0]}")
    e("s_mov_b32 s30, 32768\ns_mov_b32 s31, 0x20000\ns_mov_b32 s22, 131072\ns_mov_b32 s23, 0x20000\ns_mov_b32 s26, 131072\ns_mov_b32 s27, 0x20000")
    if lin: e("s_sub_u32 s22, s22, s85\ns_sub_u32 s26, s26, s85")
    if lin==2: e("s_mov_b32 s23, 0x800000\ns_mov_b32 s27, 0x800000")
    e(f"s_movk_i32 s40, {nload*784}\ns_movk_i32 s41, {nload*832}")
    e("s_waitcnt lgkmcnt(0)")
    ldiag = diag if isinstance(diag,str) and diag.startswith('l') else None
    lst=[0]
    def lstamp(name):
        if ldiag==name: e("s_memrealtime s[60:61]")
        if stamps:
            i=lst[0]; lst[0]+=1; e(f"s_memtime s[{50+2*i}:{51+2*i}]")
    lstamp('l0')
    e("s_add_u32 s28, s4, s18\ns_addc_u32 s29, s5, 0")
    NI=16//nload
    def kq_stage(srd,m0base,soff):
        e(f"s_mov_b32 m0, {m0base}")
        for g in range(NI):
            if g==0: e("s_nop 0")
            e(f"buffer_load_dwordx4 v6, {srd}, {soff} offen offset:{g*nload*256} {ldflags} lds")
            if g<NI-1: e("s_add_u32 m0, m0, s40\ns_nop 0")
    def v_stage():
        e("s_add_u32 m0, s46, s43")
        per=4//nload
        for t in range(4):
            for rr in range(per):
                if t==0 and rr==0: e("s_nop 0")
                e(f"buffer_load_dwordx4 v7, s[24:27], s15 offen offset:{rr*nload*256} {ldflags} lds")
                if rr<per-1: e("s_add_u32 m0, m0, s41\ns_nop 0")
            if t<3: e(f"s_add_u32 m0, m0, {4352-(per-1)*nload*832}\ns_add_u32 s15, s15, 4096")
    if lin:
        _kq=kq_stage
        vo = "v5" if lin==1 else "off"; of = "offen " if lin==1 else ""
        def lin_stage(srd,soff,step):
            cur=soff
            for g in range(NI):
                if g==0: e("s_nop 0")
                e(f"buffer_load_dwordx4 {vo}, {srd}, {cur} {of}offset:{(g%4)*1024} {ldflags} lds")
                if g<NI-1:
                    if g%4==3:
                        e(f"s_add_u32 m0, m0, {4096+step}\ns_add_u32 s86, {cur}, 4096"); cur="s86"
                    else: e(f"s_add_u32 m0, m0, {step}\ns_nop 0")
        def kq_stage(srd,m0base,soff):
            if srd=="s[28:31]": return _kq(srd,m0base,soff)
            e(f"s_add_u32 m0, {m0base}, s84"); lin_stage(srd,soff,16)
        def v_stage():
            e("s_add_u32 m0, s46, s43"); lin_stage("s[24:27]","s15",64)
    def lflag(soff): e(f"s_mov_b32 m0, s44\ns_nop 0\nbuffer_load_dword v{vSG}, s[36:39], {soff} offen lds" if lin<2 else f"s_mov_b32 m0, s44\ns_nop 0\nbuffer_load_dword off, s[36:39], {soff} lds")
    if ini:
        e("s_add_u32 s20, s6, s17\ns_addc_u32 s21, s7, 0\ns_add_u32 s24, s8, s17\ns_addc_u32 s25, s9, 0")
        e(f"s_add_u32 s43, s43, {KSL}")
        cnts=[]; barred=False
        if q4: e("v_lshl_add_u32 v7, v3, 11, v4")
        for n,stg in enumerate(ini):
            k,j=stg[0],int(stg[1])
            c=NI//2+1 if k=='W' else NI+1
            lim=(NI+1)*depth
            if sum(cnts)+c>lim:
                if not barred: e("s_barrier"); barred=True
                keep=0
                for x in reversed(cnts):
                    if keep+x+c<=lim: keep+=x
                    else: break
                e(f"s_waitcnt vmcnt({keep})")
            if k=='Q':
                e(f"s_add_u32 s47, s42, {QOFF[j]}\ns_mov_b32 s45, {j*16384}"); kq_stage("s[28:31]","s47","s45")
            elif k=='W':
                e(f"s_add_u32 m0, s42, {QOFF[j//2]+(j%2)*8320}\ns_mov_b32 s45, {j*8192}")
                for g in range(8//nload):
                    e(f"buffer_load_dwordx4 v7, s[28:31], s45 offen offset:{g*nload*256} {ldflags} lds")
                    if g<8//nload-1: e("s_add_u32 m0, m0, s40\ns_nop 0")
            elif k=='K':
                e(f"s_add_u32 s47, s42, {KOFF(j)}\ns_mov_b32 s45, {j*16384}"); kq_stage("s[20:23]","s47","s45")
            else:
                e(f"s_mov_b32 s46, {VOFF(j)-KSL}\ns_mov_b32 s15, {j*16384}"); v_stage()
            lflag(str(4*(n+1))); cnts.append(c)
            if n==0: lstamp('l1')
        assert barred
    elif not stag:
        kq_stage("s[28:31]","s46","0")
        if not qbar: lflag("4")
        lstamp('l1')
        if wstag>=1: e("s_bitcmp1_b32 s2, 4\ns_cbranch_scc0 L_ws1\ns_waitcnt vmcnt(0)\nL_ws1:")
        e(f"s_add_u32 s46, s42, {QOFF[1]}\ns_movk_i32 s45, 16384")
        kq_stage("s[28:31]","s46","s45")
        if not qbar: lflag("8")
        if wstag>=2: e("s_bitcmp1_b32 s2, 4\ns_cbranch_scc0 L_ws2\ns_waitcnt vmcnt(0)\nL_ws2:")
        e("s_add_u32 s20, s6, s17\ns_addc_u32 s21, s7, 0")
        if lin==2: e("s_or_b32 s21, s21, 0x100000")
        kq_stage("s[20:23]","s42","0"); lflag("12")
    else:
        e("s_add_u32 s20, s6, s17\ns_addc_u32 s21, s7, 0")
        kq_stage("s[28:31]","s46","0")
        lstamp('l1')
        kq_stage("s[20:23]","s42","0"); lflag("8")
        e(f"s_add_u32 s47, s42, {SS}\ns_movk_i32 s45, 16384")
        kq_stage("s[20:23]","s47","s45"); lflag("12")
    lstamp('l2')
    e("s_add_u32 s24, s8, s17\ns_addc_u32 s25, s9, 0")
    if lin==2: e("s_or_b32 s25, s25, 0x100000")
    e(f"v_and_b32 v3, 3, v2\nv_lshlrev_b32 v3, 8, v3\nv_lshl_add_u32 v{vFA}, v2, 2, v3\nv_add_u32 v{vFA}, {FB+256*(nload+scout)}, v{vFA}")
    i0=(len(ini)-voff-1)//2 if ini else 1
    if ini: e(f"s_mov_b32 s46, {(i0%4)*SS}\ns_mov_b32 s49, {8*i0+8+4*voff}\ns_mov_b32 s45, {i0*16384}")
    else: e(f"s_mov_b32 s46, {SS}\ns_mov_b32 s49, 16\ns_add_u32 s43, s43, {KSL}")
    def need_for(i):
        if i<4: return 0
        req=6 if i in (4,8) else 2*(i-4)+4
        return min(2*it+4 for it in sig_iters if 2*it+4>=req)
    packed=0
    seen=0
    for i in range(1,9):
        n=need_for(i)
        if n>seen: packed|=n<<(4*(i-1)); seen=n
    packed>>=4*(i0-1)
    e(f"s_mov_b32 s48, {packed:#x}")
    if ini: pass
    elif ebar: pass
    elif not qbar: e("s_barrier")
    else:
        assert not stag
        e(f"s_add_u32 s47, s46, s42\ns_waitcnt vmcnt({2*NI+1})")
        if wstag>=3: e("s_bitcmp1_b32 s2, 4\ns_cbranch_scc0 L_ws3\ns_waitcnt vmcnt(0)\nL_ws3:")
        kq_stage("s[20:23]","s47","s45"); lflag("16")
        e(f"s_lshr_b32 s48, s48, 4\ns_mov_b32 s15, 0\ns_mov_b32 s49, 20\ns_waitcnt vmcnt({2*NI+2})\ns_barrier\ns_branch L_lv")
    if d0<depth: e(f"s_waitcnt vmcnt({(NI+1)*(d0-1)})")
    W=(NI+1)*(depth-1)
    if wv>=0: W=wv
    if stag:
        e(f"s_add_u32 s47, s42, {QOFF[1]}\ns_waitcnt vmcnt({W})")
        kq_stage("s[28:31]","s47","s45"); lflag("16")
        e("s_lshr_b32 s48, s48, 4\ns_mov_b32 s15, 0\ns_mov_b32 s49, 20\ns_branch L_lv")
    e("L_lloop:")
    if not nomem:
        e("s_and_b32 s14, s48, 15\ns_cbranch_scc0 L_lgo")
        if bar: e("s_barrier\nL_lgo:")
        else: e(f"s_branch L_lx\nL_lw:\ns_sleep {lsleep}\nL_lx:\nds_read_b32 v8, v{vFA}\ns_waitcnt lgkmcnt(0)\nv_cmp_gt_u32 vcc, s14, v8\ns_cbranch_vccnz L_lw\nL_lgo:")
    e("s_lshr_b32 s48, s48, 4\ns_sub_u32 s15, s45, 16384")
    e(f"s_cmp_eq_u32 s49, {72+4*voff}\ns_cselect_b32 s46, {XB-KSL}, s46\ns_cbranch_scc1 L_lv")
    e("s_add_u32 s47, s46, s42")
    e(f"s_waitcnt vmcnt({W})")
    kq_stage("s[20:23]","s47","s45"); lflag("s49")
    e("s_add_u32 s49, s49, 4")
    e("L_lv:")
    e(f"s_waitcnt vmcnt({W})")
    v_stage(); lflag("s49")
    e(f"s_add_u32 s49, s49, 4\ns_add_u32 s45, s45, 16384\ns_add_u32 s46, s46, {SS}\ns_cmp_eq_u32 s46, {4*SS}\ns_cselect_b32 s46, 0, s46")
    if v7e:
        e(f"s_cmp_lg_u32 s49, {8*(v7e+1)+8+4*voff}\ns_cbranch_scc1 L_nv7")
        e(f"s_mov_b32 s87, s46\ns_mov_b32 s46, {XB-KSL}\ns_mov_b32 s15, {7*16384}\ns_waitcnt vmcnt({W})")
        v_stage()
        e("s_mov_b32 s46, s87\nL_nv7:")
        e(f"s_cmp_lt_u32 s49, {72+4*voff}\ns_cbranch_scc1 L_lloop")
    else: e(f"s_cmp_lt_u32 s49, {76+4*voff}\ns_cbranch_scc1 L_lloop")
    lstamp('l3')
    e("s_waitcnt vmcnt(0)")
    lstamp('l4')
    if stamps:
        e("s_memrealtime s[94:95]\ns_waitcnt lgkmcnt(0)")
        e("s_mov_b32 s36, s12\ns_mov_b32 s37, s13\ns_mov_b32 s38, 0x1000000\ns_mov_b32 s39, 0x20000")
        e("s_cmp_lg_u32 s16, 0\ns_cbranch_scc1 L_end")
        e("s_lshl_b32 s45, s2, 8\ns_add_u32 s45, s45, 65536\nv_mov_b32 v7, s45")
        for i,r in enumerate([96,98]+[50+2*min(i,lst[0]-1) for i in range(scnt[0]+1)]+[94]):
            e(f"v_mov_b32 v8, s{r}\nbuffer_store_dword v8, v7, s[36:39], 0 offen offset:{4*i}\ns_nop 1")
    if ldiag:
        e(f"s_memrealtime s[62:63]\ns_waitcnt lgkmcnt(0)\ns_sub_u32 s67, s60, s96\ns_mul_i32 s67, s67, {dk}\ns_add_u32 s67, s67, 500\ns_min_u32 s67, s67, 100000\nL_lspin:\ns_memrealtime s[64:65]\ns_waitcnt lgkmcnt(0)\ns_sub_u32 s66, s64, s62\ns_cmp_lt_u32 s66, s67\ns_cbranch_scc1 L_lspin")
    e("L_end:\ns_endpgm")
    e(".p2align 7\nL_table:\n"+"\n".join(f".long {i}" for i in range(32)))
    e("L_consumer:")
    if cprio: e(f"s_setprio {cprio}")
    if scout:
        e(f"s_cmp_ge_u32 s16, {nload+scout}\ns_cbranch_scc1 L_cons2")
        if not ebar: e("s_waitcnt lgkmcnt(0)\ns_barrier")
        e("s_mov_b64 exec, 0\ns_mov_b64 vcc, 0")
        if vsk: e("s_setvskip -1, 0")
        e("s_nop 3")
        for k in range(1,scout): e(f"s_cmp_eq_u32 s16, {nload+k}\ns_cbranch_scc1 L_sq{k}")
        e("s_branch L_main\nL_sdone:")
        if vsk: e("s_setvskip 0, 0")
        e("s_endpgm\nL_cons2:")
    e(f"s_sub_u32 s16, s16, {nload+scout}")
    e(f"v_and_b32 v3, {nload-1}, v2\nv_lshlrev_b32 v3, 8, v3\nv_lshl_add_u32 v{vFA}, v2, 2, v3")
    if codepf:
        e("s_getpc_b64 s[36:37]\nL_pc2:\ns_add_u32 s36, s36, L_main-L_pc2\ns_addc_u32 s37, s37, 0\ns_mov_b32 s38, L_slow-L_main\ns_mov_b32 s39, 0x20000")
        e("s_lshr_b32 s45, s2, 3\ns_lshl_b32 s45, s45, 2\ns_add_u32 s45, s45, s16\ns_lshl_b32 s45, s45, 7\nv_mov_b32 v9, 0\nbuffer_load_dword v31, v9, s[36:39], s45 offen")
    if hop:
        e("s_mov_b64 exec, 0\ns_cmp_eq_u32 s16, 0\ns_cbranch_scc1 L_hop0\ns_cmp_eq_u32 s16, 1\ns_cbranch_scc1 L_hop1\ns_cmp_eq_u32 s16, 2\ns_cbranch_scc1 L_hop2\ns_branch L_hop3\nL_hopdone:\ns_mov_b64 exec, -1")
    e(f"v_add_u32 v{vFA}, {FB}, v{vFA}")
    e("v_lshrrev_b32 v4, 5, v2\nv_and_b32 v5, 15, v2\nv_bfe_u32 v6, v2, 4, 1")
    e(f"v_mul_u32_u24 v{vKA[0]}, 1040, v5\nv_lshl_add_u32 v{vKA[0]}, v6, 8, v{vKA[0]}\nv_lshl_add_u32 v{vKA[0]}, v4, 4, v{vKA[0]}\nv_add_u32 v{vKA[1]}, {2*SS}, v{vKA[0]}")
    e("v_lshrrev_b32 v7, 2, v5\nv_and_b32 v8, 3, v5")
    e("v_lshlrev_b32 v3, 8, v4\nv_lshl_add_u32 v3, v6, 5, v3\nv_lshl_add_u32 v3, v8, 3, v3")
    if lin: e("v_mul_u32_u24 v3, 4352, v4\nv_lshl_add_u32 v3, v6, 5, v3\nv_lshl_add_u32 v3, v8, 3, v3")
    e(f"v_mul_u32_u24 v{vT2}, 1088, v7\nv_add_u32 v{vT2}, v{vT2}, v3")
    e(f"v_add_u32 v{vVA[0]}, {KSL}, v{vT2}\nv_add_u32 v{vVA[1]}, {KSL+2*SS}, v{vT2}\nv_add_u32 v{vVA[2]}, {XB}, v{vT2}")
    e(f"s_mul_i32 s47, s16, {STG}\ns_add_u32 s47, s47, {SB}")
    e(f"v_lshlrev_b32 v{vT2}, 10, v4\nv_lshl_add_u32 v{vT2}, v7, 8, v{vT2}\nv_lshl_add_u32 v{vT2}, v6, 5, v{vT2}\nv_lshl_add_u32 v{vT2}, v8, 3, v{vT2}\nv_add_u32 v{vT2}, s47, v{vT2}")
    e(f"v_and_b32 v3, 31, v2\nv_lshlrev_b32 v{vGK}, 8, v3\nv_lshl_add_u32 v{vGK}, v4, 4, v{vGK}")
    e(f"v_lshlrev_b32 v{vGV}, 4, v2")
    e(f"s_lshl_b32 s45, s16, 13\nv_bfe_u32 v3, v2, 2, 3\nv_lshlrev_b32 v{vOA}, 10, v3\nv_lshl_add_u32 v{vOA}, v4, 8, v{vOA}\nv_lshl_add_u32 v{vOA}, v8, 4, v{vOA}\nv_add_u32 v{vOA}, s45, v{vOA}")
    e(f"s_mov_b32 {sC}, {f2u(C_SCALE):#x}\ns_mov_b32 {sTHR}, {f2u(lthr):#x}")
    e("s_mov_b32 s76, 0x55555555\ns_mov_b32 s77, s76\ns_not_b64 s[78:79], s[76:77]\ns_mov_b32 s80, 0x33333333\ns_mov_b32 s81, s80\ns_not_b64 s[82:83], s[80:81]")
    e(f"s_lshr_b32 s46, s16, 1\ns_mov_b32 s45, {QOFF[0]}\ns_cmp_eq_u32 s46, 0\ns_cselect_b32 s45, s45, {QOFF[1]}\ns_and_b32 s19, s16, 1\ns_lshl_b32 s19, s19, 9\ns_add_u32 s45, s45, s19\ns_add_u32 s46, s46, 1")
    if stag: e("s_lshl_b32 s46, s46, 1")
    if ini and not q4: e(f"s_cmp_eq_u32 s46, 1\ns_cselect_b32 s46, {ini.index('Q0')+1}, {ini.index('Q1')+1}")
    e(f"v_add_u32 v{vT1}, s45, v{vKA[0]}")
    if q4:
        pk=sum((ini.index(f"W{w}")+1)<<(8*w) for w in range(4))
        e(f"s_lshl_b32 s46, s16, 3\ns_lshr_b32 s46, {pk:#x}, s46\ns_and_b32 s46, s46, 255")
        e(f"s_sub_u32 s45, s45, s19\ns_and_b32 s19, s16, 1\ns_mul_i32 s19, s19, 8320\ns_add_u32 s45, s45, s19")
        e(f"v_and_b32 v3, 7, v2\nv_mul_u32_u24 v{vT1}, 1040, v3\nv_bfe_u32 v3, v2, 3, 2\nv_lshl_add_u32 v{vT1}, v3, 8, v{vT1}\nv_lshl_add_u32 v{vT1}, v4, 4, v{vT1}\nv_add_u32 v{vT1}, s45, v{vT1}")
    if dryt:
        for r in range(vFR,vFR+4*NFR): e(f"v_mov_b32 v{r}, 0")
        e(f"v_mov_b32 v9, v{vT1}")
        e("s_mov_b64 exec, 0\ns_cmp_eq_u32 s16, 0\ns_cbranch_scc1 L_dq0\ns_cmp_eq_u32 s16, 1\ns_cbranch_scc1 L_dq1\ns_cmp_eq_u32 s16, 2\ns_cbranch_scc1 L_dq2\ns_branch L_dq3\nL_drydone:\ns_mov_b64 exec, -1")
        e(f"v_mov_b32 v{vT1}, v9")
        if stamps: e("s_memtime s[72:73]")
    e("s_waitcnt lgkmcnt(0)")
    e("s_add_u32 s32, s10, s18\ns_addc_u32 s33, s11, 0\ns_mov_b32 s34, 32768\ns_mov_b32 s35, 0x20000")
    e("s_add_u32 s20, s6, s17\ns_addc_u32 s21, s7, 0\ns_mov_b32 s22, 131072\ns_mov_b32 s23, 0x20000")
    e("s_add_u32 s24, s8, s17\ns_addc_u32 s25, s9, 0\ns_mov_b32 s26, 131072\ns_mov_b32 s27, 0x20000")
    if not ebar: e("s_barrier")
    if stamps: e("s_mov_b32 s74, 0\ns_mov_b32 s75, 0")
    e("s_branch L_main")
    e(text(rare))
    e(".p2align 3\nL_main:")
    e(text(prog))
    if stamps:
        ns=scnt[0]
        e("s_waitcnt vmcnt(0)")
        e(f"s_memtime s[{50+2*ns}:{51+2*ns}]\ns_memrealtime s[{52+2*ns}:{53+2*ns}]\ns_waitcnt lgkmcnt(0)")
        e("s_mov_b32 s36, s12\ns_mov_b32 s37, s13\ns_mov_b32 s38, 0x1000000\ns_mov_b32 s39, 0x20000")
        e("s_cmp_lg_u32 s16, 3\ns_cbranch_scc1 L_end2")
        e("s_lshl_b32 s45, s2, 8\nv_mov_b32 v7, s45")
        regs=[96,98]+[50+2*i for i in range(ns+2)]
        assert regs[-1]<74
        regs+=[74,75]
        if dryt: regs[2]=72
        for i,r in enumerate(regs):
            e(f"v_mov_b32 v8, s{r}\nbuffer_store_dword v8, v7, s[36:39], 0 offen offset:{4*i}\ns_nop 1")
        sys.stderr.write(f"nstamps={len(regs)}\n")
        e("L_end2:")
    if diag is not None and not ldiag:
        e("s_waitcnt vmcnt(0)")
        if diag=='end': e("s_memrealtime s[60:61]")
        e(f"s_memrealtime s[62:63]\ns_waitcnt lgkmcnt(0)\ns_sub_u32 s67, s60, s96\ns_mul_i32 s67, s67, {dk}\ns_min_u32 s67, s67, 100000\nL_spin:\ns_memrealtime s[64:65]\ns_waitcnt lgkmcnt(0)\ns_sub_u32 s66, s64, s62\ns_cmp_lt_u32 s66, s67\ns_cbranch_scc1 L_spin")
    e("s_endpgm")
    e(text(S))
    e(f'.section .rodata,"a"\n.p2align 6\n.amdhsa_kernel {KN}')
    e(f"  .amdhsa_next_free_vgpr 256\n  .amdhsa_next_free_sgpr 102\n  .amdhsa_accum_offset 256\n  .amdhsa_group_segment_fixed_size 0\n  .amdhsa_kernarg_size 48\n  .amdhsa_user_sgpr_count 2\n  .amdhsa_user_sgpr_kernarg_segment_ptr 1\n  .amdhsa_system_sgpr_workgroup_id_x 1\n.end_amdhsa_kernel")
    return "\n".join(H)+"\n"

if __name__=="__main__":
    name=sys.argv[1]; kw={}
    for a in sys.argv[2:]:
        k,v=a.split("=",1)
        try: v=int(v)
        except:
            try: v=float(v)
            except: pass
        kw[k]=v
    open(name,"w").write(gen(**kw))
```

```python
import sys, math, struct
from asmlib import *

KN="standalone__gqa_softmax__near_ridge_kernel"
C_SCALE = math.log2(math.e)/math.sqrt(128.0)
def f2u(x): return struct.unpack("<I",struct.pack("<f",x))[0]

KSL=16768; VSL=16896; SS=KSL+VSL
XB=4*SS; FB=XB+VSL; SB=FB+2048; STG=2048
assert SB+4*STG<=163840
def KOFF(j): return (j%4)*SS
def VOFF(j): return XB if j==7 else ((j+1)%4)*SS+KSL
QOFF=[VOFF(3),XB]
NL=2; NI=8

def mfma16(d,a,b,c):
    ct = vr(c,4) if isinstance(c,int) else c
    rd=R(a,4)+R(b,4)+(R(c,4) if isinstance(c,int) else [])
    return I(f"v_mfma_f32_16x16x32_bf16 {vr(d,4)}, {vr(a,4)}, {vr(b,4)}, {ct}",'mfma',rd=rd,wr=R(d,4),cost=8,passes=4,
             srcc=(R(c,4) if isinstance(c,int) else []))
def pkmul(d,a,b):
    return I(f"v_pk_mul_f32 {vr(d,2)}, {vr(a,2)}, {vr(b,2)}",'valu',rd=R(a,2)+R(b,2),wr=R(d,2),cost=6)
def cnd_dpp(d,s0,s1,qp):
    return I(f"v_cndmask_b32_dpp v{d}, v{s0}, v{s1}, vcc quad_perm:{qp} row_mask:0xf bank_mask:0xf",'dpp',rd=[s0,s1],wr=[d])

def gen(depth=3, ldflags="nt", stflags="sc1", stamps=0, pf=7, G=4, lthr=2.0**24, budget=8.0, fl=2, verbose=0, diag=None, dk=1,
        nomem=0, NFR=8, lsleep=4, forceslow=0, HZ=3, tailb=12, order=4, stc=16, sigs="1,3", stset='K0,K2,K4,K6,st',
        late=2, qsleep=4, osleep=2, init='Q0,Q1,K0,K1,V0', rt=0, wv=-1, v7e=0, pk2=1, cmax=4, cb=6, rk=0, ov=1):
    vONE=4
    vKA=[10,11]; vVA=[12,13,14]; vFA,vSA=15,16
    vNM=[17,18]; vMX=[19,20]; vT1=21; vOA=26
    vRL=[22,24]
    vF=[27,28]; vSG=29; vGK=30; vGV=31; vT2=9; vT3=8
    vQ=32; vFR=64
    vNB=vFR+4*NFR; vL=vNB+8
    vS=[vNB+16+16*i for i in range(3)]
    vP=[vS[2]+16+8*i for i in range(4)]
    vO=vP[3]+8
    assert vO+64<=256
    sC="s40"; sTHR="s41"
    sEV,sOD,sLO,sHI="s[76:77]","s[78:79]","s[80:81]","s[82:83]"
    ini=init.split(','); assert len(ini) in (5,7)
    LK=lambda j: ini.index(f"K{j}")+1 if f"K{j}" in ini else 2*j+2
    LV=lambda j: ini.index(f"V{j}")+1 if f"V{j}" in ini else (2*j+5 if j<7 else 18)
    sig_iters=[int(x) for x in str(sigs).split(",")]
    rare=[]; scnt=[0]
    def stamp(name):
        o=[]
        if diag==name: o.append(raw("s_memrealtime s[60:61]"))
        if stamps and name in stset.split(','):
            i=scnt[0]; scnt[0]+=1; o.append(raw(f"s_memtime s[{50+2*i}:{51+2*i}]"))
            if rt: i=scnt[0]; scnt[0]+=1; o.append(raw(f"s_memrealtime s[{50+2*i}:{51+2*i}]"))
        return o
    cn=[0]
    def flag_read():
        r=vF[cn[0]%2]; return I(f"ds_read_b32 v{r}, v{vFA}",'dsr',rd=[vFA],wr=[r])
    def flag_check(val,name):
        r=vF[cn[0]%2]; cn[0]+=1
        if nomem: return stamp(name)
        rare.extend([label(f"L_spin{name}"), raw(f"s_sleep {qsleep if name=='q' else osleep}"), raw(f"ds_read_b32 v{r}, v{vFA}"), raw("s_waitcnt lgkmcnt(0)"),
                     raw(f"v_cmp_gt_u32 vcc, {val}, v{r}"), raw(f"s_cbranch_vccnz L_spin{name}"), raw(f"s_branch L_back{name}")])
        return [I(f"v_cmp_gt_u32 vcc, {val}, v{r}\n    s_cbranch_vccnz L_spin{name}\nL_back{name}:",'valu',rd=[r],sw=['vcc'],cost=8)]+stamp(name)
    def signal(val): return [valu("v_mov_b32",vSG,str(val)), I(f"ds_write_b32 v{vSA}, v{vSG}",'dsw',rd=[vSA,vSG])]
    def Oreg(dl,x): return vO+16*(dl//2)+8*(dl%2)+4*x

    M=[]; nfr=[0]
    def newf():
        f=vFR+4*(nfr[0]%NFR); nfr[0]+=1; return f
    def addr(base,off):
        ss=off//SS; return (base[ss//2], off-(ss//2)*2*SS)
    def add_qk(h):
        j,u=divmod(h,2); d=vS[h%3]
        for kp in range(2):
            for s in range(4):
                f=newf(); a,o=addr(vKA,KOFF(j)+(2*u+kp)*256+16*s)
                mf=[]
                for x in range(2):
                    dd=d+8*x+4*kp
                    c0=(vNB+4*x) if h>=2 else "0"
                    mf.append(mfma16(dd,f,vQ+16*x+4*s,c0 if s==0 else dd))
                M.append(dict(mf=mf,reads=[dsr128(f,a,o)],st=('K',j),id=('K',h,4*kp+s)))
    ldone=set()
    def one_pv(h,dl):
        j,u=divmod(h,2); f=newf(); rds=[]
        for kp in range(2):
            io=(2*u+kp)*256+32*dl
            a,o=addr(vVA,VOFF(j)-KSL+io) if j<7 else (vVA[2],io)
            rds.append(dsrtr(f+2*kp,a,o))
        mf=[mfma16(Oreg(dl,x),f,vP[h%4]+4*x,"0" if h==0 else Oreg(dl,x)) for x in range(2)]
        if h not in ldone:
            ldone.add(h)
            mf+=[mfma16(vL+4*x,vONE,vP[h%4]+4*x,"0" if h==0 else vL+4*x) for x in range(2)]
        M.append(dict(mf=mf,reads=rds,st=('V',j),id=('V',h,dl)))
    def add_pv(h,dls=range(8)):
        for dl in dls: one_pv(h,dl)
    def pvt(j,cg):
        for h in (2*j,2*j+1): add_pv(h,(2*cg,2*cg+1))
    add_qk(0); add_qk(1); add_qk(2); add_qk(3); add_pv(0); add_pv(1)
    for i in range(2,7):
        add_qk(2*i); add_pv(2*i-2); add_qk(2*i+1); add_pv(2*i-1)
    add_qk(14); add_qk(15)
    if order==4: seq=[(6,0),(6,1),(7,0),(7,1),(6,2),(7,2),(6,3),(7,3)]
    elif order==1: seq=[(6,3),(6,2),(6,0),(7,0),(6,1),(7,1),(7,2),(7,3)]
    for j,cg in seq: pvt(j,cg)
    NM=len(M); assert NM==256
    pos={m['id']:i for i,m in enumerate(M)}
    first_use={}; last_use={}
    for i,m in enumerate(M):
        first_use.setdefault(m['st'],i); last_use[m['st']]=i
    for st,i in first_use.items(): M[i]['need']=(LK(st[1]) if st[0]=='K' else LV(st[1]), f"{st[0]}{st[1]}")
    if v7e: del M[first_use[('V',7)]]['need']
    for it in sig_iters: M[max(last_use[('K',it)],last_use[('V',it-1)])]['sig']=2*it+4
    F=[]
    def addF(lst,avail,due):
        for x in lst: F.append([x,avail,due])
    def xlane(o,regs,tmps,op):
        for pm in (perm16,perm32):
            for r,t in zip(regs,tmps): o.append(valu("v_mov_b32",t,r))
            for r,t in zip(regs,tmps): o.append(pm(r,t))
            for r,t in zip(regs,tmps): o.append(valu(op,r,r,t))
    def max8(src,dst,first):
        if first: return [valu("v_max3_f32",dst,src,src+1,src+2),valu("v_max3_f32",dst,dst,src+3,src+4),valu("v_max3_f32",dst,dst,src+5,src+6),valu("v_max_f32",dst,dst,src+7)]
        return [valu("v_max3_f32",dst,dst,src+2*k,src+2*k+1) for k in range(4)]
    def exp_blk(src,dstp,pre):
        seq=[]; n=16
        for i in range(n+3):
            if i<n and pre: seq.append(valu("v_add_f32",src+i,src+i,vNM[i//8]))
            if 0<=i-1<n: seq.append(trans("v_exp_f32",src+i-1,src+i-1))
            if i-3>=0 and (i-3)%2==1:
                k=(i-3)//2; seq.append(valu("v_cvt_pk_bf16_f32",dstp+k,src+2*k,src+2*k+1))
        return seq
    a,b=max8(vS[0],vMX[0],True),max8(vS[0]+8,vMX[1],True)
    st=[y for p in zip(a,b) for y in p]; xlane(st,vMX,[vT1,vT3],"v_max_f32")
    st+=[valu("v_sub_f32",vNM[x],"0",vMX[x]) for x in range(2)]+[valu("v_sub_f32",vNB+i,"0",vMX[i//4]) for i in range(8)]
    HS=1 if HZ<=3 else 2
    addF(st,8+HS,16)
    for h in range(16):
        av=pos[('K',h,7)]+1+HS
        dueS=pos[('K',h+3,0)] if h+3<16 else NM
        fu=min(pos[('V',h,dl)] for dl in range(8))
        for x in exp_blk(vS[h%3],vP[h%4],h<2):
            a=av; d=dueS
            if x.text.startswith("v_cvt"):
                d=min(d,fu)
                if h>=4: a=max(a,max(pos[('V',h-4,dl)] for dl in range(8))+1)
            F.append([x,a,d])
    lpos=min(pos[('V',15,dl)] for dl in range(8))
    br="" if nomem else ("\n    s_cbranch_vccnz L_slow" if not forceslow else "\n    s_branch L_slow")
    fin=[valu("v_max_f32",vT1,vL,vL+4),valu("v_add_f32",vT3,vL,vL+4),trans("v_rcp_f32",vRL[0],vL),trans("v_rcp_f32",vRL[1],vL+4),
         I(f"v_cmp_nge_f32 vcc, {sTHR}, v{vT3}"+br,'valu',rd=[vT3],sw=['vcc'],sr=[sTHR],cost=8),
         valu("v_mov_b32",vRL[0]+1,vRL[0]),valu("v_mov_b32",vRL[1]+1,vRL[1])][1:]
    addF(fin,lpos+1+HS,NM+1)
    def setvcc(s): return I(f"s_mov_b64 vcc, {s}",'salu')
    def epi(cg,pk=False):
        o=vO+16*cg; r=[]
        xof=lambda k:(k//4)%2
        r+=[pkmul(o+2*k,o+2*k,vRL[xof(2*k)]) for k in range(8)] if pk else [valu("v_mul_f32",o+k,o+k,vRL[xof(k)]) for k in range(16)]
        r+=[valu("v_cvt_pk_bf16_f32",o+k,o+2*k,o+2*k+1) for k in range(8)]
        W=lambda d,x,e:o+4*d+2*x+e; X=lambda d,x,e:o+8+4*d+2*x+e
        de=[(d,e) for d in range(2) for e in range(2)]; xe=[(x,e) for x in range(2) for e in range(2)]
        r+=[perm32(W(d,0,e),W(d,1,e)) for d,e in de]
        r+=[setvcc(sEV)]+[cnd_dpp(X(d,0,e),W(d,1,e),W(d,0,e),"[1,0,3,2]") for d,e in de]
        r+=[setvcc(sOD)]+[cnd_dpp(X(d,1,e),W(d,0,e),W(d,1,e),"[1,0,3,2]") for d,e in de]
        r+=[setvcc(sLO)]+[cnd_dpp(W(0,x,e),X(1,x,e),X(0,x,e),"[2,3,0,1]") for x,e in xe]
        r+=[setvcc(sHI)]+[cnd_dpp(W(1,x,e),X(0,x,e),X(1,x,e),"[2,3,0,1]") for x,e in xe]
        r+=[perm16(W(d,0,e),W(d,1,e)) for d,e in de]
        sts=[I(f"buffer_store_dwordx4 {vr(o+4*t,4)}, v{vOA}, s[32:35], 0 offen offset:{512*t+64*cg} {stflags}".rstrip(),'st4',rd=[vOA]+R(o+4*t,4),cost=stc) for t in range(2)]
        sts[1].cost=0
        return r+sts
    lastcg={cg:max(i for i,m in enumerate(M) if m['id'][0]=='V' and m['id'][2]//2==cg) for cg in range(4)}
    corder=sorted(range(4),key=lambda c:lastcg[c])
    for n,cg in enumerate(corder[:3]):
        late2=(pk2 and n==2)
        addF(epi(cg,pk=late2),(lastcg[cg]+1+HS) if not late2 else NM+5,NM+1)
    assert max(i for i,m in enumerate(M) if 'need' in m)-pf<lpos
    P=[]
    P+=[flag_read()]+flag_check("s46","q")
    for x in range(2):
        for s in range(4): P.append(dsr128(vQ+16*x+4*s,vT1,256*x+16*s))
    P+=[valu("v_mov_b32",vRL[0],sC),valu("v_mov_b32",vRL[0]+1,sC)]
    t=vS[2]
    for r in range(34):
        if r<32:
            a=t+2*(r%8); P+=[valu("v_lshlrev_b32",a,"16",vQ+r),valu("v_and_b32",a+1,"0xffff0000",vQ+r)]
        if 1<=r<33:
            b=t+2*((r-1)%8); P.append(pkmul(b,b,vRL[0]))
        if r>=2:
            b=t+2*((r-2)%8); P.append(valu("v_cvt_pk_bf16_f32",vQ+r-2,b,b+1))
    fi=0
    def reads_for(i):
        m=M[i]; o=[]
        if 'need' in m:
            if not m.get('fr'): o.append(flag_read())
            o+=flag_check(*m['need'])
        o+=m['reads']
        if 'sig' in m: o+=signal(m['sig'])
        return o
    needs=[i for i in range(NM) if 'need' in M[i]]
    lates=[i for i in needs if M[i]['need'][1] in ('K1','V0')] if late else []
    def rg(i):
        g=i-pf
        for b in lates:
            if b<=i: g=max(g,b-late)
        return max(g,-1)
    by_gap={}
    for i in range(NM): by_gap.setdefault(rg(i),[]).append(i)
    fr_gap={}
    for a,b in zip([None]+needs[:-1],needs):
        g=rg(b)-fl
        if a is not None: g=max(g,rg(a))
        if 0<=g<rg(b): fr_gap[g]=b
    for i in by_gap[-1]: P+=reads_for(i)
    E=[]; C=[]
    nsm=sum(1 for _ in F)
    for it in F:
        if it[0].text.startswith("v_cvt") and list(it[0].wr)[0]<vO: C.append(it+[len(E)])
        else: E.append(it)
    ei=0; ci=0; carry=0.0
    def force(g):
        nonlocal ei,ci
        while True:
            ce=[k for k in range(ci,min(ci+40,len(C))) if C[k][2]<=g]
            ee=[k for k in range(ei,min(ei+150,len(E))) if E[k][2]<=g]
            needE=max([k+1 for k in ee]+[C[k][3] for k in ce]+[0])
            if ci<len(C) and ce and C[ci][3]<=ei:
                assert C[ci][1]<=g+HS; P.append(C[ci][0]); ci+=1
            elif ei<needE:
                assert E[ei][1]<=g+HS,("forced before avail",E[ei][0].text,E[ei][1],g); P.append(E[ei][0]); ei+=1
            else: break
    for g in range(NM):
        force(g)
        if G>1 and g%G==0:
            ex=set()
            for k in range(1,G):
                if g+k<NM and rg(g+k)<g-1:
                    for r in M[g+k]['reads']: ex|=r.wr
            P.append(I("",'touch',rd=ex,cost=0))
        fixed=[]
        for i in by_gap.get(g,[]): fixed+=reads_for(i)
        if g in fr_gap:
            fixed.append(flag_read()); M[fr_gap[g]]['fr']=True
        b=budget if g<pos[('K',15,7)] else tailb
        nmf=len(M[g]['mf'])
        for k,mf in enumerate(M[g]['mf']):
            P.append(mf)
            cost=0
            if k==rk: P+=fixed; cost+=sum(x.cost for x in fixed)
            if k==nmf-1 and (g+1)%G==0: cost+=4
            av=g+1 if k==nmf-1 else g
            while cost<b or (ei<len(E) and E[ei][0].cost==0):
                room=b-cost
                cok = ci<len(C) and C[ci][3]<=ei and C[ci][1]<=av
                eok = ei<len(E) and E[ei][1]<=av
                if cok and (not eok or E[ei][0].cost>room): P.append(C[ci][0]); cost+=4; ci+=1
                elif eok and (E[ei][0].cost<=room or ov): P.append(E[ei][0]); cost+=E[ei][0].cost; ei+=1
                else: break
    force(10**6)
    assert ei==len(E) and ci==len(C)
    P+=epi(corder[3],pk=True)+stamp('st')
    prog=insert_lgkm(P); prog=[x for x in prog if x.kind!='touch']
    prog,added=pad_hazards(prog,verbose)
    out=[]; i=0
    while i<len(prog):
        x=prog[i]
        if x.kind=='st4':
            j=i
            while j+1<len(prog) and prog[j+1].kind=='st4': j+=1
            last = all(y.kind not in('st4','valu','dpp') for y in prog[j+1:])
            out.append(raw("s_cbranch_execz L_sdone" if last else f"s_cbranch_execz L_sk{i}")); out+=prog[i:j+1]
            if not last: out.append(label(f"L_sk{i}"))
            i=j+1; continue
        out.append(x); i+=1
    prog=out
    k0=[i for i,x in enumerate(prog) if x.kind=='mfma'][0]
    sys.stderr.write(f"consumer: {len(prog)} instrs, nops {added}, issue-sum {sum(x.cost for x in prog[k0:])} est total {est_cycles(prog)} from-first-mfma {est_cycles(prog[k0:])}\n")

    S=[]; sa=vS[0]; kf=vS[1]; sp=vP[0]
    S+=[label("L_slow"),raw("s_cbranch_execz L_sdone"),raw("s_waitcnt vmcnt(0) lgkmcnt(0)"), nop(15), nop(15)]
    S+=[valu("v_mov_b32",vMX[x],"0xff800000") for x in range(2)]+[raw("s_mov_b32 s46, 0"), label("L_s1")]
    def kpart():
        o=[raw("s_add_u32 s19, s46, 4096")]
        for kp in range(2):
            for s in range(4): o.append(raw(f"buffer_load_dwordx4 {vr(kf+16*kp+4*s,4)}, v{vGK}, s[20:23], {'s46' if kp==0 else 's19'} offen offset:{16*s}"))
        o.append(raw("s_waitcnt vmcnt(0)"))
        for kp in range(2):
            for s in range(4):
                for x in range(2):
                    dd=sa+8*x+4*kp; o.append(mfma16(dd,kf+16*kp+4*s,vQ+16*x+4*s,"0" if s==0 else dd))
        return o
    S+=kpart()+max8(sa,vMX[0],False)+max8(sa+8,vMX[1],False)
    S+=[raw("s_add_u32 s46, s46, 8192"),raw("s_cmp_lt_u32 s46, 131072"),raw("s_cbranch_scc1 L_s1")]
    xlane(S,vMX,[vT1,vT3],"v_max_f32")
    S+=[valu("v_sub_f32",vNM[x],"0",vMX[x]) for x in range(2)]
    S+=[valu("v_mov_b32",vL+i,"0") for i in range(8)]+[valu("v_mov_b32",vO+i,"0") for i in range(64)]
    S+=[raw("s_mov_b32 s46, 0"), label("L_s2")]
    S+=kpart()+exp_blk(sa,sp,True)
    for half in range(2):
        for kp in range(2):
            S+=[raw("s_mov_b32 m0, s47"),raw(f"s_add_u32 s19, s46, {kp*4096+half*128}"),raw(f"buffer_load_dwordx4 v{vGV}, s[24:27], s19 offen lds"),
                raw("s_add_u32 m0, s47, 1024"),raw("s_add_u32 s19, s19, 2048"),raw(f"buffer_load_dwordx4 v{vGV}, s[24:27], s19 offen lds"),raw("s_waitcnt vmcnt(0)")]
            S+=[raw(f"ds_read_b64_tr_b16 {vr(kf+4*dl+2*kp,2)}, v{vT2} offset:{32*dl}") for dl in range(4)]
            S.append(raw("s_waitcnt lgkmcnt(0)"))
        S+=[mfma16(Oreg(4*half+dl,x),kf+4*dl,sp+4*x,Oreg(4*half+dl,x)) for dl in range(4) for x in range(2)]
        S.append(nop(7))
    S+=[mfma16(vL+4*x,vONE,sp+4*x,vL+4*x) for x in range(2)]
    S+=[nop(15),raw("s_add_u32 s46, s46, 8192"),raw("s_cmp_lt_u32 s46, 131072"),raw("s_cbranch_scc1 L_s2")]
    S+=[trans("v_rcp_f32",vRL[0],vL),trans("v_rcp_f32",vRL[1],vL+4),nop(1)]
    for cg in range(4): S+=epi(cg)
    S.append(raw("s_endpgm"))
    S,_=pad_hazards(S)

    H=[]; e=H.append
    e(f"; @launch grid=(256,1,1) block=(448,1,1) lds=163840")
    e('.amdgcn_target "amdgcn-amd-amdhsa--gfx950"')
    e(f".text\n.globl {KN}\n.p2align 8\n.type {KN},@function\n{KN}:")
    e("s_load_dwordx4 s[4:7], s[0:1], 0\ns_load_dwordx4 s[8:11], s[0:1], 16")
    if stamps: e("s_load_dwordx2 s[12:13], s[0:1], 40\ns_memrealtime s[96:97]\ns_memtime s[98:99]")
    if diag is not None: e("s_memrealtime s[96:97]")
    e("s_cmp_ge_u32 s2, 256\ns_cbranch_scc1 L_end")
    e("v_lshrrev_b32 v1, 6, v0\nv_and_b32 v2, 63, v0")
    e("s_and_b32 s14, s2, 7\ns_lshr_b32 s15, s2, 4\ns_lshl_b32 s15, s15, 3\ns_add_u32 s14, s14, s15")
    e("v_readfirstlane_b32 s16, v1")
    e("s_bfe_u32 s15, s2, 0x10003\ns_lshl_b32 s17, s14, 17")
    e("s_lshl_b32 s18, s14, 16\ns_lshl_b32 s19, s15, 15\ns_add_u32 s18, s18, s19")
    e(f"v_lshlrev_b32 v{vSA}, 2, v0\nv_add_u32 v{vSA}, {FB}, v{vSA}\nv_mov_b32 v{vSG}, 0\nds_write_b32 v{vSA}, v{vSG}")
    e(f"s_cmp_ge_u32 s16, {NL}\ns_cbranch_scc1 L_consumer")
    if nomem==1: e("s_waitcnt lgkmcnt(0)\ns_barrier\ns_endpgm")
    e("s_getpc_b64 s[36:37]\nL_pc:")
    e("s_add_u32 s36, s36, L_table-L_pc\ns_addc_u32 s37, s37, 0\ns_mov_b32 s38, 128\ns_mov_b32 s39, 0x20000")
    e("v_lshrrev_b32 v3, 4, v2\nv_and_b32 v4, 15, v2\nv_lshlrev_b32 v4, 4, v4\ns_lshl_b32 s44, s16, 11\nv_add_u32 v4, s44, v4\nv_lshl_add_u32 v6, v3, 12, v4")
    e("v_lshlrev_b32 v5, 4, v2")
    e(f"s_mul_i32 s42, s16, {8*1040+128}\ns_mul_i32 s43, s16, {8*1056}\ns_add_u32 s43, s43, {KSL}\ns_lshl_b32 s85, s16, 13\ns_add_u32 s17, s17, s85")
    e(f"s_lshl_b32 s44, s16, 8\ns_add_u32 s44, s44, {FB}")
    e("s_mov_b32 s30, 32768\ns_mov_b32 s31, 0x20000\ns_sub_u32 s22, 131072, s85\ns_mov_b32 s23, 0x20000\ns_mov_b32 s26, s22\ns_mov_b32 s27, 0x20000")
    e("s_movk_i32 s40, 784")
    e("s_waitcnt lgkmcnt(0)")
    lst=[0]
    def lstamp():
        if stamps:
            i=lst[0]; lst[0]+=1; e(f"s_memtime s[{50+2*i}:{51+2*i}]")
    lstamp()
    e("s_add_u32 s28, s4, s18\ns_addc_u32 s29, s5, 0\ns_add_u32 s20, s6, s17\ns_addc_u32 s21, s7, 0\ns_add_u32 s24, s8, s17\ns_addc_u32 s25, s9, 0")
    def q_stage(soff):
        for g in range(NI):
            e(f"buffer_load_dwordx4 v6, s[28:31], {soff} offen offset:{g*256} {ldflags} lds")
            if g<NI-1: e("s_add_u32 m0, m0, s40\ns_nop 0")
    def lin_stage(srd,soff,step):
        cur=soff
        for g in range(NI):
            e(f"buffer_load_dwordx4 v5, {srd}, {cur} offen offset:{(g%4)*1024} {ldflags} lds")
            if g<NI-1:
                if g%4==3: e(f"s_add_u32 m0, m0, {4096+step}\ns_add_u32 s86, {cur}, 4096"); cur="s86"
                else: e(f"s_add_u32 m0, m0, {step}\ns_nop 0")
    def lflag(soff): e(f"s_mov_b32 m0, s44\ns_nop 0\nbuffer_load_dword v{vSG}, s[36:39], {soff} offen lds")
    W=(NI+1)*(depth-1)
    for n,stg in enumerate(ini):
        k,j=stg[0],int(stg[1])
        if n==depth: e("s_barrier")
        if n>=depth: e(f"s_waitcnt vmcnt({W})")
        if k=='Q': e(f"s_add_u32 m0, s42, {QOFF[j]}\ns_mov_b32 s45, {j*16384}"); q_stage("s45")
        elif k=='K': e(f"s_add_u32 m0, s42, {KOFF(j)}\ns_mov_b32 s45, {j*16384}"); lin_stage("s[20:23]","s45",16)
        else: e(f"s_add_u32 m0, s43, {VOFF(j)-KSL}\ns_mov_b32 s45, {j*16384}"); lin_stage("s[24:27]","s45",32)
        lflag(str(4*(n+1)))
    lstamp()
    if wv>=0: W=wv
    e(f"v_and_b32 v3, 3, v2\nv_lshlrev_b32 v3, 8, v3\nv_lshl_add_u32 v{vFA}, v2, 2, v3\nv_add_u32 v{vFA}, {FB+256*3}, v{vFA}")
    i0=(len(ini)-1)//2
    e(f"s_mov_b32 s46, {(i0%4)*SS}\ns_mov_b32 s49, {8*i0+8}\ns_mov_b32 s45, {i0*16384}")
    def need_for(i):
        if i<4: return 0
        req=6 if i in (4,8) else 2*(i-4)+4
        return min(2*it+4 for it in sig_iters if 2*it+4>=req)
    packed=0; seen=0
    for i in range(1,9):
        n=need_for(i)
        if n>seen: packed|=n<<(4*(i-1)); seen=n
    packed>>=4*(i0-1)
    e(f"s_mov_b32 s48, {packed:#x}")
    e("L_lloop:")
    if not nomem:
        e("s_and_b32 s14, s48, 15\ns_cbranch_scc0 L_lgo")
        e(f"s_branch L_lx\nL_lw:\ns_sleep {lsleep}\nL_lx:\nds_read_b32 v8, v{vFA}\ns_waitcnt lgkmcnt(0)\nv_cmp_gt_u32 vcc, s14, v8\ns_cbranch_vccnz L_lw\nL_lgo:")
    e("s_lshr_b32 s48, s48, 4\ns_sub_u32 s15, s45, 16384")
    e(f"s_cmp_eq_u32 s49, 72\ns_cselect_b32 s46, {XB-KSL}, s46\ns_cbranch_scc1 L_lv")
    e(f"s_add_u32 m0, s46, s42\ns_waitcnt vmcnt({W})")
    lin_stage("s[20:23]","s45",16); lflag("s49")
    e("s_add_u32 s49, s49, 4\nL_lv:")
    e(f"s_add_u32 m0, s46, s43\ns_waitcnt vmcnt({W})")
    lin_stage("s[24:27]","s15",32); lflag("s49")
    e(f"s_add_u32 s49, s49, 4\ns_add_u32 s45, s45, 16384\ns_add_u32 s46, s46, {SS}\ns_cmp_eq_u32 s46, {4*SS}\ns_cselect_b32 s46, 0, s46")
    if v7e:
        e(f"s_cmp_lg_u32 s49, {8*(v7e+1)+8}\ns_cbranch_scc1 L_nv7")
        e(f"s_add_u32 m0, s43, {XB-KSL}\ns_mov_b32 s15, {7*16384}\ns_waitcnt vmcnt({W})")
        lin_stage("s[24:27]","s15",32)
        e("L_nv7:\ns_cmp_lt_u32 s49, 72\ns_cbranch_scc1 L_lloop")
    else: e("s_cmp_lt_u32 s49, 76\ns_cbranch_scc1 L_lloop")
    lstamp()
    e("s_waitcnt vmcnt(0)")
    lstamp()
    if stamps:
        e("s_memrealtime s[94:95]\ns_waitcnt lgkmcnt(0)")
        e("s_mov_b32 s36, s12\ns_mov_b32 s37, s13\ns_mov_b32 s38, 0x1000000\ns_mov_b32 s39, 0x20000")
        e("s_cmp_lg_u32 s16, 0\ns_cbranch_scc1 L_end")
        e("s_lshl_b32 s45, s2, 8\ns_add_u32 s45, s45, 65536\nv_mov_b32 v7, s45")
        for i,r in enumerate([96,98]+[50+2*min(i,lst[0]-1) for i in range(scnt[0]+1)]+[94]):
            e(f"v_mov_b32 v8, s{r}\nbuffer_store_dword v8, v7, s[36:39], 0 offen offset:{4*i}\ns_nop 1")
    e("L_end:\ns_endpgm")
    e(".p2align 7\nL_table:\n"+"\n".join(f".long {i}" for i in range(32)))
    e("L_consumer:")
    e(f"s_cmp_ge_u32 s16, 3\ns_cbranch_scc1 L_cons2")
    e("s_waitcnt lgkmcnt(0)\ns_barrier\ns_mov_b64 exec, 0\ns_mov_b64 vcc, 0\ns_setvskip -1, 0\ns_nop 3\ns_branch L_main\nL_sdone:\ns_setvskip 0, 0\ns_endpgm\nL_cons2:")
    e("s_sub_u32 s16, s16, 3")
    e(f"v_and_b32 v3, 1, v2\nv_lshlrev_b32 v3, 8, v3\nv_lshl_add_u32 v{vFA}, v2, 2, v3\nv_add_u32 v{vFA}, {FB}, v{vFA}")
    e("s_getpc_b64 s[36:37]\nL_pc2:\ns_add_u32 s36, s36, L_main-L_pc2\ns_addc_u32 s37, s37, 0\ns_mov_b32 s38, L_slow-L_main\ns_mov_b32 s39, 0x20000")
    e("s_lshr_b32 s45, s2, 3\ns_lshl_b32 s45, s45, 2\ns_add_u32 s45, s45, s16\ns_lshl_b32 s45, s45, 7\nv_mov_b32 v3, 0\nbuffer_load_dword v1, v3, s[36:39], s45 offen")
    e("v_and_b32 v5, 15, v2\nv_lshrrev_b32 v4, 4, v2")
    e("v_and_b32 v6, 1, v4\nv_lshrrev_b32 v7, 1, v4\nv_lshlrev_b32 v6, 7, v6\nv_lshl_add_u32 v6, v7, 6, v6")
    e(f"v_mul_u32_u24 v{vKA[0]}, 1040, v5\nv_lshrrev_b32 v3, 3, v5\nv_lshl_add_u32 v{vKA[0]}, v3, 7, v{vKA[0]}\nv_add_u32 v{vKA[0]}, v{vKA[0]}, v6\nv_add_u32 v{vKA[1]}, {2*SS}, v{vKA[0]}")
    e(f"v_lshl_add_u32 v{vGK}, v5, 8, v6")
    e("v_lshrrev_b32 v3, 2, v2\nv_and_b32 v8, 3, v2")
    e(f"v_mul_u32_u24 v{vT2}, 1056, v3\nv_lshl_add_u32 v{vT2}, v8, 3, v{vT2}")
    e(f"v_add_u32 v{vVA[0]}, {KSL}, v{vT2}\nv_add_u32 v{vVA[1]}, {KSL+2*SS}, v{vT2}\nv_add_u32 v{vVA[2]}, {XB}, v{vT2}")
    e(f"s_mul_i32 s47, s16, {STG}\ns_add_u32 s47, s47, {SB}")
    e(f"v_lshlrev_b32 v{vT2}, 7, v3\nv_lshl_add_u32 v{vT2}, v8, 3, v{vT2}\nv_add_u32 v{vT2}, s47, v{vT2}")
    e(f"v_lshrrev_b32 v3, 3, v2\nv_lshlrev_b32 v{vGV}, 8, v3\nv_and_b32 v3, 7, v2\nv_lshl_add_u32 v{vGV}, v3, 4, v{vGV}")
    e(f"s_lshl_b32 s45, s16, 13\nv_lshlrev_b32 v{vOA}, 12, v7\nv_bfe_u32 v3, v2, 2, 2\nv_lshl_add_u32 v{vOA}, v3, 10, v{vOA}\nv_and_b32 v3, 1, v4\nv_lshl_add_u32 v{vOA}, v3, 8, v{vOA}\nv_lshl_add_u32 v{vOA}, v8, 4, v{vOA}\nv_add_u32 v{vOA}, s45, v{vOA}")
    e(f"s_mov_b32 {sC}, {f2u(C_SCALE):#x}\ns_mov_b32 {sTHR}, {f2u(lthr):#x}")
    e("s_mov_b32 s76, 0x55555555\ns_mov_b32 s77, s76\ns_not_b64 s[78:79], s[76:77]\ns_mov_b32 s80, 0x33333333\ns_mov_b32 s81, s80\ns_not_b64 s[82:83], s[80:81]")
    e(f"s_lshr_b32 s46, s16, 1\ns_mov_b32 s45, {QOFF[0]}\ns_cmp_eq_u32 s46, 0\ns_cselect_b32 s45, s45, {QOFF[1]}\ns_cselect_b32 s46, {ini.index('Q0')+1}, {ini.index('Q1')+1}\ns_and_b32 s19, s16, 1\ns_lshl_b32 s19, s19, 9\ns_add_u32 s45, s45, s19")
    e(f"v_add_u32 v{vT1}, s45, v{vKA[0]}")
    for r in range(4): e(f"v_mov_b32 v{vONE+r}, 0x3f803f80")
    e("s_waitcnt lgkmcnt(0)")
    e("s_add_u32 s32, s10, s18\ns_addc_u32 s33, s11, 0\ns_mov_b32 s34, 32768\ns_mov_b32 s35, 0x20000")
    e("s_add_u32 s20, s6, s17\ns_addc_u32 s21, s7, 0\ns_mov_b32 s22, 131072\ns_mov_b32 s23, 0x20000")
    e("s_add_u32 s24, s8, s17\ns_addc_u32 s25, s9, 0\ns_mov_b32 s26, 131072\ns_mov_b32 s27, 0x20000")
    e("s_barrier\ns_branch L_main")
    e(text(rare))
    e(".p2align 3\nL_main:")
    e(text(prog))
    if stamps:
        ns=scnt[0]
        e("s_waitcnt vmcnt(0)")
        e(f"s_memtime s[{50+2*ns}:{51+2*ns}]\ns_memrealtime s[{52+2*ns}:{53+2*ns}]\ns_waitcnt lgkmcnt(0)")
        e("s_mov_b32 s36, s12\ns_mov_b32 s37, s13\ns_mov_b32 s38, 0x1000000\ns_mov_b32 s39, 0x20000")
        e("s_cmp_lg_u32 s16, 3\ns_cbranch_scc1 L_end2")
        e("s_lshl_b32 s45, s2, 8\nv_mov_b32 v7, s45")
        regs=[96,98]+[50+2*i for i in range(ns+2)]
        assert regs[-1]<76
        for i,r in enumerate(regs):
            e(f"v_mov_b32 v8, s{r}\nbuffer_store_dword v8, v7, s[36:39], 0 offen offset:{4*i}\ns_nop 1")
        sys.stderr.write(f"nstamps={len(regs)}\n")
        e("L_end2:")
    if diag is not None:
        e("s_waitcnt vmcnt(0)")
        if diag=='end': e("s_memrealtime s[60:61]")
        e(f"s_memrealtime s[62:63]\ns_waitcnt lgkmcnt(0)\ns_sub_u32 s67, s60, s96\ns_mul_i32 s67, s67, {dk}\ns_min_u32 s67, s67, 100000\nL_spin:\ns_memrealtime s[64:65]\ns_waitcnt lgkmcnt(0)\ns_sub_u32 s66, s64, s62\ns_cmp_lt_u32 s66, s67\ns_cbranch_scc1 L_spin")
    e("s_endpgm")
    e(text(S))
    e(f'.section .rodata,"a"\n.p2align 6\n.amdhsa_kernel {KN}')
    e(f"  .amdhsa_next_free_vgpr 256\n  .amdhsa_next_free_sgpr 102\n  .amdhsa_accum_offset 256\n  .amdhsa_group_segment_fixed_size 0\n  .amdhsa_kernarg_size 48\n  .amdhsa_user_sgpr_count 2\n  .amdhsa_user_sgpr_kernarg_segment_ptr 1\n  .amdhsa_system_sgpr_workgroup_id_x 1\n.end_amdhsa_kernel")
    return "\n".join(H)+"\n"

if __name__=="__main__":
    name=sys.argv[1]; kw={}
    for a in sys.argv[2:]:
        k,v=a.split("=",1)
        try: v=int(v)
        except:
            try: v=float(v)
            except: pass
        kw[k]=v
    open(name,"w").write(gen(**kw))
```

```python
import sys, math, struct
from asmlib import *

KN="standalone__gqa_softmax__near_ridge_kernel"
C_SCALE = math.log2(math.e)/math.sqrt(128.0)
def f2u(x): return struct.unpack("<I",struct.pack("<f",x))[0]

KSL=16768; VSL=16896; SS=KSL+VSL
XB=4*SS; FB=XB+VSL; SB=FB+2048; STG=2048
assert SB+4*STG<=163840
def KOFF(j): return (j%4)*SS
def VOFF(j): return XB if j==7 else ((j+1)%4)*SS+KSL
QOFF=[VOFF(3),XB]
NL=2; NI=8

def mfma16(d,a,b,c):
    ct = vr(c,4) if isinstance(c,int) else c
    rd=R(a,4)+R(b,4)+(R(c,4) if isinstance(c,int) else [])
    return I(f"v_mfma_f32_16x16x32_bf16 {vr(d,4)}, {vr(a,4)}, {vr(b,4)}, {ct}",'mfma',rd=rd,wr=R(d,4),cost=8,passes=4,
             srcc=(R(c,4) if isinstance(c,int) else []))
def pkmul(d,a,b):
    return I(f"v_pk_mul_f32 {vr(d,2)}, {vr(a,2)}, {vr(b,2)}",'valu',rd=R(a,2)+R(b,2),wr=R(d,2),cost=6)
def cnd_dpp(d,s0,s1,qp):
    return I(f"v_cndmask_b32_dpp v{d}, v{s0}, v{s1}, vcc quad_perm:{qp} row_mask:0xf bank_mask:0xf",'dpp',rd=[s0,s1],wr=[d])

def gen(depth=3, ldflags="nt", stflags="sc1", stamps=0, pf=7, G=4, lthr=2.0**48, budget=8.0, fl=2, verbose=0, diag=None, dk=1,
        nomem=0, NFR=8, lsleep=4, forceslow=0, HZ=3, tailb=12, order=4, stc=16, sigs="1,3", stset='K0,K2,K4,K6,st',
        late=2, qsleep=4, osleep=2, init='Q0,Q1,K0,K1,V0', rt=0, wv=-1, v7e=0, pk2=1, cmax=4, cb=6, rk=0, ov=1, sp1=1, l2p='', l2at=0):
    vONE=4
    vKA=[10,11]; vVA=[12,13,14]; vFA,vSA=15,16
    vNM=[17,18]; vMX=[19,20]; vT1=21; vOA=26
    vRL=[22,24]
    vF=[27,28]; vSG=29; vGK=30; vGV=31; vT2=9; vT3=8
    vQ=32; vFR=64
    vNB=vFR+4*NFR; vL=vNB+8
    vS=[vNB+16+16*i for i in range(3)]
    vP=[vS[2]+16+8*i for i in range(4)]
    vO=vP[3]+8
    assert vO+64<=256
    sC="s40"; sTHR="s41"
    sEV,sOD,sLO,sHI="s[76:77]","s[78:79]","s[80:81]","s[82:83]"
    ini=init.split(','); assert len(ini) in (5,7)
    LK=lambda j: ini.index(f"K{j}")+1 if f"K{j}" in ini else 2*j+2
    LV=lambda j: ini.index(f"V{j}")+1 if f"V{j}" in ini else (2*j+5 if j<7 else 18)
    sig_iters=[int(x) for x in str(sigs).split(",")]
    rare=[]; scnt=[0]
    def stamp(name):
        o=[]
        if diag==name: o.append(raw("s_memrealtime s[60:61]"))
        if stamps and name in stset.split(','):
            i=scnt[0]; scnt[0]+=1; o.append(raw(f"s_memtime s[{50+2*i}:{51+2*i}]"))
            if rt: i=scnt[0]; scnt[0]+=1; o.append(raw(f"s_memrealtime s[{50+2*i}:{51+2*i}]"))
        return o
    cn=[0]
    def flag_read():
        r=vF[cn[0]%2]; return I(f"ds_read_b32 v{r}, v{vFA}",'dsr',rd=[vFA],wr=[r])
    def flag_check(val,name):
        r=vF[cn[0]%2]; cn[0]+=1
        if nomem: return stamp(name)
        rare.extend([label(f"L_spin{name}"), raw(f"s_sleep {qsleep if name=='q' else osleep}"), raw(f"ds_read_b32 v{r}, v{vFA}"), raw("s_waitcnt lgkmcnt(0)"),
                     raw(f"v_cmp_gt_u32 vcc, {val}, v{r}"), raw(f"s_cbranch_vccnz L_spin{name}"), raw(f"s_branch L_back{name}")])
        return [I(f"v_cmp_gt_u32 vcc, {val}, v{r}\n    s_cbranch_vccnz L_spin{name}\nL_back{name}:",'valu',rd=[r],sw=['vcc'],cost=8)]+stamp(name)
    def signal(val): return [valu("v_mov_b32",vSG,str(val)), I(f"ds_write_b32 v{vSA}, v{vSG}",'dsw',rd=[vSA,vSG])]
    def Oreg(dl,x): return vO+16*(dl//2)+8*(dl%2)+4*x

    M=[]; nfr=[0]
    def newf():
        f=vFR+4*(nfr[0]%NFR); nfr[0]+=1; return f
    def addr(base,off):
        ss=off//SS; return (base[ss//2], off-(ss//2)*2*SS)
    def add_qk(h):
        j,u=divmod(h,2); d=vS[h%3]
        for kp in range(2):
            for s in range(4):
                f=newf(); a,o=addr(vKA,KOFF(j)+(2*u+kp)*256+16*s)
                mf=[]
                for x in range(2):
                    dd=d+8*x+4*kp
                    c0=(vNB+4*x) if h>=2 else "0"
                    mf.append(mfma16(dd,f,vQ+16*x+4*s,c0 if s==0 else dd))
                M.append(dict(mf=mf,reads=[dsr128(f,a,o)],st=('K',j),id=('K',h,4*kp+s)))
    ldone=set()
    def one_pv(h,dl):
        j,u=divmod(h,2); f=newf(); rds=[]
        for kp in range(2):
            io=(2*u+kp)*256+32*dl
            a,o=addr(vVA,VOFF(j)-KSL+io) if j<7 else (vVA[2],io)
            rds.append(dsrtr(f+2*kp,a,o))
        mf=[mfma16(Oreg(dl,x),f,vP[h%4]+4*x,"0" if h==0 else Oreg(dl,x)) for x in range(2)]
        if h not in ldone:
            ldone.add(h)
            mf+=[mfma16(vL+4*x,vONE,vP[h%4]+4*x,"0" if h==0 else vL+4*x) for x in range(2)]
        M.append(dict(mf=mf,reads=rds,st=('V',j),id=('V',h,dl)))
    def add_pv(h,dls=range(8)):
        for dl in dls: one_pv(h,dl)
    def pvt(j,cg):
        for h in (2*j,2*j+1): add_pv(h,(2*cg,2*cg+1))
    add_qk(0); add_qk(1); add_qk(2); add_qk(3); add_pv(0); add_pv(1)
    for i in range(2,7):
        add_qk(2*i); add_pv(2*i-2); add_qk(2*i+1); add_pv(2*i-1)
    add_qk(14); add_qk(15)
    if order==4: seq=[(6,0),(6,1),(7,0),(7,1),(6,2),(7,2),(6,3),(7,3)]
    elif order==1: seq=[(6,3),(6,2),(6,0),(7,0),(6,1),(7,1),(7,2),(7,3)]
    for j,cg in seq: pvt(j,cg)
    NM=len(M); assert NM==256
    pos={m['id']:i for i,m in enumerate(M)}
    first_use={}; last_use={}
    for i,m in enumerate(M):
        first_use.setdefault(m['st'],i); last_use[m['st']]=i
    for st,i in first_use.items(): M[i]['need']=(LK(st[1]) if st[0]=='K' else LV(st[1]), f"{st[0]}{st[1]}")
    if v7e: del M[first_use[('V',7)]]['need']
    for it in sig_iters: M[max(last_use[('K',it)],last_use[('V',it-1)])]['sig']=2*it+4
    F=[]
    def addF(lst,avail,due):
        for x in lst: F.append([x,avail,due])
    def xlane(o,regs,tmps,op):
        for pm in (perm16,perm32):
            for r,t in zip(regs,tmps): o.append(valu("v_mov_b32",t,r))
            for r,t in zip(regs,tmps): o.append(pm(r,t))
            for r,t in zip(regs,tmps): o.append(valu(op,r,r,t))
    def max8(src,dst,first):
        if first: return [valu("v_max3_f32",dst,src,src+1,src+2),valu("v_max3_f32",dst,dst,src+3,src+4),valu("v_max3_f32",dst,dst,src+5,src+6),valu("v_max_f32",dst,dst,src+7)]
        return [valu("v_max3_f32",dst,dst,src+2*k,src+2*k+1) for k in range(4)]
    def exp_blk(src,dstp,pre):
        seq=[]; n=16
        for i in range(n+3):
            if i<n and pre: seq.append(valu("v_add_f32",src+i,src+i,vNM[i//8]))
            if 0<=i-1<n: seq.append(trans("v_exp_f32",src+i-1,src+i-1))
            if i-3>=0 and (i-3)%2==1:
                k=(i-3)//2; seq.append(valu("v_cvt_pk_bf16_f32",dstp+k,src+2*k,src+2*k+1))
        return seq
    a,b=max8(vS[0],vMX[0],True),max8(vS[0]+8,vMX[1],True)
    st=[y for p in zip(a,b) for y in p]; xlane(st,vMX,[vT1,vT3],"v_max_f32")
    st+=[valu("v_sub_f32",vNM[x],"0",vMX[x]) for x in range(2)]+[valu("v_sub_f32",vNB+i,"0",vMX[i//4]) for i in range(8)]
    HS=1 if HZ<=3 else 2
    addF(st,8+HS,16)
    for h in range(16):
        av=pos[('K',h,7)]+1+HS
        dueS=pos[('K',h+3,0)] if h+3<16 else NM
        fu=min(pos[('V',h,dl)] for dl in range(8))
        for x in exp_blk(vS[h%3],vP[h%4],h<2):
            a=av; d=dueS
            if x.text.startswith("v_cvt"):
                d=min(d,fu)
                if h>=4: a=max(a,max(pos[('V',h-4,dl)] for dl in range(8))+1)
            F.append([x,a,d])
    lpos=min(pos[('V',15,dl)] for dl in range(8))
    br="" if nomem else ("\n    s_cbranch_vccnz L_slow" if not forceslow else "\n    s_branch L_slow")
    fin=[valu("v_max_f32",vT1,vL,vL+4),valu("v_add_f32",vT3,vL,vL+4),trans("v_rcp_f32",vRL[0],vL),trans("v_rcp_f32",vRL[1],vL+4),
         I(f"v_cmp_nge_f32 vcc, {sTHR}, v{vT3}"+br,'valu',rd=[vT3],sw=['vcc'],sr=[sTHR],cost=8),
         valu("v_mov_b32",vRL[0]+1,vRL[0]),valu("v_mov_b32",vRL[1]+1,vRL[1])][1:]
    addF(fin,lpos+1+HS,NM+1)
    def setvcc(s): return I(f"s_mov_b64 vcc, {s}",'salu')
    def epi(cg,pk=False):
        o=vO+16*cg; r=[]
        xof=lambda k:(k//4)%2
        r+=[pkmul(o+2*k,o+2*k,vRL[xof(2*k)]) for k in range(8)] if pk else [valu("v_mul_f32",o+k,o+k,vRL[xof(k)]) for k in range(16)]
        r+=[valu("v_cvt_pk_bf16_f32",o+k,o+2*k,o+2*k+1) for k in range(8)]
        W=lambda d,x,e:o+4*d+2*x+e; X=lambda d,x,e:o+8+4*d+2*x+e
        de=[(d,e) for d in range(2) for e in range(2)]; xe=[(x,e) for x in range(2) for e in range(2)]
        r+=[perm32(W(d,0,e),W(d,1,e)) for d,e in de]
        r+=[setvcc(sEV)]+[cnd_dpp(X(d,0,e),W(d,1,e),W(d,0,e),"[1,0,3,2]") for d,e in de]
        r+=[setvcc(sOD)]+[cnd_dpp(X(d,1,e),W(d,0,e),W(d,1,e),"[1,0,3,2]") for d,e in de]
        r+=[setvcc(sLO)]+[cnd_dpp(W(0,x,e),X(1,x,e),X(0,x,e),"[2,3,0,1]") for x,e in xe]
        r+=[setvcc(sHI)]+[cnd_dpp(W(1,x,e),X(0,x,e),X(1,x,e),"[2,3,0,1]") for x,e in xe]
        r+=[perm16(W(d,0,e),W(d,1,e)) for d,e in de]
        sts=[I(f"buffer_store_dwordx4 {vr(o+4*t,4)}, v{vOA}, s[32:35], 0 offen offset:{512*t+64*cg} {stflags}".rstrip(),'st4',rd=[vOA]+R(o+4*t,4),cost=stc) for t in range(2)]
        sts[1].cost=0
        return r+sts
    lastcg={cg:max(i for i,m in enumerate(M) if m['id'][0]=='V' and m['id'][2]//2==cg) for cg in range(4)}
    corder=sorted(range(4),key=lambda c:lastcg[c])
    for n,cg in enumerate(corder[:3]):
        late2=(pk2 and n==2)
        addF(epi(cg,pk=late2),(lastcg[cg]+1+HS) if not late2 else NM+5,NM+1)
    assert max(i for i,m in enumerate(M) if 'need' in m)-pf<lpos
    P=[]
    P+=[flag_read()]+flag_check("s46","q")
    for x in range(2):
        for s in range(4): P.append(dsr128(vQ+16*x+4*s,vT1,256*x+16*s))
    P+=[valu("v_mov_b32",vRL[0],sC),valu("v_mov_b32",vRL[0]+1,sC)]
    t=vS[2]
    for r in range(34):
        if r<32:
            a=t+2*(r%8); P+=[valu("v_lshlrev_b32",a,"16",vQ+r),valu("v_and_b32",a+1,"0xffff0000",vQ+r)]
        if 1<=r<33:
            b=t+2*((r-1)%8); P.append(pkmul(b,b,vRL[0]))
        if r>=2:
            b=t+2*((r-2)%8); P.append(valu("v_cvt_pk_bf16_f32",vQ+r-2,b,b+1))
    fi=0
    def reads_for(i):
        m=M[i]; o=[]
        if 'need' in m:
            if not m.get('fr'): o.append(flag_read())
            o+=flag_check(*m['need'])
        o+=m['reads']
        if 'sig' in m: o+=signal(m['sig'])
        return o
    needs=[i for i in range(NM) if 'need' in M[i]]
    lates=[i for i in needs if M[i]['need'][1] in ('K1','V0')] if late else []
    def rg(i):
        g=i-pf
        for b in lates:
            if b<=i: g=max(g,b-late)
        return max(g,-1)
    by_gap={}
    for i in range(NM): by_gap.setdefault(rg(i),[]).append(i)
    fr_gap={}
    for a,b in zip([None]+needs[:-1],needs):
        g=rg(b)-fl
        if a is not None: g=max(g,rg(a))
        if 0<=g<rg(b): fr_gap[g]=b
    for i in by_gap[-1]: P+=reads_for(i)
    E=[]; C=[]
    nsm=sum(1 for _ in F)
    for it in F:
        if it[0].text.startswith("v_cvt") and list(it[0].wr)[0]<vO: C.append(it+[len(E)])
        else: E.append(it)
    ei=0; ci=0; carry=0.0
    def force(g):
        nonlocal ei,ci
        while True:
            ce=[k for k in range(ci,min(ci+40,len(C))) if C[k][2]<=g]
            ee=[k for k in range(ei,min(ei+150,len(E))) if E[k][2]<=g]
            needE=max([k+1 for k in ee]+[C[k][3] for k in ce]+[0])
            if ci<len(C) and ce and C[ci][3]<=ei:
                assert C[ci][1]<=g+HS; P.append(C[ci][0]); ci+=1
            elif ei<needE:
                assert E[ei][1]<=g+HS,("forced before avail",E[ei][0].text,E[ei][1],g); P.append(E[ei][0]); ei+=1
            else: break
    for g in range(NM):
        force(g)
        if G>1 and g%G==0:
            ex=set()
            for k in range(1,G):
                if g+k<NM and rg(g+k)<g-1:
                    for r in M[g+k]['reads']: ex|=r.wr
            P.append(I("",'touch',rd=ex,cost=0))
        fixed=[]
        for i in by_gap.get(g,[]): fixed+=reads_for(i)
        if g in fr_gap:
            fixed.append(flag_read()); M[fr_gap[g]]['fr']=True
        b=budget if g<pos[('K',15,7)] else tailb
        nmf=len(M[g]['mf'])
        for k,mf in enumerate(M[g]['mf']):
            P.append(mf)
            cost=0
            if k==rk: P+=fixed; cost+=sum(x.cost for x in fixed)
            if k==nmf-1 and (g+1)%G==0: cost+=4
            av=g+1 if k==nmf-1 else g
            while cost<b or (ei<len(E) and E[ei][0].cost==0):
                room=b-cost
                cok = ci<len(C) and C[ci][3]<=ei and C[ci][1]<=av
                eok = ei<len(E) and E[ei][1]<=av
                if cok and (not eok or E[ei][0].cost>room): P.append(C[ci][0]); cost+=4; ci+=1
                elif eok and (E[ei][0].cost<=room or ov): P.append(E[ei][0]); cost+=E[ei][0].cost; ei+=1
                else: break
    force(10**6)
    assert ei==len(E) and ci==len(C)
    P+=epi(corder[3],pk=True)+stamp('st')
    prog=insert_lgkm(P); prog=[x for x in prog if x.kind!='touch']
    prog,added=pad_hazards(prog,verbose)
    out=[]; i=0
    while i<len(prog):
        x=prog[i]
        if x.kind=='st4':
            j=i
            while j+1<len(prog) and prog[j+1].kind=='st4': j+=1
            last = all(y.kind not in('st4','valu','dpp') for y in prog[j+1:])
            out.append(raw("s_cbranch_execz L_sdone" if last else f"s_cbranch_execz L_sk{i}")); out+=prog[i:j+1]
            if not last: out.append(label(f"L_sk{i}"))
            i=j+1; continue
        out.append(x); i+=1
    prog=out
    k0=[i for i,x in enumerate(prog) if x.kind=='mfma'][0]
    sys.stderr.write(f"consumer: {len(prog)} instrs, nops {added}, issue-sum {sum(x.cost for x in prog[k0:])} est total {est_cycles(prog)} from-first-mfma {est_cycles(prog[k0:])}\n")

    S=[]; sa=vS[0]; kf=vS[1]; sp=vP[0]
    S+=[label("L_slow"),raw("s_cbranch_execz L_sdone"),raw("s_waitcnt vmcnt(0) lgkmcnt(0)"), nop(15), nop(15)]
    S+=[valu("v_mov_b32",vMX[x],"0xff800000") for x in range(2)]+[raw("s_mov_b32 s46, 0"), label("L_s1")]
    def kpart():
        o=[raw("s_add_u32 s19, s46, 4096")]
        for kp in range(2):
            for s in range(4): o.append(raw(f"buffer_load_dwordx4 {vr(kf+16*kp+4*s,4)}, v{vGK}, s[20:23], {'s46' if kp==0 else 's19'} offen offset:{16*s}"))
        o.append(raw("s_waitcnt vmcnt(0)"))
        for kp in range(2):
            for s in range(4):
                for x in range(2):
                    dd=sa+8*x+4*kp; o.append(mfma16(dd,kf+16*kp+4*s,vQ+16*x+4*s,"0" if s==0 else dd))
        return o
    S+=kpart()+max8(sa,vMX[0],False)+max8(sa+8,vMX[1],False)
    S+=[raw("s_add_u32 s46, s46, 8192"),raw("s_cmp_lt_u32 s46, 131072"),raw("s_cbranch_scc1 L_s1")]
    xlane(S,vMX,[vT1,vT3],"v_max_f32")
    S+=[valu("v_sub_f32",vNM[x],"0",vMX[x]) for x in range(2)]
    S+=[valu("v_mov_b32",vL+i,"0") for i in range(8)]+[valu("v_mov_b32",vO+i,"0") for i in range(64)]
    S+=[raw("s_mov_b32 s46, 0"), label("L_s2")]
    S+=kpart()+exp_blk(sa,sp,True)
    for half in range(2):
        for kp in range(2):
            S+=[raw("s_mov_b32 m0, s47"),raw(f"s_add_u32 s19, s46, {kp*4096+half*128}"),raw(f"buffer_load_dwordx4 v{vGV}, s[24:27], s19 offen lds"),
                raw("s_add_u32 m0, s47, 1024"),raw("s_add_u32 s19, s19, 2048"),raw(f"buffer_load_dwordx4 v{vGV}, s[24:27], s19 offen lds"),raw("s_waitcnt vmcnt(0)")]
            S+=[raw(f"ds_read_b64_tr_b16 {vr(kf+4*dl+2*kp,2)}, v{vT2} offset:{32*dl}") for dl in range(4)]
            S.append(raw("s_waitcnt lgkmcnt(0)"))
        S+=[mfma16(Oreg(4*half+dl,x),kf+4*dl,sp+4*x,Oreg(4*half+dl,x)) for dl in range(4) for x in range(2)]
        S.append(nop(7))
    S+=[mfma16(vL+4*x,vONE,sp+4*x,vL+4*x) for x in range(2)]
    S+=[nop(15),raw("s_add_u32 s46, s46, 8192"),raw("s_cmp_lt_u32 s46, 131072"),raw("s_cbranch_scc1 L_s2")]
    S+=[trans("v_rcp_f32",vRL[0],vL),trans("v_rcp_f32",vRL[1],vL+4),nop(1)]
    for cg in range(4): S+=epi(cg)
    S.append(raw("s_endpgm"))
    S,_=pad_hazards(S)

    H=[]; e=H.append
    e(f"; @launch grid=(256,1,1) block=(448,1,1) lds=163840")
    e("""; GQA attention  B16 Hq32 Hkv8 Sq64 Sk512 D128 (bf16).  Generated by a hand-written Python generator.
; One workgroup per CU: (batch, kv head) pair x 128 query rows; the two workgroups of a pair are ids i, i+8 (L2 locality only).
; Wave 2: instruction-cache scout (walks the consumer code with vector instructions skipped, touches no memory).
;   a run-time check of the row sum (<= 2^48, not NaN) sends the wave to L_slow, which recomputes its rows with the true row max.""")
    e('.amdgcn_target "amdgcn-amd-amdhsa--gfx950"')
    e(f".text\n.globl {KN}\n.p2align 8\n.type {KN},@function\n{KN}:")
    e("s_load_dwordx4 s[4:7], s[0:1], 0\ns_load_dwordx4 s[8:11], s[0:1], 16")
    if stamps: e("s_load_dwordx2 s[12:13], s[0:1], 40\ns_memrealtime s[96:97]\ns_memtime s[98:99]")
    if diag is not None: e("s_memrealtime s[96:97]")
    e("s_cmp_ge_u32 s2, 256\ns_cbranch_scc1 L_end")
    e("v_lshrrev_b32 v1, 6, v0\nv_and_b32 v2, 63, v0")
    e("s_and_b32 s14, s2, 7\ns_lshr_b32 s15, s2, 4\ns_lshl_b32 s15, s15, 3\ns_add_u32 s14, s14, s15")
    e("v_readfirstlane_b32 s16, v1")
    e("s_bfe_u32 s15, s2, 0x10003\ns_lshl_b32 s17, s14, 17")
    e("s_lshl_b32 s18, s14, 16\ns_lshl_b32 s19, s15, 15\ns_add_u32 s18, s18, s19")
    e(f"v_lshlrev_b32 v{vSA}, 2, v0\nv_add_u32 v{vSA}, {FB}, v{vSA}\nv_mov_b32 v{vSG}, 0\nds_write_b32 v{vSA}, v{vSG}")
    e(f"s_cmp_ge_u32 s16, {NL}\ns_cbranch_scc1 L_consumer")
    if nomem==1: e("s_waitcnt lgkmcnt(0)\ns_barrier\ns_endpgm")
    e("s_getpc_b64 s[36:37]\nL_pc:")
    e("s_add_u32 s36, s36, L_table-L_pc\ns_addc_u32 s37, s37, 0\ns_mov_b32 s38, 128\ns_mov_b32 s39, 0x20000")
    e("v_lshrrev_b32 v3, 4, v2\nv_and_b32 v4, 15, v2\nv_lshlrev_b32 v4, 4, v4\ns_lshl_b32 s44, s16, 11\nv_add_u32 v4, s44, v4\nv_lshl_add_u32 v6, v3, 12, v4")
    e("v_lshlrev_b32 v5, 4, v2")
    e(f"s_mul_i32 s42, s16, {8*1040+128}\ns_mul_i32 s43, s16, {8*1056}\ns_add_u32 s43, s43, {KSL}\ns_lshl_b32 s85, s16, 13\ns_add_u32 s17, s17, s85")
    e(f"s_lshl_b32 s44, s16, 8\ns_add_u32 s44, s44, {FB}")
    e("s_mov_b32 s30, 32768\ns_mov_b32 s31, 0x20000\ns_sub_u32 s22, 131072, s85\ns_mov_b32 s23, 0x20000\ns_mov_b32 s26, s22\ns_mov_b32 s27, 0x20000")
    e("s_movk_i32 s40, 784")
    e("s_waitcnt lgkmcnt(0)")
    lst=[0]
    def lstamp():
        if stamps:
            i=lst[0]; lst[0]+=1; e(f"s_memtime s[{50+2*i}:{51+2*i}]")
    lstamp()
    e("s_add_u32 s28, s4, s18\ns_addc_u32 s29, s5, 0\ns_add_u32 s20, s6, s17\ns_addc_u32 s21, s7, 0\ns_add_u32 s24, s8, s17\ns_addc_u32 s25, s9, 0")
    def q_stage(soff):
        for g in range(NI):
            e(f"buffer_load_dwordx4 v6, s[28:31], {soff} offen offset:{g*256} {ldflags} lds")
            if g<NI-1: e("s_add_u32 m0, m0, s40\ns_nop 0")
    def lin_stage(srd,soff,step):
        cur=soff
        for g in range(NI):
            e(f"buffer_load_dwordx4 v5, {srd}, {cur} offen offset:{(g%4)*1024} {ldflags} lds")
            if g<NI-1:
                if g%4==3: e(f"s_add_u32 m0, m0, {4096+step}\ns_add_u32 s86, {cur}, 4096"); cur="s86"
                else: e(f"s_add_u32 m0, m0, {step}\ns_nop 0")
    def lflag(soff): e(f"s_mov_b32 m0, s44\ns_nop 0\nbuffer_load_dword v{vSG}, s[36:39], {soff} offen lds")
    W=(NI+1)*(depth-1)
    for n,stg in enumerate(ini):
        k,j=stg[0],int(stg[1])
        if n==depth: e("s_barrier")
        if n>=depth: e(f"s_waitcnt vmcnt({W})")
        if k=='Q': e(f"s_add_u32 m0, s42, {QOFF[j]}\ns_mov_b32 s45, {j*16384}"); q_stage("s45")
        elif k=='K': e(f"s_add_u32 m0, s42, {KOFF(j)}\ns_mov_b32 s45, {j*16384}"); lin_stage("s[20:23]","s45",16)
        else: e(f"s_add_u32 m0, s43, {VOFF(j)-KSL}\ns_mov_b32 s45, {j*16384}"); lin_stage("s[24:27]","s45",32)
        lflag(str(4*(n+1)))
    lstamp()
    if wv>=0: W=wv
    e(f"v_and_b32 v3, 3, v2\nv_lshlrev_b32 v3, 8, v3\nv_lshl_add_u32 v{vFA}, v2, 2, v3\nv_add_u32 v{vFA}, {FB+256*3}, v{vFA}")
    i0=(len(ini)-1)//2
    e(f"s_mov_b32 s46, {(i0%4)*SS}\ns_mov_b32 s49, {8*i0+8}\ns_mov_b32 s45, {i0*16384}")
    def need_for(i):
        if i<4: return 0
        req=6 if i in (4,8) else 2*(i-4)+4
        return min(2*it+4 for it in sig_iters if 2*it+4>=req)
    packed=0; seen=0
    for i in range(1,9):
        n=need_for(i)
        if n>seen: packed|=n<<(4*(i-1)); seen=n
    packed>>=4*(i0-1)
    e(f"s_mov_b32 s48, {packed:#x}")
    def l2pre():
        for t in l2p.split(','):
            e(f"s_mov_b32 s15, {int(t[1])*16384}\nbuffer_load_dword v9, v7, {'s[20:23]' if t[0]=='K' else 's[24:27]'}, s15 offen")
    if l2p: e("v_lshlrev_b32 v7, 7, v2")
    e("L_lloop:")
    if not nomem:
        e("s_and_b32 s14, s48, 15\ns_cbranch_scc0 L_lgo")
        e(f"s_branch L_lx\nL_lw:\ns_sleep {lsleep}\nL_lx:\nds_read_b32 v8, v{vFA}\ns_waitcnt lgkmcnt(0)\nv_cmp_gt_u32 vcc, s14, v8\ns_cbranch_vccnz L_lw\nL_lgo:")
    e("s_lshr_b32 s48, s48, 4\ns_sub_u32 s15, s45, 16384")
    e(f"s_cmp_eq_u32 s49, 72\ns_cselect_b32 s46, {XB-KSL}, s46\ns_cbranch_scc1 L_lv")
    e(f"s_add_u32 m0, s46, s42\ns_waitcnt vmcnt({W})")
    lin_stage("s[20:23]","s45",16); lflag("s49")
    e("s_add_u32 s49, s49, 4\nL_lv:")
    e(f"s_add_u32 m0, s46, s43\ns_waitcnt vmcnt({W})")
    lin_stage("s[24:27]","s15",32); lflag("s49")
    e(f"s_add_u32 s49, s49, 4\ns_add_u32 s45, s45, 16384\ns_add_u32 s46, s46, {SS}\ns_cmp_eq_u32 s46, {4*SS}\ns_cselect_b32 s46, 0, s46")
    if v7e:
        e(f"s_cmp_lg_u32 s49, {8*(v7e+1)+8}\ns_cbranch_scc1 L_nv7")
        e(f"s_add_u32 m0, s43, {XB-KSL}\ns_mov_b32 s15, {7*16384}\ns_waitcnt vmcnt({W})")
        lin_stage("s[24:27]","s15",32)
        if l2p and not l2at: l2pre()
        e("L_nv7:")
        if l2p and l2at:
            e(f"s_cmp_lg_u32 s49, {8*(l2at+1)+8}\ns_cbranch_scc1 L_np"); l2pre(); e("L_np:")
        e("s_cmp_lt_u32 s49, 72\ns_cbranch_scc1 L_lloop")
    else: e("s_cmp_lt_u32 s49, 76\ns_cbranch_scc1 L_lloop")
    lstamp()
    e("s_waitcnt vmcnt(0)")
    lstamp()
    if stamps:
        e("s_memrealtime s[94:95]\ns_waitcnt lgkmcnt(0)")
        e("s_mov_b32 s36, s12\ns_mov_b32 s37, s13\ns_mov_b32 s38, 0x1000000\ns_mov_b32 s39, 0x20000")
        e("s_cmp_lg_u32 s16, 0\ns_cbranch_scc1 L_end")
        e("s_lshl_b32 s45, s2, 8\ns_add_u32 s45, s45, 65536\nv_mov_b32 v7, s45")
        for i,r in enumerate([96,98]+[50+2*min(i,lst[0]-1) for i in range(scnt[0]+1)]+[94]):
            e(f"v_mov_b32 v8, s{r}\nbuffer_store_dword v8, v7, s[36:39], 0 offen offset:{4*i}\ns_nop 1")
    e("L_end:\ns_endpgm")
    e(".p2align 7\nL_table:\n"+"\n".join(f".long {i}" for i in range(32)))
    e("L_consumer:")
    e(f"s_cmp_ge_u32 s16, 3\ns_cbranch_scc1 L_cons2")
    e("s_waitcnt lgkmcnt(0)\ns_barrier\ns_mov_b64 exec, 0\ns_mov_b64 vcc, 0\ns_setvskip -1, 0\ns_nop 3\ns_branch L_main\nL_sdone:\ns_setvskip 0, 0\ns_endpgm\nL_cons2:")
    e("s_sub_u32 s16, s16, 3")
    e(f"v_and_b32 v3, 1, v2\nv_lshlrev_b32 v3, 8, v3\nv_lshl_add_u32 v{vFA}, v2, 2, v3\nv_add_u32 v{vFA}, {FB}, v{vFA}")
    e("s_getpc_b64 s[36:37]\nL_pc2:\ns_add_u32 s36, s36, L_main-L_pc2\ns_addc_u32 s37, s37, 0\ns_mov_b32 s38, L_slow-L_main\ns_mov_b32 s39, 0x20000")
    e("s_lshr_b32 s45, s2, 3\ns_lshl_b32 s45, s45, 2\ns_add_u32 s45, s45, s16\ns_lshl_b32 s45, s45, 7\nv_mov_b32 v3, 0\nbuffer_load_dword v1, v3, s[36:39], s45 offen")
    e("v_and_b32 v5, 15, v2\nv_lshrrev_b32 v4, 4, v2")
    e("v_and_b32 v6, 1, v4\nv_lshrrev_b32 v7, 1, v4\nv_lshlrev_b32 v6, 7, v6\nv_lshl_add_u32 v6, v7, 6, v6")
    e(f"v_mul_u32_u24 v{vKA[0]}, 1040, v5\nv_lshrrev_b32 v3, 3, v5\nv_lshl_add_u32 v{vKA[0]}, v3, 7, v{vKA[0]}\nv_add_u32 v{vKA[0]}, v{vKA[0]}, v6\nv_add_u32 v{vKA[1]}, {2*SS}, v{vKA[0]}")
    e(f"v_lshl_add_u32 v{vGK}, v5, 8, v6")
    e("v_lshrrev_b32 v3, 2, v2\nv_and_b32 v8, 3, v2")
    e(f"v_mul_u32_u24 v{vT2}, 1056, v3\nv_lshl_add_u32 v{vT2}, v8, 3, v{vT2}")
    e(f"v_add_u32 v{vVA[0]}, {KSL}, v{vT2}\nv_add_u32 v{vVA[1]}, {KSL+2*SS}, v{vT2}\nv_add_u32 v{vVA[2]}, {XB}, v{vT2}")
    e(f"s_mul_i32 s47, s16, {STG}\ns_add_u32 s47, s47, {SB}")
    e(f"v_lshlrev_b32 v{vT2}, 7, v3\nv_lshl_add_u32 v{vT2}, v8, 3, v{vT2}\nv_add_u32 v{vT2}, s47, v{vT2}")
    e(f"v_lshrrev_b32 v3, 3, v2\nv_lshlrev_b32 v{vGV}, 8, v3\nv_and_b32 v3, 7, v2\nv_lshl_add_u32 v{vGV}, v3, 4, v{vGV}")
    e(f"s_lshl_b32 s45, s16, 13\nv_lshlrev_b32 v{vOA}, 12, v7\nv_bfe_u32 v3, v2, 2, 2\nv_lshl_add_u32 v{vOA}, v3, 10, v{vOA}\nv_and_b32 v3, 1, v4\nv_lshl_add_u32 v{vOA}, v3, 8, v{vOA}\nv_lshl_add_u32 v{vOA}, v8, 4, v{vOA}\nv_add_u32 v{vOA}, s45, v{vOA}")
    e(f"s_mov_b32 {sC}, {f2u(C_SCALE):#x}\ns_mov_b32 {sTHR}, {f2u(lthr):#x}")
    e("s_mov_b32 s76, 0x55555555\ns_mov_b32 s77, s76\ns_not_b64 s[78:79], s[76:77]\ns_mov_b32 s80, 0x33333333\ns_mov_b32 s81, s80\ns_not_b64 s[82:83], s[80:81]")
    e(f"s_lshr_b32 s46, s16, 1\ns_mov_b32 s45, {QOFF[0]}\ns_cmp_eq_u32 s46, 0\ns_cselect_b32 s45, s45, {QOFF[1]}\ns_cselect_b32 s46, {ini.index('Q0')+1}, {ini.index('Q1')+1}\ns_and_b32 s19, s16, 1\ns_lshl_b32 s19, s19, 9\ns_add_u32 s45, s45, s19")
    e(f"v_add_u32 v{vT1}, s45, v{vKA[0]}")
    if sp1:
        e(f"v_cmp_eq_u32 vcc, 0, v8\nv_mov_b32 v3, 0x3f803f80\nv_mov_b32 v{vONE+1}, 0\ns_nop 0\nv_cndmask_b32 v{vONE}, v{vONE+1}, v3, vcc")
        for r in range(1,4): e(f"v_mov_b32 v{vONE+r}, v{vONE}")
    else:
        for r in range(4): e(f"v_mov_b32 v{vONE+r}, 0x3f803f80")
    e("s_waitcnt lgkmcnt(0)")
    e("s_add_u32 s32, s10, s18\ns_addc_u32 s33, s11, 0\ns_mov_b32 s34, 32768\ns_mov_b32 s35, 0x20000")
    e("s_add_u32 s20, s6, s17\ns_addc_u32 s21, s7, 0\ns_mov_b32 s22, 131072\ns_mov_b32 s23, 0x20000")
    e("s_add_u32 s24, s8, s17\ns_addc_u32 s25, s9, 0\ns_mov_b32 s26, 131072\ns_mov_b32 s27, 0x20000")
    e("s_barrier\ns_branch L_main")
    e(text(rare))
    e(".p2align 3\nL_main:")
    e(text(prog))
    if stamps:
        ns=scnt[0]
        e("s_waitcnt vmcnt(0)")
        e(f"s_memtime s[{50+2*ns}:{51+2*ns}]\ns_memrealtime s[{52+2*ns}:{53+2*ns}]\ns_waitcnt lgkmcnt(0)")
        e("s_mov_b32 s36, s12\ns_mov_b32 s37, s13\ns_mov_b32 s38, 0x1000000\ns_mov_b32 s39, 0x20000")
        e("s_cmp_lg_u32 s16, 3\ns_cbranch_scc1 L_end2")
        e("s_lshl_b32 s45, s2, 8\nv_mov_b32 v7, s45")
        regs=[96,98]+[50+2*i for i in range(ns+2)]
        assert regs[-1]<76
        for i,r in enumerate(regs):
            e(f"v_mov_b32 v8, s{r}\nbuffer_store_dword v8, v7, s[36:39], 0 offen offset:{4*i}\ns_nop 1")
        sys.stderr.write(f"nstamps={len(regs)}\n")
        e("L_end2:")
    if diag is not None:
        e("s_waitcnt vmcnt(0)")
        if diag=='end': e("s_memrealtime s[60:61]")
        e(f"s_memrealtime s[62:63]\ns_waitcnt lgkmcnt(0)\ns_sub_u32 s67, s60, s96\ns_mul_i32 s67, s67, {dk}\ns_min_u32 s67, s67, 100000\nL_spin:\ns_memrealtime s[64:65]\ns_waitcnt lgkmcnt(0)\ns_sub_u32 s66, s64, s62\ns_cmp_lt_u32 s66, s67\ns_cbranch_scc1 L_spin")
    e("s_endpgm")
    e(text(S))
    e(f'.section .rodata,"a"\n.p2align 6\n.amdhsa_kernel {KN}')
    e(f"  .amdhsa_next_free_vgpr 256\n  .amdhsa_next_free_sgpr 102\n  .amdhsa_accum_offset 256\n  .amdhsa_group_segment_fixed_size 0\n  .amdhsa_kernarg_size 48\n  .amdhsa_user_sgpr_count 2\n  .amdhsa_user_sgpr_kernarg_segment_ptr 1\n  .amdhsa_system_sgpr_workgroup_id_x 1\n.end_amdhsa_kernel")
    return "\n".join(H)+"\n"

if __name__=="__main__":
    name=sys.argv[1]; kw={}
    for a in sys.argv[2:]:
        k,v=a.split("=",1)
        try: v=int(v)
        except:
            try: v=float(v)
            except: pass
        kw[k]=v
    open(name,"w").write(gen(**kw))
```

```python
import sys, math, struct
from asmlib import *

KN="standalone__gqa_softmax__near_ridge_kernel"
C_SCALE = math.log2(math.e)/math.sqrt(128.0)
def f2u(x): return struct.unpack("<I",struct.pack("<f",x))[0]

KSL=16768; VSL=16896; SS=KSL+VSL
XB=4*SS; FB=XB+VSL; SB=FB+2048; STG=2048
assert SB+4*STG<=163840
def KOFF(j): return (j%4)*SS
def VOFF(j): return XB if j==7 else ((j+1)%4)*SS+KSL
QOFF=[VOFF(3),XB]
NL=2; NI=8

def mfma16(d,a,b,c):
    ct = vr(c,4) if isinstance(c,int) else c
    rd=R(a,4)+R(b,4)+(R(c,4) if isinstance(c,int) else [])
    return I(f"v_mfma_f32_16x16x32_bf16 {vr(d,4)}, {vr(a,4)}, {vr(b,4)}, {ct}",'mfma',rd=rd,wr=R(d,4),cost=8,passes=4,
             srcc=(R(c,4) if isinstance(c,int) else []))
def pkmul(d,a,b):
    return I(f"v_pk_mul_f32 {vr(d,2)}, {vr(a,2)}, {vr(b,2)}",'valu',rd=R(a,2)+R(b,2),wr=R(d,2),cost=6)
def cnd_dpp(d,s0,s1,qp):
    return I(f"v_cndmask_b32_dpp v{d}, v{s0}, v{s1}, vcc quad_perm:{qp} row_mask:0xf bank_mask:0xf",'dpp',rd=[s0,s1],wr=[d])

def gen(depth=3, ldflags="nt", stflags="sc1", stamps=0, pf=7, G=4, lthr=2.0**48, budget=8.0, fl=2, verbose=0, diag=None, dk=1,
        nomem=0, NFR=8, lsleep=4, forceslow=0, HZ=3, tailb=12, order=4, stc=16, sigs="1,3", stset='K0,K2,K4,K6,st',
        late=2, qsleep=4, osleep=2, init='Q0,Q1,K0,K1,V0', rt=0, wv=-1, v7e=0, pk2=1, cmax=4, cb=6, rk=0, ov=1, sp1=1, l2p='', l2at=0, slow=0, slo0=0, slo1=0, wmap=0, stw=3, gray=0):
    vONE=4
    vKA=[10,11]; vVA=[12,13,14]; vFA,vSA=15,16
    vNM=[17,18]; vMX=[19,20]; vT1=21; vOA=26
    vRL=[22,24]
    vF=[27,28]; vSG=29; vGK=30; vGV=31; vT2=9; vT3=8
    vQ=32; vFR=64
    vNB=vFR+4*NFR; vL=vNB+8
    vS=[vNB+16+16*i for i in range(3)]
    vP=[vS[2]+16+8*i for i in range(4)]
    vO=vP[3]+8
    assert vO+64<=256
    sC="s40"; sTHR="s41"
    sEV,sOD,sLO,sHI="s[76:77]","s[78:79]","s[80:81]","s[82:83]"
    ini=init.split(','); q4='W0' in ini; qx='A0' in ini; voff=2 if (q4 or qx) else 0; assert len(ini)-voff in (5,7)
    LK=lambda j: ini.index(f"K{j}")+1 if f"K{j}" in ini else 2*j+2+voff
    LV=lambda j: ini.index(f"V{j}")+1 if f"V{j}" in ini else (2*j+5 if j<7 else 18)+voff
    sig_iters=[int(x) for x in str(sigs).split(",")]
    rare=[]; scnt=[0]
    def stamp(name):
        o=[]
        if diag==name: o.append(raw("s_memrealtime s[60:61]"))
        if stamps and name in stset.split(','):
            i=scnt[0]; scnt[0]+=1; o.append(raw(f"s_memtime s[{50+2*i}:{51+2*i}]"))
            if rt: i=scnt[0]; scnt[0]+=1; o.append(raw(f"s_memrealtime s[{50+2*i}:{51+2*i}]"))
        return o
    cn=[0]
    def flag_read():
        r=vF[cn[0]%2]; return I(f"ds_read_b32 v{r}, v{vFA}",'dsr',rd=[vFA],wr=[r])
    def flag_check(val,name):
        r=vF[cn[0]%2]; cn[0]+=1
        if nomem: return stamp(name)
        rare.extend([label(f"L_spin{name}"), raw(f"s_sleep {qsleep if name=='q' else osleep}"), raw(f"ds_read_b32 v{r}, v{vFA}"), raw("s_waitcnt lgkmcnt(0)"),
                     raw(f"v_cmp_gt_u32 vcc, {val}, v{r}"), raw(f"s_cbranch_vccnz L_spin{name}"), raw(f"s_branch L_back{name}")])
        return [I(f"v_cmp_gt_u32 vcc, {val}, v{r}\n    s_cbranch_vccnz L_spin{name}\nL_back{name}:",'valu',rd=[r],sw=['vcc'],cost=8)]+stamp(name)
    def signal(val): return [valu("v_mov_b32",vSG,str(val)), I(f"ds_write_b32 v{vSA}, v{vSG}",'dsw',rd=[vSA,vSG])]
    def Oreg(dl,x): return vO+16*(dl//2)+8*(dl%2)+4*x

    M=[]; nfr=[0]
    def newf():
        f=vFR+4*(nfr[0]%NFR); nfr[0]+=1; return f
    def addr(base,off):
        ss=off//SS; return (base[ss//2], off-(ss//2)*2*SS)
    def add_qk(h):
        j,u=divmod(h,2); d=vS[h%3]
        sq=[(kp,s) for s in range(4) for kp in range(2)] if gray else [(kp,s) for kp in range(2) for s in range(4)]
        for n,(kp,s) in enumerate(sq):
            f=newf(); a,o=addr(vKA,KOFF(j)+(2*u+kp)*256+16*s)
            mf=[]
            for x in ((1,0) if (gray and n%2) else (0,1)):
                dd=d+8*x+4*kp
                c0=(vNB+4*x) if h>=2 else "0"
                mf.append(mfma16(dd,f,vQ+16*x+4*s,c0 if s==0 else dd))
            M.append(dict(mf=mf,reads=[dsr128(f,a,o)],st=('K',j),id=('K',h,n)))
    ldone=set(); gx=[0]
    def one_pv(h,dl):
        j,u=divmod(h,2); f=newf(); rds=[]
        for kp in range(2):
            io=(2*u+kp)*256+32*dl
            a,o=addr(vVA,VOFF(j)-KSL+io) if j<7 else (vVA[2],io)
            rds.append(dsrtr(f+2*kp,a,o))
        xo=(gx[0],1-gx[0]) if (gray and h in ldone) else (0,1)
        mf=[mfma16(Oreg(dl,x),f,vP[h%4]+4*x,"0" if h==0 else Oreg(dl,x)) for x in xo]
        gx[0]=xo[1]
        if h not in ldone:
            ldone.add(h)
            mf+=[mfma16(vL+4*x,vONE,vP[h%4]+4*x,"0" if h==0 else vL+4*x) for x in ((1,0) if gray else (0,1))]
            gx[0]=0
        M.append(dict(mf=mf,reads=rds,st=('V',j),id=('V',h,dl)))
    def add_pv(h,dls=range(8)):
        for dl in dls: one_pv(h,dl)
    def pvt(j,cg):
        for h in (2*j,2*j+1): add_pv(h,(2*cg,2*cg+1))
    add_qk(0); add_qk(1); add_qk(2); add_qk(3); add_pv(0); add_pv(1)
    for i in range(2,7):
        add_qk(2*i); add_pv(2*i-2); add_qk(2*i+1); add_pv(2*i-1)
    add_qk(14); add_qk(15)
    if order==4: seq=[(6,0),(6,1),(7,0),(7,1),(6,2),(7,2),(6,3),(7,3)]
    elif order==1: seq=[(6,3),(6,2),(6,0),(7,0),(6,1),(7,1),(7,2),(7,3)]
    for j,cg in seq: pvt(j,cg)
    NM=len(M); assert NM==256
    pos={m['id']:i for i,m in enumerate(M)}
    first_use={}; last_use={}
    for i,m in enumerate(M):
        first_use.setdefault(m['st'],i); last_use[m['st']]=i
    for st,i in first_use.items(): M[i]['need']=(LK(st[1]) if st[0]=='K' else LV(st[1]), f"{st[0]}{st[1]}")
    if v7e: del M[first_use[('V',7)]]['need']
    for it in sig_iters: M[max(last_use[('K',it)],last_use[('V',it-1)])]['sig']=2*it+4
    F=[]
    def addF(lst,avail,due):
        for x in lst: F.append([x,avail,due])
    def xlane(o,regs,tmps,op):
        for pm in (perm16,perm32):
            for r,t in zip(regs,tmps): o.append(valu("v_mov_b32",t,r))
            for r,t in zip(regs,tmps): o.append(pm(r,t))
            for r,t in zip(regs,tmps): o.append(valu(op,r,r,t))
    def max8(src,dst,first):
        if first: return [valu("v_max3_f32",dst,src,src+1,src+2),valu("v_max3_f32",dst,dst,src+3,src+4),valu("v_max3_f32",dst,dst,src+5,src+6),valu("v_max_f32",dst,dst,src+7)]
        return [valu("v_max3_f32",dst,dst,src+2*k,src+2*k+1) for k in range(4)]
    def exp_blk(src,dstp,pre):
        seq=[]; n=16
        for i in range(n+3):
            if i<n and pre: seq.append(valu("v_add_f32",src+i,src+i,vNM[i//8]))
            if 0<=i-1<n: seq.append(trans("v_exp_f32",src+i-1,src+i-1))
            if i-3>=0 and (i-3)%2==1:
                k=(i-3)//2; seq.append(valu("v_cvt_pk_bf16_f32",dstp+k,src+2*k,src+2*k+1))
        return seq
    a,b=max8(vS[0],vMX[0],True),max8(vS[0]+8,vMX[1],True)
    st=[y for p in zip(a,b) for y in p]; xlane(st,vMX,[vT1,vT3],"v_max_f32")
    st+=[valu("v_sub_f32",vNM[x],"0",vMX[x]) for x in range(2)]+[valu("v_sub_f32",vNB+i,"0",vMX[i//4]) for i in range(8)]
    HS=1 if HZ<=3 else 2
    addF(st,8+HS,16)
    for h in range(16):
        av=pos[('K',h,7)]+1+HS
        dueS=pos[('K',h+3,0)] if h+3<16 else NM
        fu=min(pos[('V',h,dl)] for dl in range(8))
        for x in exp_blk(vS[h%3],vP[h%4],h<2):
            a=av; d=dueS
            if x.text.startswith("v_cvt"):
                d=min(d,fu)
                if h>=4: a=max(a,max(pos[('V',h-4,dl)] for dl in range(8))+1)
            F.append([x,a,d])
    lpos=min(pos[('V',15,dl)] for dl in range(8))
    br="" if nomem else ("\n    s_cbranch_vccnz L_slow" if not forceslow else "\n    s_branch L_slow")
    fin=[valu("v_max_f32",vT1,vL,vL+4),valu("v_add_f32",vT3,vL,vL+4),trans("v_rcp_f32",vRL[0],vL),trans("v_rcp_f32",vRL[1],vL+4),
         I(f"v_cmp_nge_f32 vcc, {sTHR}, v{vT3}"+br,'valu',rd=[vT3],sw=['vcc'],sr=[sTHR],cost=8),
         valu("v_mov_b32",vRL[0]+1,vRL[0]),valu("v_mov_b32",vRL[1]+1,vRL[1])][1:]
    addF(fin,lpos+1+HS,NM+1)
    def setvcc(s): return I(f"s_mov_b64 vcc, {s}",'salu')
    def epi(cg,pk=False):
        o=vO+16*cg; r=[]
        xof=lambda k:(k//4)%2
        r+=[pkmul(o+2*k,o+2*k,vRL[xof(2*k)]) for k in range(8)] if pk else [valu("v_mul_f32",o+k,o+k,vRL[xof(k)]) for k in range(16)]
        r+=[valu("v_cvt_pk_bf16_f32",o+k,o+2*k,o+2*k+1) for k in range(8)]
        W=lambda d,x,e:o+4*d+2*x+e; X=lambda d,x,e:o+8+4*d+2*x+e
        de=[(d,e) for d in range(2) for e in range(2)]; xe=[(x,e) for x in range(2) for e in range(2)]
        r+=[perm32(W(d,0,e),W(d,1,e)) for d,e in de]
        r+=[setvcc(sEV)]+[cnd_dpp(X(d,0,e),W(d,1,e),W(d,0,e),"[1,0,3,2]") for d,e in de]
        r+=[setvcc(sOD)]+[cnd_dpp(X(d,1,e),W(d,0,e),W(d,1,e),"[1,0,3,2]") for d,e in de]
        r+=[setvcc(sLO)]+[cnd_dpp(W(0,x,e),X(1,x,e),X(0,x,e),"[2,3,0,1]") for x,e in xe]
        r+=[setvcc(sHI)]+[cnd_dpp(W(1,x,e),X(0,x,e),X(1,x,e),"[2,3,0,1]") for x,e in xe]
        r+=[perm16(W(d,0,e),W(d,1,e)) for d,e in de]
        sts=[I(f"buffer_store_dwordx4 {vr(o+4*t,4)}, v{vOA}, s[32:35], 0 offen offset:{512*t+64*cg} {stflags}".rstrip(),'st4',rd=[vOA]+R(o+4*t,4),cost=stc) for t in range(2)]
        sts[1].cost=0
        return r+sts
    lastcg={cg:max(i for i,m in enumerate(M) if m['id'][0]=='V' and m['id'][2]//2==cg) for cg in range(4)}
    corder=sorted(range(4),key=lambda c:lastcg[c])
    for n,cg in enumerate(corder[:3]):
        late2=(pk2 and n==2)
        addF(epi(cg,pk=late2),(lastcg[cg]+1+HS) if not late2 else NM+5,NM+1)
    assert max(i for i,m in enumerate(M) if 'need' in m)-pf<lpos
    P=[]
    t=vS[2]
    def presc(r0,n):
        o=[]
        for k in range(n+2):
            r=r0+k
            if k<n:
                a=t+2*(r%8); o+=[valu("v_lshlrev_b32",a,"16",vQ+r),valu("v_and_b32",a+1,"0xffff0000",vQ+r)]
            if 1<=k<n+1:
                b=t+2*((r-1)%8); o.append(pkmul(b,b,vRL[0]))
            if k>=2:
                b=t+2*((r-2)%8); o.append(valu("v_cvt_pk_bf16_f32",vQ+r-2,b,b+1))
        return o
    P+=[flag_read()]+flag_check("s46","q")
    if not qx:
        for x in range(2):
            for s in range(4): P.append(dsr128(vQ+16*x+4*s,vT1,(512 if q4 else 256)*x+16*s))
        P+=[valu("v_mov_b32",vRL[0],sC),valu("v_mov_b32",vRL[0]+1,sC)]+presc(0,32)
    else:
        for s in range(4): P.append(dsr128(vQ+4*s,vT1,16*s))
        P+=[valu("v_mov_b32",vRL[0],sC),valu("v_mov_b32",vRL[0]+1,sC)]+presc(0,16)
        P+=[flag_read()]+flag_check("s48","q2")
        for s in range(4): P.append(dsr128(vQ+16+4*s,vT1,8320+16*s))
        P+=presc(16,16)
    fi=0
    def reads_for(i):
        m=M[i]; o=[]
        if 'need' in m:
            if not m.get('fr'): o.append(flag_read())
            o+=flag_check(*m['need'])
        o+=m['reads']
        if 'sig' in m: o+=signal(m['sig'])
        return o
    needs=[i for i in range(NM) if 'need' in M[i]]
    lates=[i for i in needs if M[i]['need'][1] in ('K1','V0')] if late else []
    def rg(i):
        g=i-pf
        for b in lates:
            if b<=i: g=max(g,b-late)
        return max(g,-1)
    by_gap={}
    for i in range(NM): by_gap.setdefault(rg(i),[]).append(i)
    fr_gap={}
    for a,b in zip([None]+needs[:-1],needs):
        g=rg(b)-fl
        if a is not None: g=max(g,rg(a))
        if 0<=g<rg(b): fr_gap[g]=b
    for i in by_gap[-1]: P+=reads_for(i)
    E=[]; C=[]
    nsm=sum(1 for _ in F)
    for it in F:
        if it[0].text.startswith("v_cvt") and list(it[0].wr)[0]<vO: C.append(it+[len(E)])
        else: E.append(it)
    ei=0; ci=0; carry=0.0
    def force(g):
        nonlocal ei,ci
        while True:
            ce=[k for k in range(ci,min(ci+40,len(C))) if C[k][2]<=g]
            ee=[k for k in range(ei,min(ei+150,len(E))) if E[k][2]<=g]
            needE=max([k+1 for k in ee]+[C[k][3] for k in ce]+[0])
            if ci<len(C) and ce and C[ci][3]<=ei:
                assert C[ci][1]<=g+HS; P.append(C[ci][0]); ci+=1
            elif ei<needE:
                assert E[ei][1]<=g+HS,("forced before avail",E[ei][0].text,E[ei][1],g); P.append(E[ei][0]); ei+=1
            else: break
    for g in range(NM):
        force(g)
        if G>1 and g%G==0:
            ex=set()
            for k in range(1,G):
                if g+k<NM and rg(g+k)<g-1:
                    for r in M[g+k]['reads']: ex|=r.wr
            P.append(I("",'touch',rd=ex,cost=0))
        if slow and slo0<=g<slo1 and g%2==0: P.append(nop(slow-1))
        fixed=[]
        for i in by_gap.get(g,[]): fixed+=reads_for(i)
        if g in fr_gap:
            fixed.append(flag_read()); M[fr_gap[g]]['fr']=True
        b=budget if g<pos[('K',15,7)] else tailb
        nmf=len(M[g]['mf'])
        for k,mf in enumerate(M[g]['mf']):
            P.append(mf)
            cost=0
            if k==rk: P+=fixed; cost+=sum(x.cost for x in fixed)
            if k==nmf-1 and (g+1)%G==0: cost+=4
            av=g+1 if k==nmf-1 else g
            while cost<b or (ei<len(E) and E[ei][0].cost==0):
                room=b-cost
                cok = ci<len(C) and C[ci][3]<=ei and C[ci][1]<=av
                eok = ei<len(E) and E[ei][1]<=av
                if cok and (not eok or E[ei][0].cost>room): P.append(C[ci][0]); cost+=4; ci+=1
                elif eok and (E[ei][0].cost<=room or ov): P.append(E[ei][0]); cost+=E[ei][0].cost; ei+=1
                else: break
    force(10**6)
    assert ei==len(E) and ci==len(C)
    P+=epi(corder[3],pk=True)+stamp('st')
    prog=insert_lgkm(P); prog=[x for x in prog if x.kind!='touch']
    prog,added=pad_hazards(prog,verbose)
    out=[]; i=0
    while i<len(prog):
        x=prog[i]
        if x.kind=='st4':
            j=i
            while j+1<len(prog) and prog[j+1].kind=='st4': j+=1
            last = all(y.kind not in('st4','valu','dpp') for y in prog[j+1:])
            out.append(raw("s_cbranch_execz L_sdone" if last else f"s_cbranch_execz L_sk{i}")); out+=prog[i:j+1]
            if not last: out.append(label(f"L_sk{i}"))
            i=j+1; continue
        out.append(x); i+=1
    prog=out
    k0=[i for i,x in enumerate(prog) if x.kind=='mfma'][0]
    sys.stderr.write(f"consumer: {len(prog)} instrs, nops {added}, issue-sum {sum(x.cost for x in prog[k0:])} est total {est_cycles(prog)} from-first-mfma {est_cycles(prog[k0:])}\n")

    S=[]; sa=vS[0]; kf=vS[1]; sp=vP[0]
    S+=[label("L_slow"),raw("s_cbranch_execz L_sdone"),raw("s_waitcnt vmcnt(0) lgkmcnt(0)"), nop(15), nop(15)]
    S+=[valu("v_mov_b32",vMX[x],"0xff800000") for x in range(2)]+[raw("s_mov_b32 s46, 0"), label("L_s1")]
    def kpart():
        o=[raw("s_add_u32 s19, s46, 4096")]
        for kp in range(2):
            for s in range(4): o.append(raw(f"buffer_load_dwordx4 {vr(kf+16*kp+4*s,4)}, v{vGK}, s[20:23], {'s46' if kp==0 else 's19'} offen offset:{16*s}"))
        o.append(raw("s_waitcnt vmcnt(0)"))
        for kp in range(2):
            for s in range(4):
                for x in range(2):
                    dd=sa+8*x+4*kp; o.append(mfma16(dd,kf+16*kp+4*s,vQ+16*x+4*s,"0" if s==0 else dd))
        return o
    S+=kpart()+max8(sa,vMX[0],False)+max8(sa+8,vMX[1],False)
    S+=[raw("s_add_u32 s46, s46, 8192"),raw("s_cmp_lt_u32 s46, 131072"),raw("s_cbranch_scc1 L_s1")]
    xlane(S,vMX,[vT1,vT3],"v_max_f32")
    S+=[valu("v_sub_f32",vNM[x],"0",vMX[x]) for x in range(2)]
    S+=[valu("v_mov_b32",vL+i,"0") for i in range(8)]+[valu("v_mov_b32",vO+i,"0") for i in range(64)]
    S+=[raw("s_mov_b32 s46, 0"), label("L_s2")]
    S+=kpart()+exp_blk(sa,sp,True)
    for half in range(2):
        for kp in range(2):
            S+=[raw("s_mov_b32 m0, s47"),raw(f"s_add_u32 s19, s46, {kp*4096+half*128}"),raw(f"buffer_load_dwordx4 v{vGV}, s[24:27], s19 offen lds"),
                raw("s_add_u32 m0, s47, 1024"),raw("s_add_u32 s19, s19, 2048"),raw(f"buffer_load_dwordx4 v{vGV}, s[24:27], s19 offen lds"),raw("s_waitcnt vmcnt(0)")]
            S+=[raw(f"ds_read_b64_tr_b16 {vr(kf+4*dl+2*kp,2)}, v{vT2} offset:{32*dl}") for dl in range(4)]
            S.append(raw("s_waitcnt lgkmcnt(0)"))
        S+=[mfma16(Oreg(4*half+dl,x),kf+4*dl,sp+4*x,Oreg(4*half+dl,x)) for dl in range(4) for x in range(2)]
        S.append(nop(7))
    S+=[mfma16(vL+4*x,vONE,sp+4*x,vL+4*x) for x in range(2)]
    S+=[nop(15),raw("s_add_u32 s46, s46, 8192"),raw("s_cmp_lt_u32 s46, 131072"),raw("s_cbranch_scc1 L_s2")]
    S+=[trans("v_rcp_f32",vRL[0],vL),trans("v_rcp_f32",vRL[1],vL+4),nop(1)]
    for cg in range(4): S+=epi(cg)
    S.append(raw("s_endpgm"))
    S,_=pad_hazards(S)

    H=[]; e=H.append
    e(f"; @launch grid=(256,1,1) block=(448,1,1) lds=163840")
    e("""; GQA attention  B16 Hq32 Hkv8 Sq64 Sk512 D128 (bf16).  Generated by a hand-written Python generator.
; One workgroup per CU: (batch, kv head) pair x 128 query rows; the two workgroups of a pair are ids i, i+8 (L2 locality only).
; Wave 2: instruction-cache scout (walks the consumer code with vector instructions skipped, touches no memory).
;   a run-time check of the row sum (<= 2^48, not NaN) sends the wave to L_slow, which recomputes its rows with the true row max.""")
    e('.amdgcn_target "amdgcn-amd-amdhsa--gfx950"')
    e(f".text\n.globl {KN}\n.p2align 8\n.type {KN},@function\n{KN}:")
    e("s_load_dwordx4 s[4:7], s[0:1], 0\ns_load_dwordx4 s[8:11], s[0:1], 16")
    if stamps: e("s_load_dwordx2 s[12:13], s[0:1], 40\ns_memrealtime s[96:97]\ns_memtime s[98:99]")
    if diag is not None: e("s_memrealtime s[96:97]")
    e("s_cmp_ge_u32 s2, 256\ns_cbranch_scc1 L_end")
    e("v_lshrrev_b32 v1, 6, v0\nv_and_b32 v2, 63, v0")
    e("s_and_b32 s14, s2, 7\ns_lshr_b32 s15, s2, 4\ns_lshl_b32 s15, s15, 3\ns_add_u32 s14, s14, s15")
    e("v_readfirstlane_b32 s16, v1")
    e("s_bfe_u32 s15, s2, 0x10003\ns_lshl_b32 s17, s14, 17")
    e("s_lshl_b32 s18, s14, 16\ns_lshl_b32 s19, s15, 15\ns_add_u32 s18, s18, s19")
    e(f"v_lshlrev_b32 v{vSA}, 2, v0\nv_add_u32 v{vSA}, {FB}, v{vSA}\nv_mov_b32 v{vSG}, 0\nds_write_b32 v{vSA}, v{vSG}")
    e(f"s_cmp_ge_u32 s16, {NL}\ns_cbranch_scc1 L_consumer")
    if nomem==1: e("s_waitcnt lgkmcnt(0)\ns_barrier\ns_endpgm")
    e("s_getpc_b64 s[36:37]\nL_pc:")
    e("s_add_u32 s36, s36, L_table-L_pc\ns_addc_u32 s37, s37, 0\ns_mov_b32 s38, 128\ns_mov_b32 s39, 0x20000")
    e("v_lshrrev_b32 v3, 4, v2\nv_and_b32 v4, 15, v2\nv_lshlrev_b32 v4, 4, v4\ns_lshl_b32 s44, s16, 11\nv_add_u32 v4, s44, v4\nv_lshl_add_u32 v6, v3, 12, v4")
    e("v_lshlrev_b32 v5, 4, v2")
    e(f"s_mul_i32 s42, s16, {8*1040+128}\ns_mul_i32 s43, s16, {8*1056}\ns_add_u32 s43, s43, {KSL}\ns_lshl_b32 s85, s16, 13\ns_add_u32 s17, s17, s85")
    e(f"s_lshl_b32 s44, s16, 8\ns_add_u32 s44, s44, {FB}")
    e("s_mov_b32 s30, 32768\ns_mov_b32 s31, 0x20000\ns_sub_u32 s22, 131072, s85\ns_mov_b32 s23, 0x20000\ns_mov_b32 s26, s22\ns_mov_b32 s27, 0x20000")
    e("s_movk_i32 s40, 784")
    e("s_waitcnt lgkmcnt(0)")
    lst=[0]
    def lstamp():
        if stamps:
            i=lst[0]; lst[0]+=1; e(f"s_memtime s[{50+2*i}:{51+2*i}]")
    lstamp()
    e("s_add_u32 s28, s4, s18\ns_addc_u32 s29, s5, 0\ns_add_u32 s20, s6, s17\ns_addc_u32 s21, s7, 0\ns_add_u32 s24, s8, s17\ns_addc_u32 s25, s9, 0")
    def q_stage(soff,n=NI):
        for g in range(n):
            e(f"buffer_load_dwordx4 v6, s[28:31], {soff} offen offset:{g*256} {ldflags} lds")
            if g<n-1: e("s_add_u32 m0, m0, s40\ns_nop 0")
    def lin_stage(srd,soff,step):
        cur=soff
        for g in range(NI):
            e(f"buffer_load_dwordx4 v5, {srd}, {cur} offen offset:{(g%4)*1024} {ldflags} lds")
            if g<NI-1:
                if g%4==3: e(f"s_add_u32 m0, m0, {4096+step}\ns_add_u32 s86, {cur}, 4096"); cur="s86"
                else: e(f"s_add_u32 m0, m0, {step}\ns_nop 0")
    def lflag(soff): e(f"s_mov_b32 m0, s44\ns_nop 0\nbuffer_load_dword v{vSG}, s[36:39], {soff} offen lds")
    W=(NI+1)*(depth-1)
    cnts=[]; barred=False
    if q4: e("s_lshl_b32 s84, s16, 10\nv_sub_u32 v6, v4, s84\nv_lshl_add_u32 v6, v3, 11, v6\ns_mul_i32 s84, s16, 4160")
    if qx: e("s_lshl_b32 s84, s16, 10\nv_sub_u32 v6, v4, s84\nv_and_b32 v7, 1, v3\nv_lshl_add_u32 v6, v7, 11, v6\nv_lshrrev_b32 v7, 1, v3\nv_lshl_add_u32 v6, v7, 13, v6\ns_mul_i32 s84, s16, 4160")
    for n,stg in enumerate(ini):
        k,j=stg[0],int(stg[1])
        c=NI//2+1 if k in 'WAB' else NI+1
        lim=(NI+1)*depth
        if sum(cnts)+c>lim:
            if not barred: e("s_barrier"); barred=True
            keep=0
            for x in reversed(cnts):
                if keep+x+c<=lim: keep+=x
                else: break
            e(f"s_waitcnt vmcnt({keep})")
        if k=='Q': e(f"s_add_u32 m0, s42, {QOFF[j]}\ns_mov_b32 s45, {j*16384}"); q_stage("s45")
        elif k=='W': e(f"s_add_u32 m0, s84, {QOFF[j//2]+(j%2)*8320}\ns_mov_b32 s45, {j*8192}"); q_stage("s45",NI//2)
        elif k in 'AB': e(f"s_add_u32 m0, s84, {QOFF[k=='B']+j*8320}\ns_mov_b32 s45, {(k=='B')*16384+j*4096}"); q_stage("s45",NI//2)
        elif k=='K': e(f"s_add_u32 m0, s42, {KOFF(j)}\ns_mov_b32 s45, {j*16384}"); lin_stage("s[20:23]","s45",16)
        else: e(f"s_add_u32 m0, s43, {VOFF(j)-KSL}\ns_mov_b32 s45, {j*16384}"); lin_stage("s[24:27]","s45",32)
        lflag(str(4*(n+1))); cnts.append(c)
    assert barred
    lstamp()
    if wv>=0: W=wv
    e(f"v_and_b32 v3, 3, v2\nv_lshlrev_b32 v3, 8, v3\nv_lshl_add_u32 v{vFA}, v2, 2, v3\nv_add_u32 v{vFA}, {FB+256*3}, v{vFA}")
    i0=(len(ini)-voff-1)//2
    e(f"s_mov_b32 s46, {(i0%4)*SS}\ns_mov_b32 s49, {8*i0+8+4*voff}\ns_mov_b32 s45, {i0*16384}")
    def need_for(i):
        if i<4: return 0
        req=6 if i in (4,8) else 2*(i-4)+4
        return min(2*it+4 for it in sig_iters if 2*it+4>=req)
    packed=0; seen=0
    for i in range(1,9):
        n=need_for(i)
        if n>seen: packed|=n<<(4*(i-1)); seen=n
    packed>>=4*(i0-1)
    e(f"s_mov_b32 s48, {packed:#x}")
    def l2pre():
        for t in l2p.split(','):
            e(f"s_mov_b32 s15, {int(t[1])*16384}\nbuffer_load_dword v9, v7, {'s[20:23]' if t[0]=='K' else 's[24:27]'}, s15 offen")
    if l2p: e("v_lshlrev_b32 v7, 7, v2")
    e("L_lloop:")
    if not nomem:
        e("s_and_b32 s14, s48, 15\ns_cbranch_scc0 L_lgo")
        e(f"s_branch L_lx\nL_lw:\ns_sleep {lsleep}\nL_lx:\nds_read_b32 v8, v{vFA}\ns_waitcnt lgkmcnt(0)\nv_cmp_gt_u32 vcc, s14, v8\ns_cbranch_vccnz L_lw\nL_lgo:")
    e("s_lshr_b32 s48, s48, 4\ns_sub_u32 s15, s45, 16384")
    e(f"s_cmp_eq_u32 s49, {72+4*voff}\ns_cselect_b32 s46, {XB-KSL}, s46\ns_cbranch_scc1 L_lv")
    e(f"s_add_u32 m0, s46, s42\ns_waitcnt vmcnt({W})")
    lin_stage("s[20:23]","s45",16); lflag("s49")
    e("s_add_u32 s49, s49, 4\nL_lv:")
    e(f"s_add_u32 m0, s46, s43\ns_waitcnt vmcnt({W})")
    lin_stage("s[24:27]","s15",32); lflag("s49")
    e(f"s_add_u32 s49, s49, 4\ns_add_u32 s45, s45, 16384\ns_add_u32 s46, s46, {SS}\ns_cmp_eq_u32 s46, {4*SS}\ns_cselect_b32 s46, 0, s46")
    if v7e:
        e(f"s_cmp_lg_u32 s49, {8*(v7e+1)+8+4*voff}\ns_cbranch_scc1 L_nv7")
        e(f"s_add_u32 m0, s43, {XB-KSL}\ns_mov_b32 s15, {7*16384}\ns_waitcnt vmcnt({W})")
        lin_stage("s[24:27]","s15",32)
        if l2p and not l2at: l2pre()
        e("L_nv7:")
        if l2p and l2at:
            e(f"s_cmp_lg_u32 s49, {8*(l2at+1)+8}\ns_cbranch_scc1 L_np"); l2pre(); e("L_np:")
        e(f"s_cmp_lt_u32 s49, {72+4*voff}\ns_cbranch_scc1 L_lloop")
    else: e(f"s_cmp_lt_u32 s49, {76+4*voff}\ns_cbranch_scc1 L_lloop")
    lstamp()
    e("s_waitcnt vmcnt(0)")
    lstamp()
    if stamps:
        e("s_memrealtime s[94:95]\ns_waitcnt lgkmcnt(0)")
        e("s_mov_b32 s36, s12\ns_mov_b32 s37, s13\ns_mov_b32 s38, 0x1000000\ns_mov_b32 s39, 0x20000")
        e("s_cmp_lg_u32 s16, 0\ns_cbranch_scc1 L_end")
        e("s_lshl_b32 s45, s2, 8\ns_add_u32 s45, s45, 65536\nv_mov_b32 v7, s45")
        for i,r in enumerate([96,98]+[50+2*min(i,lst[0]-1) for i in range(scnt[0]+1)]+[94]):
            e(f"v_mov_b32 v8, s{r}\nbuffer_store_dword v8, v7, s[36:39], 0 offen offset:{4*i}\ns_nop 1")
    e("L_end:\ns_endpgm")
    e(".p2align 7\nL_table:\n"+"\n".join(f".long {i}" for i in range(32)))
    e("L_consumer:")
    e(f"s_cmp_ge_u32 s16, 3\ns_cbranch_scc1 L_cons2")
    e("s_waitcnt lgkmcnt(0)\ns_barrier\ns_mov_b64 exec, 0\ns_mov_b64 vcc, 0\ns_setvskip -1, 0\ns_nop 3\ns_branch L_main\nL_sdone:\ns_setvskip 0, 0\ns_endpgm\nL_cons2:")
    e("s_sub_u32 s16, s16, 3")
    if wmap: e(f"s_lshl_b32 s16, s16, 2\ns_lshr_b32 s16, {wmap:#x}, s16\ns_and_b32 s16, s16, 3")
    e(f"v_and_b32 v3, 1, v2\nv_lshlrev_b32 v3, 8, v3\nv_lshl_add_u32 v{vFA}, v2, 2, v3\nv_add_u32 v{vFA}, {FB}, v{vFA}")
    e("s_getpc_b64 s[36:37]\nL_pc2:\ns_add_u32 s36, s36, L_main-L_pc2\ns_addc_u32 s37, s37, 0\ns_mov_b32 s38, L_slow-L_main\ns_mov_b32 s39, 0x20000")
    e("s_lshr_b32 s45, s2, 3\ns_lshl_b32 s45, s45, 2\ns_add_u32 s45, s45, s16\ns_lshl_b32 s45, s45, 7\nv_mov_b32 v3, 0\nbuffer_load_dword v1, v3, s[36:39], s45 offen")
    e("v_and_b32 v5, 15, v2\nv_lshrrev_b32 v4, 4, v2")
    e("v_and_b32 v6, 1, v4\nv_lshrrev_b32 v7, 1, v4\nv_lshlrev_b32 v6, 7, v6\nv_lshl_add_u32 v6, v7, 6, v6")
    e(f"v_mul_u32_u24 v{vKA[0]}, 1040, v5\nv_lshrrev_b32 v3, 3, v5\nv_lshl_add_u32 v{vKA[0]}, v3, 7, v{vKA[0]}\nv_add_u32 v{vKA[0]}, v{vKA[0]}, v6\nv_add_u32 v{vKA[1]}, {2*SS}, v{vKA[0]}")
    e(f"v_lshl_add_u32 v{vGK}, v5, 8, v6")
    e("v_lshrrev_b32 v3, 2, v2\nv_and_b32 v8, 3, v2")
    e(f"v_mul_u32_u24 v{vT2}, 1056, v3\nv_lshl_add_u32 v{vT2}, v8, 3, v{vT2}")
    e(f"v_add_u32 v{vVA[0]}, {KSL}, v{vT2}\nv_add_u32 v{vVA[1]}, {KSL+2*SS}, v{vT2}\nv_add_u32 v{vVA[2]}, {XB}, v{vT2}")
    e(f"s_mul_i32 s47, s16, {STG}\ns_add_u32 s47, s47, {SB}")
    e(f"v_lshlrev_b32 v{vT2}, 7, v3\nv_lshl_add_u32 v{vT2}, v8, 3, v{vT2}\nv_add_u32 v{vT2}, s47, v{vT2}")
    e(f"v_lshrrev_b32 v3, 3, v2\nv_lshlrev_b32 v{vGV}, 8, v3\nv_and_b32 v3, 7, v2\nv_lshl_add_u32 v{vGV}, v3, 4, v{vGV}")
    e(f"s_lshl_b32 s45, s16, 13\nv_lshlrev_b32 v{vOA}, 12, v7\nv_bfe_u32 v3, v2, 2, 2\nv_lshl_add_u32 v{vOA}, v3, 10, v{vOA}\nv_and_b32 v3, 1, v4\nv_lshl_add_u32 v{vOA}, v3, 8, v{vOA}\nv_lshl_add_u32 v{vOA}, v8, 4, v{vOA}\nv_add_u32 v{vOA}, s45, v{vOA}")
    e(f"s_mov_b32 {sC}, {f2u(C_SCALE):#x}\ns_mov_b32 {sTHR}, {f2u(lthr):#x}")
    e("s_mov_b32 s76, 0x55555555\ns_mov_b32 s77, s76\ns_not_b64 s[78:79], s[76:77]\ns_mov_b32 s80, 0x33333333\ns_mov_b32 s81, s80\ns_not_b64 s[82:83], s[80:81]")
    if qx:
        e(f"s_mov_b32 s45, {QOFF[0]}\ns_cmp_lt_u32 s16, 2\ns_cselect_b32 s45, s45, {QOFF[1]}\ns_cselect_b32 s46, {ini.index('A0')+1}, {ini.index('B0')+1}\ns_cselect_b32 s48, {ini.index('A1')+1}, {ini.index('B1')+1}\ns_and_b32 s19, s16, 1\ns_lshl_b32 s19, s19, 9\ns_add_u32 s45, s45, s19")
        e(f"v_and_b32 v3, 7, v2\nv_mul_u32_u24 v{vT1}, 1040, v3\nv_bfe_u32 v3, v2, 3, 1\nv_lshl_add_u32 v{vT1}, v3, 8, v{vT1}\nv_add_u32 v{vT1}, v{vT1}, v6\nv_add_u32 v{vT1}, s45, v{vT1}")
    elif not q4:
        e(f"s_lshr_b32 s46, s16, 1\ns_mov_b32 s45, {QOFF[0]}\ns_cmp_eq_u32 s46, 0\ns_cselect_b32 s45, s45, {QOFF[1]}\ns_cselect_b32 s46, {ini.index('Q0')+1}, {ini.index('Q1')+1}\ns_and_b32 s19, s16, 1\ns_lshl_b32 s19, s19, 9\ns_add_u32 s45, s45, s19")
        e(f"v_add_u32 v{vT1}, s45, v{vKA[0]}")
    else:
        pk=sum((ini.index(f"W{w}")+1)<<(8*w) for w in range(4))
        e(f"s_mov_b32 s45, {QOFF[0]}\ns_cmp_lt_u32 s16, 2\ns_cselect_b32 s45, s45, {QOFF[1]}\ns_and_b32 s19, s16, 1\ns_mul_i32 s19, s19, 8320\ns_add_u32 s45, s45, s19")
        e(f"s_lshl_b32 s46, s16, 3\ns_lshr_b32 s46, {pk:#x}, s46\ns_and_b32 s46, s46, 255")
        e(f"v_and_b32 v3, 7, v2\nv_mul_u32_u24 v{vT1}, 1040, v3\nv_bfe_u32 v3, v2, 3, 1\nv_lshl_add_u32 v{vT1}, v3, 8, v{vT1}\nv_add_u32 v{vT1}, v{vT1}, v6\nv_add_u32 v{vT1}, s45, v{vT1}")
    if sp1:
        e(f"v_cmp_eq_u32 vcc, 0, v8\nv_mov_b32 v3, 0x3f803f80\nv_mov_b32 v{vONE+1}, 0\ns_nop 0\nv_cndmask_b32 v{vONE}, v{vONE+1}, v3, vcc")
        for r in range(1,4): e(f"v_mov_b32 v{vONE+r}, v{vONE}")
    else:
        for r in range(4): e(f"v_mov_b32 v{vONE+r}, 0x3f803f80")
    e("s_waitcnt lgkmcnt(0)")
    e("s_add_u32 s32, s10, s18\ns_addc_u32 s33, s11, 0\ns_mov_b32 s34, 32768\ns_mov_b32 s35, 0x20000")
    e("s_add_u32 s20, s6, s17\ns_addc_u32 s21, s7, 0\ns_mov_b32 s22, 131072\ns_mov_b32 s23, 0x20000")
    e("s_add_u32 s24, s8, s17\ns_addc_u32 s25, s9, 0\ns_mov_b32 s26, 131072\ns_mov_b32 s27, 0x20000")
    e("s_barrier\ns_branch L_main")
    e(text(rare))
    e(".p2align 3\nL_main:")
    e(text(prog))
    if stamps:
        ns=scnt[0]
        e("s_waitcnt vmcnt(0)")
        e(f"s_memtime s[{50+2*ns}:{51+2*ns}]\ns_memrealtime s[{52+2*ns}:{53+2*ns}]\ns_waitcnt lgkmcnt(0)")
        e("s_mov_b32 s36, s12\ns_mov_b32 s37, s13\ns_mov_b32 s38, 0x1000000\ns_mov_b32 s39, 0x20000")
        e(f"s_cmp_lg_u32 s16, {stw}\ns_cbranch_scc1 L_end2")
        e("s_lshl_b32 s45, s2, 8\nv_mov_b32 v7, s45")
        regs=[96,98]+[50+2*i for i in range(ns+2)]
        assert regs[-1]<76
        for i,r in enumerate(regs):
            e(f"v_mov_b32 v8, s{r}\nbuffer_store_dword v8, v7, s[36:39], 0 offen offset:{4*i}\ns_nop 1")
        sys.stderr.write(f"nstamps={len(regs)}\n")
        e("L_end2:")
    if diag is not None:
        e("s_waitcnt vmcnt(0)")
        if diag=='end': e("s_memrealtime s[60:61]")
        e(f"s_memrealtime s[62:63]\ns_waitcnt lgkmcnt(0)\ns_sub_u32 s67, s60, s96\ns_mul_i32 s67, s67, {dk}\ns_min_u32 s67, s67, 100000\nL_spin:\ns_memrealtime s[64:65]\ns_waitcnt lgkmcnt(0)\ns_sub_u32 s66, s64, s62\ns_cmp_lt_u32 s66, s67\ns_cbranch_scc1 L_spin")
    e("s_endpgm")
    e(text(S))
    e(f'.section .rodata,"a"\n.p2align 6\n.amdhsa_kernel {KN}')
    e(f"  .amdhsa_next_free_vgpr 256\n  .amdhsa_next_free_sgpr 102\n  .amdhsa_accum_offset 256\n  .amdhsa_group_segment_fixed_size 0\n  .amdhsa_kernarg_size 48\n  .amdhsa_user_sgpr_count 2\n  .amdhsa_user_sgpr_kernarg_segment_ptr 1\n  .amdhsa_system_sgpr_workgroup_id_x 1\n.end_amdhsa_kernel")
    return "\n".join(H)+"\n"

if __name__=="__main__":
    name=sys.argv[1]; kw={}
    for a in sys.argv[2:]:
        k,v=a.split("=",1)
        try: v=int(v)
        except:
            try: v=float(v)
            except: pass
        kw[k]=v
    open(name,"w").write(gen(**kw))
```
